```python
import torch

def _softmax(x, axis=-1):
    return torch.softmax(x, dim=axis)
def _gelu(x):
    return torch.nn.functional.gelu(x, approximate="tanh")
def _silu(x):
    return torch.nn.functional.silu(x)
def _sigmoid(x):
    return torch.sigmoid(x)
def _layernorm(x, axis=-1, eps=1e-5):
    m = x.mean(dim=axis, keepdim=True)
    v = x.var(dim=axis, keepdim=True, unbiased=False)
    return (x - m) / torch.sqrt(v + eps)
def _scatter_add(tgt, idx, src, axis=0):
    return tgt.clone().index_add_(axis, idx, src)
def _segment_sum(src, seg, n):
    out = torch.zeros((n,) + src.shape[1:], dtype=src.dtype)
    return out.index_add_(0, seg, src)
def _pad(x, pw):
    flat = tuple(v for pair in reversed(pw) for v in pair)
    return torch.nn.functional.pad(x, flat)

kernel_name = 'recurrent_scan__sliding_block_cached__mixer_channel_mlp__decode'

def setup_inputs():

    _w = (lambda a: (lambda t: t.to(torch.bfloat16) if t.is_floating_point() else t)(torch.as_tensor(a)))
    def _A_setup():
        B, Sq, D = 1, 1, 512
        Hq, Hkv, Sk, Dh = 32, 8, 65536, 128
        assert Hq % Hkv == 0, (Hq, Hkv)
        return {
            "x": _w((lambda *s: torch.randn(*s, dtype=torch.bfloat16) * 0.1)(B, Sq, D)),
            "k_cache": _w((lambda *s: torch.randn(*s, dtype=torch.bfloat16) * 0.8)(B, Hkv, Sk, Dh)),
            "v_cache": _w((lambda *s: torch.randn(*s, dtype=torch.bfloat16) * 3.2)(B, Hkv, Sk, Dh)),
            "wq": _w((lambda *s: torch.randn(*s, dtype=torch.bfloat16) * 0.8)(D, Hq * Dh) * (D ** -0.5)),
            "wo": _w((lambda *s: torch.randn(*s, dtype=torch.bfloat16) * 3.2)(Hq * Dh, D) * ((Hq * Dh) ** -0.5)),
        }
    _A_in = _A_setup()

    def _B_setup():
        B, S, D, F = 1, 1, 512, 1792
        return {
            "x": _w((lambda *s: torch.randn(*s, dtype=torch.bfloat16) * 0.1)(B, S, D)),
            "w1": _w((lambda *s: torch.randn(*s, dtype=torch.bfloat16) * 3.2)(D, F) * (D ** -0.5)),
            "b1": _w((lambda *s: torch.randn(*s, dtype=torch.bfloat16) * 3.2)(F)),
            "w2": _w((lambda *s: torch.randn(*s, dtype=torch.bfloat16) * 3.2)(F, D) * (F ** -0.5)),
            "b2": _w((lambda *s: torch.randn(*s, dtype=torch.bfloat16) * 3.2)(D)),
        }
    _B_in = _B_setup()

    return {
        "A_x": _A_in["x"],
        "A_k_cache": _A_in["k_cache"],
        "A_v_cache": _A_in["v_cache"],
        "A_wq": _A_in["wq"],
        "A_wo": _A_in["wo"],
        "B_x": _B_in["x"],
        "B_w1": _B_in["w1"],
        "B_b1": _B_in["b1"],
        "B_w2": _B_in["w2"],
        "B_b2": _B_in["b2"],
    }

def reference(A_x, A_k_cache, A_v_cache, A_wq, A_wo, B_x, B_w1, B_b1, B_w2, B_b2):
    def _A_ref(x, k_cache, v_cache, wq, wo):
        B, Sq, D = x.shape
        Hq, Dh = 32, 128
        Hkv, Sk = k_cache.shape[1], k_cache.shape[2]
        W = min(4096, max(256, Sk // 4))
        rep = Hq // Hkv
        q = (lambda x, *d: x.permute(*d))((x @ wq).reshape(B, Sq, Hq, Dh), 0, 2, 1, 3)
        k = (lambda x, n, axis: torch.repeat_interleave(x, n, dim=axis))(k_cache[:, :, Sk - W:, :], rep, axis=1)
        v = (lambda x, n, axis: torch.repeat_interleave(x, n, dim=axis))(v_cache[:, :, Sk - W:, :], rep, axis=1)
        scores = torch.einsum("bhqd,bhkd->bhqk", q, k) * (Dh ** -0.5)
        p = _softmax(scores, axis=-1)
        o = torch.einsum("bhqk,bhkd->bhqd", p, v)
        return (lambda x, *d: x.permute(*d))(o, 0, 2, 1, 3).reshape(B, Sq, Hq * Dh) @ wo

    def _B_ref(x, w1, b1, w2, b2):
        y = _layernorm(x, axis=-1)
        h = _gelu(torch.einsum("bsd,df->bsf", y, w1) + b1)
        return torch.einsum("bsf,fd->bsd", h, w2) + b2

    x = A_x
    xn = _layernorm(x, axis=-1)
    s = _A_ref(xn, A_k_cache, A_v_cache, A_wq, A_wo)
    g = _silu(_B_ref(xn, B_w1, B_b1, B_w2, B_b2))
    return x + s * g
```

```python
import re
TRANS = ('v_exp_f32', 'v_log_f32', 'v_rcp_f32', 'v_rsq_f32', 'v_sqrt_f32', 'v_sin_f32', 'v_cos_f32')
def regs_of(op):
    op = op.strip()
    op = re.sub(r'^-|^abs\(|\)$|^\|', '', op).rstrip('|')
    m = re.fullmatch(r'([vsa])\[(\d+):(\d+)\]', op)
    if m: return {(m.group(1), i) for i in range(int(m.group(2)), int(m.group(3)) + 1)}
    m = re.fullmatch(r'([vsa])(\d+)', op)
    if m: return {(m.group(1), int(m.group(2)))}
    if op in ('vcc', 'vcc_lo', 'vcc_hi'): return {('s', 'vcc')}
    if op in ('exec', 'exec_lo', 'exec_hi'): return {('s', 'exec')}
    if op == 'm0': return {('s', 'm0')}
    return set()
class I:
    def __init__(self, text):
        self.text = text
        t = text.split(';')[0].strip()
        p = t.split(None, 1)
        self.mn = p[0]
        rest = p[1] if len(p) > 1 else ''
        ops = []; cur = ''; depth = 0
        for ch in rest:
            if ch in '[(': depth += 1
            if ch in '])': depth -= 1
            if ch == ',' and depth == 0: ops.append(cur.strip()); cur = ''
            else: cur += ch
        if cur.strip(): ops.append(cur.strip())
        self.mods = ''
        if ops:
            lp = ops[-1].split(None, 1)
            ops[-1] = lp[0]
            self.mods = lp[1] if len(lp) > 1 else ''
        self.ops = ops
        mn = self.mn
        self.mfma = mn.startswith('v_mfma')
        self.valu = mn.startswith('v_') and not self.mfma
        self.dpp = '_dpp' in mn
        self.trans = mn.replace('_e32', '').replace('_e64', '') in TRANS
        self.dot = mn.startswith('v_dot')
        self.perml = mn.startswith('v_permlane')
        self.rdlane = mn.startswith('v_readlane') or mn.startswith('v_readfirstlane')
        self.vmem = mn.startswith('global_') or mn.startswith('buffer_')
        self.ds = mn.startswith('ds_')
        self.salu = mn.startswith('s_')
        R = [regs_of(o) for o in ops]
        defs = set(); uses = set()
        if self.mfma:
            defs = R[0]; uses = R[1] | R[2] | R[3]; self.srcc = R[3]; self.srcab = R[1] | R[2]
        elif self.valu:
            if self.perml: defs = R[0] | R[1]; uses = R[0] | R[1]
            elif '_co_' in mn: defs = R[0] | R[1]; uses = set().union(*R[2:])
            else:
                defs = R[0]; uses = set().union(*R[1:]) if len(R) > 1 else set()
                if mn.startswith('v_fmac') or mn.startswith('v_dot2c') or self.dpp or mn.startswith('v_writelane'): uses |= R[0]
        elif self.vmem:
            if 'load' in mn: defs = R[0]; uses = set().union(*R[1:])
            else: uses = set().union(*R)
            self.wide = ('store' in mn) and (mn.endswith('x4') or mn.endswith('x3'))
            self.data = R[1] if 'store' in mn else set()
        elif self.ds:
            if 'read' in mn or 'permute' in mn or 'swizzle' in mn or '_rtn' in mn: defs = R[0]; uses = set().union(*R[1:])
            else: uses = set().union(*R)
        elif self.salu:
            if mn.startswith('s_cmp') or mn.startswith('s_cbranch') or mn in ('s_branch', 's_waitcnt', 's_nop', 's_barrier', 's_endpgm', 's_setprio', 's_sleep', 's_bitcmp1_b32', 's_bitcmp0_b32'):
                uses = set().union(*R) if R else set()
            else:
                defs = R[0] if R else set(); uses = set().union(*R[1:]) if len(R) > 1 else set()
                if 'saveexec' in mn: defs = defs | {('s', 'exec')}
        self.defs = defs; self.uses = uses
        self.ws = 1
        if mn == 's_nop': self.ws = int(ops[0], 0) + 1
def need(p, c):
    n = 0
    vd = {r for r in p.defs if r[0] in 'va'}
    sd = {r for r in p.defs if r[0] == 's'}
    if p.valu:
        if c.mfma and vd & c.uses: n = max(n, 2)
        if c.dpp and vd & c.uses: n = max(n, 2)
        if c.perml and vd & c.uses: n = max(n, 2)
        if c.rdlane and vd & c.uses: n = max(n, 1)
        if p.trans and (vd & c.uses) and not c.trans: n = max(n, 1)
        if p.trans and (vd & c.uses): n = max(n, 1)
        if sd:
            if c.valu and sd & c.uses:
                n = max(n, 2)
                if c.mn.startswith('v_readlane') or c.mn.startswith('v_writelane'): n = max(n, 4)
            if c.vmem and sd & c.uses: n = max(n, 5)
        if p.dot and (vd & (c.uses | c.defs)):
            if c.mn == p.mn and (vd & c.defs) and not (vd & set().union(*[regs_of(o) for o in c.ops[1:3]])): pass
            else: n = max(n, 3)
    if p.mfma:
        if c.mfma:
            if vd & c.srcab: n = max(n, 8)
            if vd & c.srcc and c.srcc != vd: n = max(n, 6)
            if vd & c.defs and c.srcc != vd: n = max(n, 8)
        elif vd & (c.uses | c.defs): n = max(n, 8)
        if c.valu and p.srcc & c.defs: n = max(n, 3)
    if p.vmem and getattr(p, 'wide', False) and p.data & c.defs: n = max(n, 2)
    return n
class Asm:
    def __init__(self): self.out = []; self.hist = []
    def raw(self, t): self.out.append(t)
    def label(self, l): self.out.append(l + ':')
    def cut(self): self.hist = []
    def __call__(self, text):
        for line in text.strip().split('\n'):
            line = line.strip()
            if not line or line.startswith(';'): continue
            if line.endswith(':'): self.label(line[:-1]); continue
            c = I(line)
            dist = 0; req = 0
            for p in reversed(self.hist):
                r = need(p, c) - dist
                req = max(req, r)
                dist += p.ws
                if dist >= 10: break
            if req > 0:
                n = I(f's_nop {req-1}')
                self.out.append('    ' + n.text); self.hist.append(n)
            self.out.append('    ' + line); self.hist.append(c)
            self.hist = self.hist[-16:]
            if c.mn in ('s_branch', 's_endpgm'): self.hist = []
    def text(self): return '\n'.join(self.out) + '\n'
```

```python
import sys, struct, math
sys.path.insert(0, 'gen')
from asmlib import Asm
KN = 'recurrent_scan__sliding_block_cached__mixer_channel_mlp__decode'
def f2u(f): return struct.unpack('<I', struct.pack('<f', f))[0]
H1B = 0x10000; MHB = 0x40000; MHS = 1920; H2B = 0x100000; H3AB = 0x220000; INB = 4224; H3BB = 0x340000; TSB = 0x800000
QL = 0; QS = 320; FL = 1280; MX = 1344; LS = 1360; RS = 1376; OL = 2048; LDSZ = 2048 + 8192
LOG2E = 1.4426950408889634
MAXPOLL = 400000

def gen(TS=False, WIN=6, PPOS=4):
    a = Asm()
    hdr = open('cdna_kernels/' + KN + '.s.ref').read().split('\n')
    for l in hdr:
        if l.startswith('; @launch'): break
        a.raw(l)
    a.raw(f'; @launch grid=(256,1,1) block=(384,1,1) lds={LDSZ}')
    a.raw('.amdgcn_target "amdgcn-amd-amdhsa--gfx950"\n.text')
    a.raw(f'.globl {KN}_kernel\n.p2align 8\n.type {KN}_kernel,@function\n{KN}_kernel:')
    def ts(k):
        if TS: a(f's_memrealtime s[{76+2*k}:{77+2*k}]')
    def ts_flush(n):
        if not TS: return
        a(f'''s_mul_i32 s38, s2, 6
        s_add_u32 s38, s38, s30
        s_lshl_b32 s38, s38, 7
        s_add_u32 s38, s38, {TSB}
        v_mov_b32 v1, s38
        s_mov_b64 exec, 1
        s_waitcnt lgkmcnt(0)''')
        for k in range(n):
            a(f'v_mov_b32 v2, s{76+2*k}')
            a(f'global_store_dword v1, v2, s[28:29] offset:{4*k}')
    def wave_sum(v):
        for sh in (1, 2, 4, 8):
            a(f'v_add_f32_dpp v{v}, v{v}, v{v} row_shr:{sh} row_mask:0xf bank_mask:0xf bound_ctrl:0')
        a(f'v_add_f32_dpp v{v}, v{v}, v{v} row_bcast:15 row_mask:0xa bank_mask:0xf')
        a(f'v_add_f32_dpp v{v}, v{v}, v{v} row_bcast:31 row_mask:0xc bank_mask:0xf')
    def wave_sum2(v, u):
        for sh in (1, 2, 4, 8):
            for x in (v, u): a(f'v_add_f32_dpp v{x}, v{x}, v{x} row_shr:{sh} row_mask:0xf bank_mask:0xf bound_ctrl:0')
        for x in (v, u): a(f'v_add_f32_dpp v{x}, v{x}, v{x} row_bcast:15 row_mask:0xa bank_mask:0xf')
        for x in (v, u): a(f'v_add_f32_dpp v{x}, v{x}, v{x} row_bcast:31 row_mask:0xc bank_mask:0xf')
    def row_allred(op, vs):
        for sh in (8, 4, 2, 1):
            for x in vs: a(f'{op}_dpp v{x}, v{x}, v{x} row_ror:{sh} row_mask:0xf bank_mask:0xf')
    def oct_allred(vs):
        for m in ('quad_perm:[1,0,3,2]', 'quad_perm:[2,3,0,1]', 'row_half_mirror'):
            for x in vs: a(f'v_add_f32_dpp v{x}, v{x}, v{x} {m} row_mask:0xf bank_mask:0xf')
    def rnd(dst, src):
        a(f'v_cvt_pk_bf16_f32 v{dst}, v{src}, v{src}')
        a(f'v_and_b32 v{dst}, 0xffff0000, v{dst}')
    def mktag(ve):
        a(f'''v_readfirstlane_b32 s35, v{ve}
        s_add_u32 s35, s35, 0x9E3779B9
        s_or_b32 s35, s35, 1''')
    def pack(d, v0, v1, v2, v3):
        a(f'v_perm_b32 v{d}, v{v0}, v{v3}, s42')
        a(f'v_perm_b32 v{d+1}, v{v1}, v{v3}, s43')
        a(f'v_perm_b32 v{d+2}, v{v2}, v{v3}, s44')
    def unpack3(d):
        a(f'v_perm_b32 v{d+3}, v{d+1}, v{d}, s45')
        a(f'v_perm_b32 v{d+3}, v{d+2}, v{d+3}, s46')
    def tagcheck(tagregs, fail):
        for i, r in enumerate(tagregs):
            a(f'v_cmp_ne_u32 s[{50+2*i}:{51+2*i}], s35, v{r}')
        if len(tagregs) == 1:
            a('s_cmp_lg_u64 s[50:51], 0')
        else:
            for i in range(1, len(tagregs)):
                a(f's_or_b64 s[50:51], s[50:51], s[{50+2*i}:{51+2*i}]')
        a(f's_cbranch_scc1 {fail}')

    ts(0)
    a(f'''s_load_dwordx16 s[4:19], s[0:1], 0
    s_load_dwordx8 s[20:27], s[0:1], 64
    s_load_dwordx2 s[28:29], s[0:1], 96
    s_cmp_ge_u32 s2, 256
    s_cbranch_scc1 L_end
    v_lshrrev_b32 v1, 6, v0
    v_and_b32 v0, 63, v0
    s_getpc_b64 s[36:37]
    L_pc:
    v_readfirstlane_b32 s30, v1
    s_and_b32 s31, s2, 7
    s_lshr_b32 s32, s2, 3
    s_mul_i32 s38, s32, 6
    s_add_u32 s38, s38, s30
    s_lshl_b32 s38, s38, 7
    s_min_u32 s38, s38, L_end-L_pc
    v_mov_b32 v1, s38
    global_load_dword v27, v1, s[36:37]
    s_lshl_b32 s34, s31, 5
    s_add_u32 s34, s34, s32
    v_mov_b32 v1, 0
    v_lshlrev_b32 v2, 4, v0
    s_cmp_eq_u32 s30, 1
    s_cbranch_scc1 L_M
    s_cmp_gt_u32 s30, 1
    s_cbranch_scc1 L_A''')
    a(f'''s_setprio 3
    v_lshrrev_b32 v3, 4, v0
    v_and_b32 v4, 1, v0
    v_lshl_add_u32 v3, v3, 1, v4
    v_lshlrev_b32 v3, 5, v3
    s_and_b32 s38, s32, 3
    s_lshl_b32 s39, s38, 8
    v_add_u32 v3, s39, v3
    v_lshrrev_b32 v4, 3, v0
    v_lshlrev_b32 v4, 17, v4
    v_and_b32 v5, 7, v0
    v_lshl_add_u32 v4, v5, 4, v4
    s_lshl_b32 s39, s38, 20
    s_lshl_b32 s38, s31, 10
    s_add_u32 s39, s39, s38
    s_lshr_b32 s38, s32, 2
    s_lshl_b32 s38, s38, 7
    s_add_u32 s39, s39, s38
    v_add_u32 v4, s39, v4
    s_mov_b32 s38, 0x3f803f80
    s_movk_i32 s39, 0x2000''')
    for r in range(8, 16): a(f'v_mov_b32 v{r}, s38')
    a(f'''s_mov_b32 s60, 0x00030003
    s_mov_b32 s61, 0x00030003
    s_waitcnt lgkmcnt(0)
    s_mov_b64 exec, s[60:61]
    global_load_dwordx4 v[8:11], v3, s[4:5]
    global_load_dwordx4 v[12:15], v3, s[4:5] offset:16
    s_mov_b64 exec, -1
    global_load_dwordx4 v[148:151], v2, s[4:5]
    global_load_dword v16, v1, s[28:29] sc1''')
    for i in range(16):
        a(f'global_load_dwordx4 v[{20+4*i}:{23+4*i}], v4, s[10:11] nt')
        if i < 15: a('v_add_u32 v4, s39, v4')
    a('s_barrier')
    a('s_branch L_Q2')
    a(f'''L_M:
    s_setprio 2
    s_mul_i32 s38, s32, {16*3584}
    s_mul_i32 s39, s31, 448
    s_add_u32 s38, s38, s39
    v_lshl_add_u32 v4, v0, 3, s38
    s_movk_i32 s39, 7168
    s_mov_b32 s60, -1
    s_mov_b32 s61, 0x00ffffff
    s_waitcnt lgkmcnt(0)
    global_load_dwordx4 v[8:11], v2, s[4:5]
    global_load_dword v16, v1, s[28:29] sc1
    s_mov_b64 exec, s[60:61]''')
    for p in range(8):
        a(f'global_load_dwordx2 v[{20+4*p}:{21+4*p}], v4, s[16:17] nt')
        a(f'global_load_dwordx2 v[{22+4*p}:{23+4*p}], v4, s[16:17] offset:3584 nt')
        if p < 7: a('v_add_u32 v4, s39, v4')
    a('s_mov_b64 exec, -1')
    a('s_barrier')
    a('s_branch L_M2')
    KR = 36; VR = 68; PR = 100; MR = 108; W2R = 116; WOR = 124; QF = 140; DS = 156
    a(f'''L_A:
    s_sub_u32 s47, s30, 2
    s_lshl_b32 s38, s31, 24
    s_lshl_b32 s39, s32, 15
    s_add_u32 s38, s38, s39
    s_lshl_b32 s39, s47, 13
    s_add_u32 s38, s38, s39
    s_add_u32 s38, s38, {0xF00000 + 4096}
    v_and_b32 v5, 15, v0
    v_lshrrev_b32 v6, 4, v0
    v_lshlrev_b32 v2, 8, v5
    v_lshl_add_u32 v2, v6, 4, v2
    v_add_u32 v2, s38, v2
    v_lshlrev_b32 v4, 10, v6
    v_lshl_add_u32 v4, v5, 4, v4
    v_add_u32 v4, s38, v4''')
    a(f'''s_mul_i32 s38, s31, {32*INB}
    s_lshl_b32 s39, s32, 7
    s_add_u32 s38, s38, s39
    s_lshl_b32 s39, s47, 4
    s_add_u32 s39, s39, s38
    s_add_u32 s39, s39, {H2B}
    v_lshrrev_b32 v7, 1, v0
    v_mul_u32_u24 v10, {INB}, v7
    v_and_b32 v7, 1, v0
    v_lshl_add_u32 v10, v7, 6, v10
    v_add_u32 v10, s39, v10''')
    a(f'''s_mul_i32 s39, s47, {8*INB}
    s_add_u32 s39, s39, s38
    s_add_u32 s39, s39, {H3AB}
    v_lshrrev_b32 v8, 1, v5
    v_mul_u32_u24 v11, {INB}, v8
    v_lshl_add_u32 v11, v7, 5, v11
    v_and_b32 v8, 1, v6
    v_lshl_add_u32 v11, v8, 4, v11
    v_lshrrev_b32 v8, 5, v0
    v_lshl_add_u32 v11, v8, 6, v11
    v_add_u32 v11, s39, v11
    v_mov_b32 v{PR}, 0
    v_mov_b32 v{PR+1}, 0
    v_mov_b32 v{PR+2}, 0
    v_mov_b32 v{PR+3}, 0
    s_waitcnt lgkmcnt(0)
    global_load_dword v23, v1, s[28:29] sc1
    global_store_dwordx4 v10, v[{PR}:{PR+3}], s[28:29]
    global_store_dwordx4 v11, v[{PR}:{PR+3}], s[28:29]''')
    a(f'''v_mov_b32 v{PR+4}, 0xff800000
    v_and_b32 v9, 3, v0
    v_lshlrev_b32 v9, 2, v9
    ds_write_b32 v9, v{PR+4} offset:{MX}
    ds_write_b32 v9, v1 offset:{LS}
    s_waitcnt lgkmcnt(0)
    s_barrier''')
    ts(1)
    stream = []
    for b in range(2):
        for t in range(4):
            r = KR + 16*b + 4*t
            stream.append(f'global_load_dwordx4 v[{r}:{r+3}], v2, s[6:7] offset:{4096*b + 64*t - 4096} nt')
    vl = []
    for e in range(8):
        r = VR + 4*e
        vl.append(f'global_load_dwordx4 v[{r}:{r+3}], v4, s[8:9] offset:{4096*(e>>2) + 256*(e&3) - 4096} nt')
    pl = [f'global_load_dwordx4 v[{PR}:{PR+3}], v12, s[28:29] sc1', f'global_load_dwordx4 v[{PR+4}:{PR+7}], v12, s[28:29] offset:256 sc1']
    stream += vl[:PPOS] + pl + vl[PPOS:]
    for n in range(WIN): a(stream[n])
    a(f'''s_lshl_b32 s38, s31, 13
    s_lshl_b32 s39, s47, 11
    s_add_u32 s38, s38, s39
    s_add_u32 s38, s38, {H1B}
    v_and_b32 v8, 1, v6
    v_lshlrev_b32 v12, 10, v8
    v_lshrrev_b32 v9, 5, v0
    v_lshl_add_u32 v12, v9, 9, v12
    v_lshl_add_u32 v12, v5, 4, v12
    v_add_u32 v12, s38, v12''')
    a(f'''s_mul_i32 s38, s47, {QS}
    v_lshlrev_b32 v17, 7, v8
    v_lshl_add_u32 v17, v9, 2, v17
    v_and_b32 v8, 7, v0
    v_lshl_add_u32 v17, v8, 4, v17
    v_bfe_u32 v8, v0, 3, 1
    v_lshl_add_u32 v17, v8, 3, v17
    v_add_u32 v17, s38, v17''')
    a(f'''v_lshrrev_b32 v8, 2, v5
    v_mul_u32_u24 v18, {QS}, v8
    v_lshl_add_u32 v18, v6, 4, v18
    v_lshlrev_b32 v19, 2, v8
    v_lshlrev_b32 v20, 2, v6''')
    a(f'''s_lshl_b32 s38, s47, 11
    s_add_u32 s38, s38, {OL}
    v_lshl_add_u32 v21, v0, 2, s38
    s_lshl_b32 s38, s47, 9
    s_add_u32 s38, s38, {OL}
    v_lshl_add_u32 v22, v0, 2, s38''')
    a(f'''s_min_u32 s62, s32, 27
    s_mul_i32 s38, s31, {32*MHS}
    s_lshl_b32 s39, s62, 6
    s_add_u32 s38, s38, s39
    s_add_u32 s38, s38, {MHB}
    v_mul_u32_u24 v13, {MHS}, v5
    v_lshl_add_u32 v13, v6, 4, v13
    v_add_u32 v13, s38, v13
    v_add_u32 v14, {16*MHS}, v13''')
    a(f'''s_mul_i32 s38, s31, 224
    s_lshl_b32 s39, s62, 3
    s_add_u32 s38, s38, s39
    s_lshl_b32 s39, s38, 1
    v_lshl_add_u32 v9, v6, 2, s39
    global_load_dword v24, v9, s[18:19]
    s_lshl_b32 s38, s38, 10
    s_lshl_b32 s39, s47, 8
    s_add_u32 s38, s38, s39
    v_lshlrev_b32 v8, 11, v6
    v_lshl_add_u32 v8, v5, 4, v8
    v_add_u32 v8, s38, v8''')
    a(f'''s_lshl_b32 s38, s34, 14
    s_add_u32 s38, s38, s39
    v_lshlrev_b32 v9, 12, v6
    v_lshl_add_u32 v9, v5, 4, v9
    v_add_u32 v9, s38, v9''')
    a(f'''s_mul_i32 s38, s34, {INB}
    s_add_u32 s39, s38, {H2B}
    v_lshlrev_b32 v15, 7, v5
    v_lshl_add_u32 v15, v6, 5, v15
    v_add_u32 v15, s39, v15''')
    a(f'''s_add_u32 s39, s38, {H3AB}
    v_and_b32 v1, 7, v0
    v_lshlrev_b32 v16, 7, v1
    v_lshrrev_b32 v3, 3, v0
    v_lshl_add_u32 v16, v3, 4, v16
    v_add_u32 v3, s39, v16''')
    a(f'''s_lshl_b32 s38, s32, 10
    s_add_u32 s38, s38, {H3BB}
    v_add_u32 v16, s38, v16''')
    a(f'''v_bfe_u32 v1, v0, 3, 2
    v_and_b32 v25, 3, v0
    v_lshl_add_u32 v1, v1, 2, v25
    s_lshl_b32 s38, s32, 4
    v_add_u32 v1, s38, v1
    v_lshlrev_b32 v1, 1, v1
    global_load_ushort v25, v1, s[4:5]
    global_load_ushort v26, v1, s[22:23]''')
    a(f'''s_mov_b32 s40, 0x05040100
    s_mov_b32 s41, 0x07060302
    s_mov_b32 s42, 0x07060501
    s_mov_b32 s43, 0x07060502
    s_mov_b32 s44, 0x07060503
    s_mov_b32 s45, 0x0c04000c
    s_mov_b32 s46, 0x04020100
    s_getreg_b32 s33, hwreg(HW_REG_XCC_ID)
    s_and_b32 s33, s33, 7
    v_cmp_eq_u32 vcc, 1, v7
    v_mov_b32 v164, 0x0c0c0100
    v_mov_b32 v165, 0x01000c0c
    v_cndmask_b32 v164, v164, v165, vcc
    v_mov_b32 v165, 0x0c0c0302
    v_mov_b32 v166, 0x03020c0c
    v_cndmask_b32 v165, v165, v166, vcc
    v_mov_b32 v166, 0x0c0c0c0c
    v_bfe_u32 v167, v0, 1, 2''')
    for r in range(4):
        a(f'v_cmp_eq_u32 vcc, {r}, v167')
        a(f'v_cndmask_b32 v{28+r}, v166, v164, vcc')
        a(f'v_cndmask_b32 v{32+r}, v166, v165, vcc')
    extra = 3
    for n in range(WIN, len(stream)):
        older = n - WIN
        cnt = (n - 1 - older) + (extra if older < WIN else 0)
        a(f's_waitcnt vmcnt({cnt})')
        if n == WIN: mktag(23)
        a(stream[n])
    npost = 8 - PPOS
    a('s_branch L_A2')

    a('L_Q2:')
    a(f'''s_mov_b32 s40, 0x05040100
    s_mov_b32 s41, 0x07060302
    s_mov_b32 s42, 0x07060501
    s_mov_b32 s43, 0x07060502
    s_mov_b32 s44, 0x07060503
    s_getreg_b32 s33, hwreg(HW_REG_XCC_ID)
    s_and_b32 s33, s33, 7
    s_lshl_b32 s33, s33, 8
    v_mov_b32 v17, s33
    s_movk_i32 s62, 0x700
    s_lshl_b32 s39, s34, 8
    s_add_u32 s39, s39, {H1B}
    v_lshl_add_u32 v18, v0, 4, s39
    v_mov_b32 v19, 0
    s_waitcnt vmcnt(16)''')
    ts(1)
    for r in range(148, 152): a(f'v_dot2c_f32_bf16 v19, s38, v{r}')
    mktag(16)
    wave_sum(19)
    a(f'''v_readlane_b32 s63, v19, 63
    v_mov_b32 v19, {hex(f2u(1.0/512))}
    v_mul_f32 v19, s63, v19''')
    rnd(19, 19)
    T = 84; D = 116
    for h in range(2):
        for pr in range(4):
            ia = 8*h + 2*pr; ib = ia + 1
            a(f's_waitcnt vmcnt({15 - ib})')
            for d in range(4):
                a(f'v_perm_b32 v{T + 4*(2*d) + pr}, v{20+4*ib+d}, v{20+4*ia+d}, s40')
                a(f'v_perm_b32 v{T + 4*(2*d+1) + pr}, v{20+4*ib+d}, v{20+4*ia+d}, s41')
        if h == 1: ts(2)
        for j in range(8):
            c = '0' if h == 0 else f'v[{D+4*j}:{D+4*j+3}]'
            a(f'v_mfma_f32_16x16x32_bf16 v[{D+4*j}:{D+4*j+3}], v[{8+4*h}:{11+4*h}], v[{T+4*j}:{T+4*j+3}], {c}')
    for j in range(8):
        d = D + 4*j
        a(f'v_add_f32_dpp v{d}, v{d+1}, v{d} row_ror:8 row_mask:0xf bank_mask:0xf')
        a(f'v_add_f32_dpp v{d+2}, v{d+2}, v{d+2} row_ror:8 row_mask:0xf bank_mask:0xf')
        a(f'v_fma_f32 v{d}, -v19, v{d+2}, v{d}')
    for hq in range(2):
        o = 20 + 4*hq
        pack(o, D + 16*hq, D + 16*hq + 4, D + 16*hq + 8, D + 16*hq + 12)
        a(f'v_bfi_b32 v{o}, s62, v17, v{o}')
        a(f'v_mov_b32 v{o+3}, s35')
    a(f'''s_mov_b64 exec, 0xff
    global_store_dwordx4 v18, v[20:23], s[28:29] sc1
    global_store_dwordx4 v18, v[24:27], s[28:29] offset:128 sc1''')
    ts(3)
    ts_flush(4)
    a('s_endpgm')

    a('L_M2:')
    a(f'''s_mov_b32 s40, 0x05040100
    s_mov_b32 s41, 0x07060302
    s_mul_i32 s39, s34, {MHS}
    s_add_u32 s39, s39, {MHB}
    v_lshl_add_u32 v18, v0, 5, s39
    s_lshl_b32 s62, s32, 1
    s_add_u32 s63, s62, 1
    v_mov_b32 v17, {RS}
    s_waitcnt vmcnt(16)''')
    ts(1)
    mktag(16)
    def layernorm(first):
        for d in range(4):
            a(f'v_lshlrev_b32 v{60+2*d}, 16, v{8+d}')
            a(f'v_and_b32 v{61+2*d}, 0xffff0000, v{8+d}')
        a('v_readfirstlane_b32 s38, v60')
        for k in range(8): a(f'v_subrev_f32 v{70+k}, s38, v{60+k}')
        a('v_add_f32 v68, v70, v71')
        a('v_mul_f32 v69, v70, v70')
        for k in range(1, 8):
            if k >= 2: a(f'v_add_f32 v68, v68, v{70+k}')
            a(f'v_fmac_f32 v69, v{70+k}, v{70+k}')
        wave_sum2(68, 69)
        a(f'''v_readlane_b32 s39, v68, 63
        v_readlane_b32 s64, v69, 63
        v_mov_b32 v70, {hex(f2u(1.0/512))}
        v_mul_f32 v68, s39, v70
        v_mul_f32 v69, s64, v70
        v_fma_f32 v69, -v68, v68, v69
        v_max_f32 v69, 0, v69
        v_add_f32 v68, s38, v68''')
        rnd(68, 68); rnd(69, 69)
        a(f'v_add_f32 v69, {hex(f2u(1e-5))}, v69')
        rnd(69, 69)
        a('v_sqrt_f32 v69, v69')
        rnd(69, 69)
        a('v_rcp_f32 v69, v69')
        if first:
            a('ds_write_b32 v17, v69')
        for k in range(8): a(f'v_sub_f32 v{60+k}, v{60+k}, v68')
        for d in range(4): a(f'v_cvt_pk_bf16_f32 v{8+d}, v{60+2*d}, v{61+2*d}')
        for d in range(4):
            a(f'v_lshlrev_b32 v{60+2*d}, 16, v{8+d}')
            a(f'v_and_b32 v{61+2*d}, 0xffff0000, v{8+d}')
        for k in range(8): a(f'v_mul_f32 v{60+k}, v{60+k}, v69')
        for d in range(4): a(f'v_cvt_pk_bf16_f32 v{8+d}, v{60+2*d}, v{61+2*d}')
    layernorm(True)
    layernorm(False)
    for d in range(4):
        a(f'v_readlane_b32 s{66+d}, v{8+d}, s62')
        a(f'v_readlane_b32 s{70+d}, v{8+d}, s63')
    for c in (0, 1, 4, 5): a(f'v_mov_b32 v{80+c}, 0')
    a('v_mov_b32 v82, 0\nv_mov_b32 v86, 0\nv_mov_b32 v83, s35\nv_mov_b32 v87, s35')
    ts(2)
    acc = (80, 81, 84, 85)
    for p in range(8):
        a(f's_waitcnt vmcnt({14 - 2*p})')
        ra = 20 + 4*p; rb = ra + 2
        for d in range(2):
            a(f'v_perm_b32 v{60+2*d}, v{rb+d}, v{ra+d}, s40')
            a(f'v_perm_b32 v{61+2*d}, v{rb+d}, v{ra+d}, s41')
        for c in range(4): a(f'v_dot2c_f32_bf16 v{acc[c]}, s{66+p}, v{60+c}')
    a(f'''s_mov_b64 exec, s[60:61]
    global_store_dwordx4 v18, v[80:83], s[28:29] sc1
    global_store_dwordx4 v18, v[84:87], s[28:29] offset:16 sc1
    s_waitcnt lgkmcnt(0)''')
    ts(3)
    ts_flush(4)
    a('s_endpgm')

    a('L_P_retry:')
    a(f'''s_add_u32 s48, s48, 1
    s_cmp_gt_u32 s48, {MAXPOLL}
    s_cbranch_scc1 L_end
    {pl[0]}
    {pl[1]}
    s_waitcnt vmcnt(0)
    s_branch L_P_chk''')
    a('L_A2:')
    a(f's_mov_b32 s48, 0')
    a(f's_waitcnt vmcnt({npost})')
    a('L_P_chk:')
    ts(2)
    tagcheck([PR+3, PR+7], 'L_P_retry')
    ml = [f'global_load_dwordx4 v[{MR}:{MR+3}], v13, s[28:29] sc1', f'global_load_dwordx4 v[{MR+4}:{MR+7}], v14, s[28:29] sc1']
    for x in ml: a(x)
    for i in range(2): a(f'global_load_dwordx4 v[{W2R+4*i}:{W2R+4*i+3}], v8, s[20:21] offset:{1024*i} nt')
    for i in range(4): a(f'global_load_dwordx4 v[{WOR+4*i}:{WOR+4*i+3}], v9, s[12:13] offset:{1024*i} nt')
    a(f'''v_bfe_u32 v164, v{PR}, 8, 3
    v_bfe_u32 v165, v{PR+4}, 8, 3
    v_cmp_ne_u32 s[50:51], s33, v164
    v_cmp_ne_u32 s[52:53], s33, v165''')
    unpack3(PR); unpack3(PR+4)
    a('s_or_b64 s[50:51], s[50:51], s[52:53]')
    a('s_cselect_b32 s49, 1, 0')
    for k in range(4): a(f'v_add_f32 v{PR+k}, v{PR+k}, v{PR+4+k}')
    a(f'''v_mov_b32 v164, s49
    s_lshl_b32 s38, s47, 2
    v_mov_b32 v165, s38
    v_permlane32_swap_b32 v{PR}, v{PR+2}
    v_permlane32_swap_b32 v{PR+1}, v{PR+3}
    v_add_f32 v{PR}, v{PR}, v{PR+2}
    v_add_f32 v{PR+1}, v{PR+1}, v{PR+3}
    v_cvt_pk_bf16_f32 v{PR}, v{PR}, v{PR+1}
    ds_write_b32 v165, v164 offset:{FL}
    ds_write_b32 v17, v{PR}
    v_mov_b32 v165, 0
    s_waitcnt lgkmcnt(0)
    s_barrier''')
    for t in range(4): a(f'ds_read_b128 v[{QF+4*t}:{QF+4*t+3}], v18 offset:{64*t}')
    a(f'ds_read_b128 v[{PR}:{PR+3}], v165 offset:{FL}')
    a(f'ds_read_b32 v{PR+4}, v165 offset:{RS}')
    for t in range(4):
        a(f's_waitcnt lgkmcnt({5-t})' if not TS else 's_waitcnt lgkmcnt(0)')
        for b in range(2):
            c = '0' if t == 0 else f'v[{DS+4*b}:{DS+4*b+3}]'
            k = KR + 16*b + 4*t
            a(f'v_mfma_f32_16x16x32_bf16 v[{DS+4*b}:{DS+4*b+3}], v[{k}:{k+3}], v[{QF+4*t}:{QF+4*t+3}], {c}')
    a(f'''s_waitcnt lgkmcnt(0)
    v_or3_b32 v{PR}, v{PR}, v{PR+1}, v{PR+2}
    v_or_b32 v{PR}, v{PR}, v{PR+3}
    v_mul_f32 v{PR+4}, {hex(f2u(LOG2E / math.sqrt(128.0)))}, v{PR+4}
    v_readfirstlane_b32 s49, v{PR}
    s_mov_b32 s60, 0x11111111
    s_mov_b32 s61, 0x11111111''')
    for k in range(8): a(f'v_mul_f32 v{DS+k}, v{DS+k}, v{PR+4}')
    a(f'''v_max3_f32 v164, v{DS}, v{DS+1}, v{DS+2}
    v_max3_f32 v165, v{DS+3}, v{DS+4}, v{DS+5}
    v_max3_f32 v164, v164, v{DS+6}, v{DS+7}
    v_max_f32 v164, v164, v165
    s_mov_b64 exec, s[60:61]
    ds_max_f32 v19, v164 offset:{MX}
    s_mov_b64 exec, -1''')
    VT = KR
    def vperm(pr):
        ia = 2*pr; ib = ia + 1
        for d in range(4):
            a(f'v_perm_b32 v{VT + 4*(2*d) + pr}, v{VR+4*ib+d}, v{VR+4*ia+d}, s40')
            a(f'v_perm_b32 v{VT + 4*(2*d+1) + pr}, v{VR+4*ib+d}, v{VR+4*ia+d}, s41')
    early = PPOS // 2
    a('s_waitcnt lgkmcnt(0)')
    a('s_barrier')
    a(f'ds_read_b32 v164, v19 offset:{MX}')
    a(f'ds_read_b32 v166, v20 offset:{MX}')
    for pr in range(early): vperm(pr)
    a('s_waitcnt lgkmcnt(0)')
    for k in range(8): a(f'v_sub_f32 v{DS+k}, v{DS+k}, v164')
    for k in range(8): a(f'v_exp_f32 v{DS+k}, v{DS+k}')
    a(f'''v_add_f32 v164, v{DS}, v{DS+1}
    v_add_f32 v165, v{DS+2}, v{DS+3}
    v_add_f32 v167, v{DS+4}, v{DS+5}
    v_add_f32 v164, v164, v165
    v_add_f32 v165, v{DS+6}, v{DS+7}
    v_add_f32 v164, v164, v167
    v_add_f32 v164, v164, v165
    s_mov_b64 exec, s[60:61]
    ds_add_f32 v19, v164 offset:{LS}
    s_mov_b64 exec, -1''')
    for k in range(4): a(f'v_cvt_pk_bf16_f32 v{QF+k}, v{DS+2*k}, v{DS+2*k+1}')
    ts(3)
    for pr in range(early, 4):
        a(f's_waitcnt vmcnt({8 + (7 - (2*pr+1))})')
        vperm(pr)
    ts(4)
    for j in range(8):
        a(f'v_mfma_f32_16x16x32_bf16 v[{VR+4*j}:{VR+4*j+3}], v[{QF}:{QF+3}], v[{VT+4*j}:{VT+4*j+3}], 0')
    for j in range(0, 8, 2):
        a(f'ds_write2st64_b32 v21, v{VR+4*j}, v{VR+4*j+4} offset0:{j} offset1:{j+1}')
    a(f'''v_mov_b32 v{DS+3}, s35
    s_waitcnt lgkmcnt(0)
    s_barrier''')
    for wp in range(4): a(f'ds_read2st64_b32 v[{PR+2*wp}:{PR+2*wp+1}], v22 offset0:{8*wp} offset1:{8*wp+1}')
    a(f'ds_read_b32 v167, v20 offset:{LS}')
    a(f'''s_bitcmp1_b32 s47, 0
    s_cselect_b64 vcc, -1, 0
    s_waitcnt lgkmcnt(0)
    v_add_f32 v{DS}, v{PR}, v{PR+2}
    v_add_f32 v{DS+1}, v{PR+1}, v{PR+3}
    v_add_f32 v{PR+4}, v{PR+4}, v{PR+6}
    v_add_f32 v{PR+5}, v{PR+5}, v{PR+7}
    v_cndmask_b32 v{DS+2}, v166, v167, vcc
    v_add_f32 v{DS}, v{DS}, v{PR+4}
    v_add_f32 v{DS+1}, v{DS+1}, v{PR+5}
    s_cmp_lg_u32 s49, 0
    s_cbranch_scc1 L_st2_slow
    global_store_dwordx4 v10, v[{DS}:{DS+3}], s[28:29]
    L_st2_done:''')
    ts(5)
    HR = KR
    h2l = [f'global_load_dwordx4 v[{HR+8*k+4*u}:{HR+8*k+4*u+3}], v15, s[28:29] offset:{2048*k+16*u} sc1' for k in range(2) for u in range(2)]
    for x in h2l: a(x)
    a('s_waitcnt vmcnt(11)')
    a('L_Mh_chk:')
    tagcheck([MR+3, MR+7], 'L_Mh_retry')
    a(f'''v_add_f32 v{MR}, v{MR}, v{MR+4}
    v_add_f32 v{MR+1}, v{MR+1}, v{MR+5}
    v_lshlrev_b32 v{MR+2}, 16, v24
    v_and_b32 v{MR+3}, 0xffff0000, v24''')
    row_allred('v_add_f32', [MR, MR+1])
    a(f'''v_cvt_pk_bf16_f32 v{MR+4}, v{MR}, v{MR+1}
    v_lshlrev_b32 v{MR}, 16, v{MR+4}
    v_and_b32 v{MR+1}, 0xffff0000, v{MR+4}
    v_add_f32 v{MR}, v{MR}, v{MR+2}
    v_add_f32 v{MR+1}, v{MR+1}, v{MR+3}
    v_cvt_pk_bf16_f32 v{MR+4}, v{MR}, v{MR+1}
    v_lshlrev_b32 v{MR}, 16, v{MR+4}
    v_and_b32 v{MR+1}, 0xffff0000, v{MR+4}
    s_mov_b32 s38, {hex(f2u(0.044715))}
    s_mov_b32 s39, {hex(f2u(-2.0 * math.sqrt(2.0 / math.pi) * LOG2E))}''')
    for k in range(2): a(f'v_mul_f32 v{MR+2+k}, v{MR+k}, v{MR+k}')
    for k in range(2): a(f'v_fma_f32 v{MR+2+k}, v{MR+2+k}, s38, 1.0')
    for k in range(2): a(f'v_mul_f32 v{MR+2+k}, v{MR+2+k}, v{MR+k}')
    for k in range(2): a(f'v_mul_f32 v{MR+2+k}, s39, v{MR+2+k}')
    for k in range(2): a(f'v_exp_f32 v{MR+2+k}, v{MR+2+k}')
    for k in range(2): a(f'v_add_f32 v{MR+2+k}, 1.0, v{MR+2+k}')
    for k in range(2): a(f'v_rcp_f32 v{MR+2+k}, v{MR+2+k}')
    for k in range(2): a(f'v_mul_f32 v{MR+k}, v{MR+k}, v{MR+2+k}')
    a(f'''s_cmp_lt_u32 s32, 28
    s_cselect_b32 s60, 0xff00ff00, 0
    s_cselect_b32 s61, 0xff00ff00, 0
    v_cvt_pk_bf16_f32 v{MR+4}, v{MR}, v{MR+1}
    v_cndmask_b32 v{MR+4}, 0, v{MR+4}, s[60:61]''')
    AT = QF
    for i in range(2):
        for r in range(4): a(f'v_perm_b32 v{AT+4*i+r}, v{MR+4}, v{MR+4}, v{28+4*i+r}')
    a('s_waitcnt vmcnt(9)')
    DO = DS + 4
    for i in range(2):
        c = '0' if i == 0 else f'v[{DO}:{DO+3}]'
        a(f'v_mfma_f32_16x16x32_bf16 v[{DO}:{DO+3}], v[{AT+4*i}:{AT+4*i+3}], v[{W2R+4*i}:{W2R+4*i+3}], {c}')
    a('s_mov_b32 s60, 0x00ff00ff\ns_mov_b32 s61, 0x00ff00ff')
    ts(6)
    a('L_H2_wait:')
    a('s_waitcnt vmcnt(0)')
    tagcheck([HR+3, HR+7, HR+11, HR+15], 'L_H2_retry')
    ts(7)
    a(f'v_max_f32 v164, v{HR+2}, v{HR+10}')
    row_allred('v_max_f32', [164])
    a(f'''v_sub_f32 v{HR+2}, v{HR+2}, v164
    v_sub_f32 v{HR+10}, v{HR+10}, v164
    v_exp_f32 v{HR+2}, v{HR+2}
    v_exp_f32 v{HR+10}, v{HR+10}''')
    for r in (0, 1, 4, 5, 6): a(f'v_mul_f32 v{HR+r}, v{HR+r}, v{HR+2}')
    for r in (0, 1, 4, 5, 6): a(f'v_fmac_f32 v{HR+r}, v{HR+8+r}, v{HR+10}')
    row_allred('v_add_f32', [HR+6, HR, HR+1, HR+4, HR+5])
    a(f'''v_rcp_f32 v{HR+6}, v{HR+6}''')
    for r in (0, 1, 4, 5): a(f'v_mul_f32 v{HR+r}, v{HR+r}, v{HR+6}')
    a(f'''v_cvt_pk_bf16_f32 v{HR}, v{HR}, v{HR+1}
    v_cvt_pk_bf16_f32 v{HR+4}, v{HR+4}, v{HR+5}
    v_cndmask_b32 v{HR}, 0, v{HR}, s[60:61]
    v_cndmask_b32 v{HR+4}, 0, v{HR+4}, s[60:61]''')
    for i in range(4):
        src = HR + 4*(i >> 1)
        for r in range(4): a(f'v_perm_b32 v{AT+4*i+r}, v{src}, v{src}, v{28+4*(i&1)+r}')
        if i >= 1:
            a(f'v_mfma_f32_16x16x32_bf16 v[{DO}:{DO+3}], v[{AT+4*(i-1)}:{AT+4*(i-1)+3}], v[{WOR+4*(i-1)}:{WOR+4*(i-1)+3}], v[{DO}:{DO+3}]')
    a(f'v_mfma_f32_16x16x32_bf16 v[{DO}:{DO+3}], v[{AT+12}:{AT+15}], v[{WOR+12}:{WOR+15}], v[{DO}:{DO+3}]')
    a('s_cmp_lg_u32 s49, 0')
    pack(DS, DO, DO+1, DO+2, DO+3)
    a(f'''s_cbranch_scc1 L_st3_slow
    global_store_dwordx4 v11, v[{DS}:{DS+3}], s[28:29]
    L_st3_done:''')
    ts(8)
    a('s_cmp_lg_u32 s47, 0')
    a('s_cbranch_scc1 L_fin')
    h3l = [f'global_load_dwordx4 v[{HR+4*i}:{HR+4*i+3}], v3, s[28:29] offset:{1024*i} sc1' for i in range(4)]
    a(f'''s_lshl_b32 s38, s32, 10
    s_lshl_b32 s39, s31, 7
    s_add_u32 s38, s38, s39
    s_add_u32 s38, s38, {H3BB}
    v_lshrrev_b32 v2, 3, v0
    v_lshl_add_u32 v2, v2, 4, s38
    s_mov_b32 s60, 0x01010101
    s_mov_b32 s61, 0x01010101
    L_H3_poll:''')
    for x in h3l: a(x)
    a(f'''s_add_u32 s48, s48, 1
    s_cmp_gt_u32 s48, {MAXPOLL}
    s_cbranch_scc1 L_end
    s_waitcnt vmcnt(0)''')
    tagcheck([HR+3, HR+7, HR+11, HR+15], 'L_H3_poll')
    ts(9)
    for i in range(4): unpack3(HR+4*i)
    for k in range(4): a(f'v_add_f32 v{HR+k}, v{HR+k}, v{HR+4+k}')
    for k in range(4): a(f'v_add_f32 v{HR+8+k}, v{HR+8+k}, v{HR+12+k}')
    for k in range(4): a(f'v_add_f32 v{HR+k}, v{HR+k}, v{HR+8+k}')
    oct_allred([HR, HR+1, HR+2, HR+3])
    pack(DS, HR, HR+1, HR+2, HR+3)
    a(f'''s_mov_b64 exec, s[60:61]
    global_store_dwordx4 v2, v[{DS}:{DS+3}], s[28:29] sc1
    s_mov_b64 exec, -1''')
    ts(10)
    a(f'''s_and_b32 s38, s32, 7
    s_cmp_lg_u32 s38, s31
    s_cbranch_scc1 L_fin
    v_lshlrev_b32 v25, 16, v25
    v_lshlrev_b32 v26, 16, v26
    v_and_b32 v5, 3, v0
    v_cmp_eq_u32 s[52:53], 1, v5
    v_cmp_eq_u32 s[54:55], 2, v5
    v_cmp_eq_u32 s[56:57], 3, v5
    s_mov_b32 s39, {hex(f2u(-LOG2E))}
    s_mov_b32 s60, 0x0f0f0f0f
    s_mov_b32 s61, 0
    L_H4_poll:
    global_load_dwordx4 v[{HR}:{HR+3}], v16, s[28:29] sc1
    s_add_u32 s48, s48, 1
    s_cmp_gt_u32 s48, {MAXPOLL}
    s_cbranch_scc1 L_end
    s_waitcnt vmcnt(0)''')
    tagcheck([HR+3], 'L_H4_poll')
    ts(11)
    unpack3(HR)
    oct_allred([HR, HR+1, HR+2, HR+3])
    a(f'''v_cndmask_b32 v{HR}, v{HR}, v{HR+1}, s[52:53]
    v_cndmask_b32 v{HR}, v{HR}, v{HR+2}, s[54:55]
    v_cndmask_b32 v{HR}, v{HR}, v{HR+3}, s[56:57]''')
    rnd(HR, HR)
    a(f'v_add_f32 v{HR+1}, v{HR}, v26')
    rnd(HR+1, HR+1)
    a(f'''v_mul_f32 v{HR+2}, s39, v{HR+1}
    v_exp_f32 v{HR+2}, v{HR+2}
    v_add_f32 v{HR+2}, 1.0, v{HR+2}
    v_rcp_f32 v{HR+2}, v{HR+2}
    v_mul_f32 v{HR+1}, v{HR+1}, v{HR+2}''')
    rnd(HR+1, HR+1)
    a(f'v_permlane32_swap_b32 v{HR+1}, v{HR+2}')
    a(f'v_mul_f32 v{HR}, v{HR}, v{HR+2}')
    rnd(HR, HR)
    a(f'''v_add_f32 v{HR}, v{HR}, v25
    v_cvt_pk_bf16_f32 v{HR}, v{HR}, v{HR}
    s_mov_b64 exec, s[60:61]
    global_store_short v1, v{HR}, s[24:25]
    s_cmp_lg_u32 s2, 0
    s_cbranch_scc1 L_fin
    s_mov_b64 exec, 1
    v_mov_b32 v2, 0
    v_mov_b32 v4, s35
    global_store_dword v2, v4, s[28:29] sc1
    L_fin:''')
    ts(12)
    ts_flush(13)
    a('s_endpgm')
    a(f'''L_st2_slow:
    global_store_dwordx4 v10, v[{DS}:{DS+3}], s[28:29] sc1
    s_branch L_st2_done
    L_st3_slow:
    global_store_dwordx4 v11, v[{DS}:{DS+3}], s[28:29] sc1
    s_branch L_st3_done
    L_Mh_retry:
    s_add_u32 s48, s48, 1
    s_cmp_gt_u32 s48, {MAXPOLL}
    s_cbranch_scc1 L_end
    {ml[0]}
    {ml[1]}
    s_waitcnt vmcnt(0)
    s_branch L_Mh_chk
    L_H2_retry:
    s_add_u32 s48, s48, 1
    s_cmp_gt_u32 s48, {MAXPOLL}
    s_cbranch_scc1 L_end''')
    for x in h2l: a(x)
    a('s_branch L_H2_wait')
    a('L_end:')
    a('s_endpgm')
    a.raw(f'''.section .rodata,"a"
.p2align 6
.amdhsa_kernel {KN}_kernel
  .amdhsa_next_free_vgpr 168
  .amdhsa_next_free_sgpr 102
  .amdhsa_accum_offset 168
  .amdhsa_group_segment_fixed_size 0
  .amdhsa_kernarg_size 104
  .amdhsa_user_sgpr_count 2
  .amdhsa_user_sgpr_kernarg_segment_ptr 1
  .amdhsa_system_sgpr_workgroup_id_x 1
.end_amdhsa_kernel''')
    return a.text()

if __name__ == '__main__':
    open('cdna_kernels/' + KN + '.s', 'w').write(gen())
    open('k_ts.s', 'w').write(gen(TS=True))
```

```python
import sys, struct, math
sys.path.insert(0, 'gen')
from asmlib import Asm
KN = 'recurrent_scan__sliding_block_cached__mixer_channel_mlp__decode'
def f2u(f): return struct.unpack('<I', struct.pack('<f', f))[0]
GB0 = 0x10000; GA = 0x48000
H1F = 0; H1S = 0x2000; MLB = 0x4000; MHB = 0x5000; MHS = 896
OIB = 0x10000; SIB = 0x22000; MIB = 0x34000; IS = 2176
H3S_ = 0x260000; H3M_ = 0x268000
TSB = 0x800000
QL = 0; QS = 320; FQ = 1280; RS = 1296; FV = 1312; FO = 1328; MLX = 1344; OL = 2048; OH = 1152; OW = 2304; KL = 16384; LDSZ = 16384 + 32768
LOG2E = 1.4426950408889634
MAXPOLL = 400000

def gen(TS=False, TS2=False, WIN=6, PA=4, H1FAST=True, PF=True, SPREAD=True):
    a = Asm()
    hdr = open('cdna_kernels/' + KN + '.s.ref').read().split('\n')
    for l in hdr:
        if l.startswith('; @launch'): break
        a.raw(l)
    a.raw(f'; @launch grid=(256,1,1) block=(384,1,1) lds={LDSZ}')
    a.raw('.amdgcn_target "amdgcn-amd-amdhsa--gfx950"\n.text')
    a.raw(f'.globl {KN}_kernel\n.p2align 8\n.type {KN}_kernel,@function\n{KN}_kernel:')
    att = [False]
    def ts2(k):
        if TS2 and k <= 12: a(f's_memrealtime s[{76+2*k}:{77+2*k}]')
    def ts(k):
        if TS2 and att[0]: return
        if TS: a(f's_memrealtime s[{76+2*k}:{77+2*k}]')
    def lgkm(n): a(f's_waitcnt lgkmcnt({0 if TS else n})')
    def wave_sum(vs):
        for sh in (1, 2, 4, 8):
            for x in vs: a(f'v_add_f32_dpp v{x}, v{x}, v{x} row_shr:{sh} row_mask:0xf bank_mask:0xf bound_ctrl:0')
        for x in vs: a(f'v_add_f32_dpp v{x}, v{x}, v{x} row_bcast:15 row_mask:0xa bank_mask:0xf')
        for x in vs: a(f'v_add_f32_dpp v{x}, v{x}, v{x} row_bcast:31 row_mask:0xc bank_mask:0xf')
    def ror(op, x, shs, dst=None):
        for i, sh in enumerate(shs):
            d = dst if (dst is not None and i == len(shs) - 1) else x
            a(f'{op}_dpp v{d}, v{x}, v{x} row_ror:{sh} row_mask:0xf bank_mask:0xf')
    def scatter4(r):
        a(f'''v_permlane32_swap_b32 v{r}, v{r+2}
        v_permlane32_swap_b32 v{r+1}, v{r+3}
        v_add_f32 v{r}, v{r}, v{r+2}
        v_add_f32 v{r+1}, v{r+1}, v{r+3}
        v_permlane16_swap_b32 v{r}, v{r+1}
        v_add_f32 v{r}, v{r}, v{r+1}''')
    def allrows(op, x, t):
        a(f'''v_mov_b32 v{t}, v{x}
        v_permlane32_swap_b32 v{x}, v{t}
        {op} v{x}, v{x}, v{t}
        v_mov_b32 v{t}, v{x}
        v_permlane16_swap_b32 v{x}, v{t}
        {op} v{x}, v{x}, v{t}''')
    def rnd(dst, src):
        a(f'v_cvt_pk_bf16_f32 v{dst}, v{src}, v{src}')
        a(f'v_and_b32 v{dst}, 0xffff0000, v{dst}')
    def mktag(ve):
        a(f'''v_readfirstlane_b32 s35, v{ve}
        s_add_u32 s35, s35, 0x9E3779B9
        s_or_b32 s35, s35, 1''')
    def pack(d, v0, v1, v2, v3):
        a(f'v_perm_b32 v{d}, v{v0}, v{v3}, s42')
        a(f'v_perm_b32 v{d+1}, v{v1}, v{v3}, s43')
        a(f'v_perm_b32 v{d+2}, v{v2}, v{v3}, s44')
    def unpack3(d):
        a(f'v_perm_b32 v{d+3}, v{d+1}, v{d}, s45')
        a(f'v_perm_b32 v{d+3}, v{d+2}, v{d+3}, s46')
    def poll(name, loads, tagregs, first_wait, pre=''):
        a(f's_waitcnt vmcnt({first_wait})')
        a(f's_branch L_{name}_chk')
        a(f'L_{name}_retry:')
        a(f'''s_add_u32 s48, s48, 1
        {pre}
        s_mov_b64 exec, s[50:51]''')
        for x in loads: a(x)
        a(f'''s_mov_b64 exec, -1
        s_cmp_gt_u32 s48, {MAXPOLL}
        s_cbranch_scc1 L_end
        s_waitcnt vmcnt(0)
        L_{name}_chk:''')
        for i, r in enumerate(tagregs):
            a(f'v_cmp_ne_u32 s[{50+2*i}:{51+2*i}], s35, v{r}')
        if len(tagregs) == 1: a('s_cmp_lg_u64 s[50:51], 0')
        else:
            for i in range(1, len(tagregs)): a(f's_or_b64 s[50:51], s[50:51], s[{50+2*i}:{51+2*i}]')
        a(f's_cbranch_scc1 L_{name}_retry')
    tail = []
    def store_mode(name, ins):
        a(f's_cbranch_scc1 L_{name}_slow')
        for x in ins: a(x)
        a(f'L_{name}_done:')
        tail.append(f'L_{name}_slow:\n' + '\n'.join(x + ' sc1' for x in ins) + f'\ns_branch L_{name}_done')
    consts = '''s_mov_b32 s40, 0x05040100
        s_mov_b32 s41, 0x07060302
        s_mov_b32 s42, 0x07060501
        s_mov_b32 s43, 0x07060502
        s_mov_b32 s44, 0x07060503
        s_mov_b32 s45, 0x0c04000c
        s_mov_b32 s46, 0x04020100
        s_getreg_b32 s33, hwreg(HW_REG_XCC_ID)
        s_and_b32 s33, s33, 7'''
    spin = [0]
    def spin_guard():
        a(f'''s_add_u32 s48, s48, 1
        s_cmp_gt_u32 s48, {MAXPOLL}
        s_cbranch_scc1 L_end''')

    ts(0)
    a(f'''s_load_dwordx16 s[4:19], s[0:1], 0
    s_load_dwordx8 s[20:27], s[0:1], 64
    s_load_dwordx2 s[28:29], s[0:1], 96
    s_cmp_ge_u32 s2, 256
    s_cbranch_scc1 L_end
    v_lshrrev_b32 v1, 6, v0
    v_and_b32 v0, 63, v0
    s_getpc_b64 s[36:37]
    L_pc:
    v_readfirstlane_b32 s30, v1
    s_and_b32 s31, s2, 7
    s_lshr_b32 s32, s2, 3
    s_mul_i32 s38, s32, 6
    s_add_u32 s38, s38, s30
    s_lshl_b32 s38, s38, 7
    s_min_u32 s38, s38, L_end-L_pc
    v_mov_b32 v1, s38
    {'global_load_dword v26, v1, s[36:37]' if PF else 's_nop 0'}
    s_mul_i32 s34, s31, {GA}
    s_add_u32 s34, s34, {GB0}
    s_mov_b32 s48, 0
    v_mov_b32 v1, 0
    v_lshlrev_b32 v2, 4, v0
    v_and_b32 v5, 15, v0
    v_lshrrev_b32 v6, 4, v0
    s_cmp_eq_u32 s30, 1
    s_cbranch_scc1 L_M
    s_cmp_gt_u32 s30, 1
    s_cbranch_scc1 L_A''')
    a(f'''s_setprio 3
    v_and_b32 v4, 1, v0
    v_lshl_add_u32 v3, v6, 1, v4
    v_lshlrev_b32 v3, 5, v3
    s_and_b32 s38, s32, 3
    s_lshl_b32 s39, s38, 8
    v_add_u32 v3, s39, v3
    v_lshrrev_b32 v4, 3, v0
    v_lshlrev_b32 v4, 17, v4
    v_and_b32 v7, 7, v0
    v_lshl_add_u32 v4, v7, 4, v4
    s_lshl_b32 s39, s38, 20
    s_lshl_b32 s38, s31, 10
    s_add_u32 s39, s39, s38
    s_lshr_b32 s38, s32, 2
    s_lshl_b32 s38, s38, 7
    s_add_u32 s39, s39, s38
    v_add_u32 v4, s39, v4
    s_mov_b32 s38, 0x3f803f80
    s_movk_i32 s39, 0x2000''')
    for r in range(8, 16): a(f'v_mov_b32 v{r}, s38')
    a(f'''s_mov_b32 s60, 0x00030003
    s_mov_b32 s61, 0x00030003
    s_waitcnt lgkmcnt(0)''')
    for i in range(16):
        a(f'global_load_dwordx4 v[{20+4*i}:{23+4*i}], v4, s[10:11] nt')
        if i < 15: a('v_add_u32 v4, s39, v4')
        if i == 3:
            a('''s_mov_b64 exec, s[60:61]
            global_load_dwordx4 v[8:11], v3, s[4:5]
            global_load_dwordx4 v[12:15], v3, s[4:5] offset:16
            s_mov_b64 exec, -1
            global_load_dwordx4 v[148:151], v2, s[4:5]
            global_load_dword v16, v1, s[28:29] sc1''')
    a('s_barrier')
    a('s_branch L_Q2')
    a(f'''L_M:
    s_mul_i32 s38, s32, {16*3584}
    s_mul_i32 s39, s31, 448
    s_add_u32 s38, s38, s39
    v_lshl_add_u32 v4, v0, 3, s38
    s_movk_i32 s39, 7168
    s_mov_b32 s60, -1
    s_mov_b32 s61, 0x00ffffff
    v_lshlrev_b32 v3, 2, v0
    ds_write_b32 v3, v1 offset:{FQ}
    s_waitcnt lgkmcnt(0)
    global_load_dwordx4 v[8:11], v2, s[4:5]
    global_load_dword v16, v1, s[28:29] sc1
    s_barrier
    s_setprio 2
    s_mov_b64 exec, s[60:61]''')
    for p in range(8):
        a(f'global_load_dwordx2 v[{20+4*p}:{21+4*p}], v4, s[16:17] nt')
        a(f'global_load_dwordx2 v[{22+4*p}:{23+4*p}], v4, s[16:17] offset:3584 nt')
        if p < 7: a('v_add_u32 v4, s39, v4')
    a('s_mov_b64 exec, -1')
    a('s_branch L_M2')
    KR = 32; VR = 64; PR = 96; WOR = 104; QF = 120; DS = 136; T0 = 144; KS = 50
    a(f'''L_A:
    s_sub_u32 s47, s30, 2
    s_lshl_b32 s38, s31, 24
    s_lshl_b32 s39, s32, 15
    s_add_u32 s38, s38, s39
    s_lshl_b32 s39, s47, 10
    s_add_u32 s38, s38, s39
    s_add_u32 s38, s38, {0xF00000}
    s_lshl_b32 s39, s47, 13
    s_add_u32 s39, s39, {KL}
    s_mov_b32 m0, s39
    s_lshl_b32 s3, s47, 1
    s_add_u32 s3, s3, s32
    v_xor_b32 v7, v5, v6
    v_lshlrev_b32 v7, 4, v7
    v_lshl_add_u32 v{T0}, v6, 8, v7
    v_add_u32 v{T0}, s38, v{T0}
    v_xor_b32 v{T0+1}, 64, v{T0}
    v_xor_b32 v{T0+2}, 0x80, v{T0}
    v_xor_b32 v{T0+3}, 0xc0, v{T0}
    v_lshl_add_u32 v{T0+4}, v5, 8, v7
    v_add_u32 v{T0+4}, s39, v{T0+4}
    v_add_u32 v4, s3, v6
    v_and_b32 v4, 7, v4
    v_lshlrev_b32 v4, 12, v4
    v_lshl_add_u32 v4, v5, 4, v4
    v_add_u32 v4, s38, v4
    v_xor_b32 v27, 0x4000, v4
    s_waitcnt lgkmcnt(0)
    global_load_dword v23, v1, s[28:29] sc1''')
    for i in range(8):
        a(f'''s_add_u32 s39, s3, {i}
        s_and_b32 s39, s39, 7
        s_lshl_b32 s39, s39, 12
        s_add_u32 s{KS+2*i}, s6, s39
        s_addc_u32 s{KS+2*i+1}, s7, 0''')
    a('s_barrier')
    D = []
    for i in range(8):
        pre = 's_add_u32 m0, m0, 1024\ns_nop 0\n' if i > 0 else ''
        D.append(pre + f'global_load_lds_dwordx4 v{T0+(i&3)}, s[{KS+2*i}:{KS+2*i+1}] nt')
    for e in range(8):
        r = VR + 4*e
        D.append(f'global_load_dwordx4 v[{r}:{r+3}], v{4 if e < 4 else 27}, s[8:9] offset:{256*(e&3)} nt')
    for i in range(4):
        D.append(f'global_load_dwordx4 v[{WOR+4*i}:{WOR+4*i+3}], v{9 if i < 2 else 14}, s[12:13] offset:{4096*(i&1)-4096} nt')
    pl = [f'global_load_dwordx4 v[{PR}:{PR+3}], v12, s[28:29] sc1', f'global_load_dwordx4 v[{PR+4}:{PR+7}], v12, s[28:29] offset:256 sc1']
    setup = f'''s_lshl_b32 s39, s47, 11
    s_add_u32 s38, s34, s39
    s_add_u32 s38, s38, {H1F if H1FAST else H1S}
    v_and_b32 v8, 1, v6
    v_lshlrev_b32 v12, 10, v8
    v_lshrrev_b32 v9, 5, v0
    v_lshl_add_u32 v12, v9, 9, v12
    v_lshl_add_u32 v12, v5, 4, v12
    v_add_u32 v12, s38, v12
    s_mul_i32 s38, s47, {QS}
    v_lshlrev_b32 v17, 7, v8
    v_lshl_add_u32 v17, v9, 2, v17
    v_and_b32 v7, 7, v0
    v_lshl_add_u32 v17, v7, 4, v17
    v_bfe_u32 v7, v0, 3, 1
    v_lshl_add_u32 v17, v7, 3, v17
    v_add_u32 v17, s38, v17
    s_mul_i32 s38, s47, {8*IS}
    s_lshl_b32 s39, s32, 6
    s_add_u32 s38, s38, s39
    s_add_u32 s38, s38, s34
    s_add_u32 s39, s38, {SIB}
    v_lshrrev_b32 v7, 2, v5
    v_lshl_add_u32 v11, v7, 1, v8
    v_mul_u32_u24 v11, {IS}, v11
    v_and_b32 v3, 3, v0
    v_lshl_add_u32 v11, v3, 4, v11
    v_add_u32 v11, s39, v11
    s_add_u32 s39, s38, {OIB}
    v_bfe_u32 v10, v0, 2, 3
    v_mul_u32_u24 v10, {IS}, v10
    v_lshl_add_u32 v10, v3, 4, v10
    v_add_u32 v10, s39, v10
    v_mul_u32_u24 v18, {QS}, v7
    v_lshl_add_u32 v18, v6, 4, v18
    s_lshl_b32 s38, s47, 3
    v_lshl_add_u32 v19, v7, 5, s38
    s_mul_i32 s38, s47, {OW}
    s_add_u32 s38, s38, {OL}
    v_add_u32 v21, s38, v2
    s_lshl_b32 s38, s47, 8
    s_add_u32 s38, s38, {OL}
    v_and_b32 v7, 1, v0
    v_mul_u32_u24 v22, {OH}, v7
    v_bfe_u32 v20, v0, 1, 4
    v_lshl_add_u32 v22, v20, 4, v22
    v_add_u32 v22, s38, v22
    s_lshl_b32 s38, s31, 5
    s_add_u32 s38, s38, s32
    s_lshl_b32 s38, s38, 14
    s_lshl_b32 s39, s47, 8
    s_add_u32 s38, s38, s39
    s_add_u32 s38, s38, 4096
    v_lshlrev_b32 v14, 10, v6
    v_lshl_add_u32 v14, v5, 4, v14
    v_add_u32 v9, s38, v14
    v_add_u32 v14, 0x2000, v9
    s_mul_i32 s38, s32, {IS}
    s_add_u32 s38, s38, s34
    s_add_u32 s38, s38, {OIB}
    v_add_u32 v15, s38, v2
    s_lshr_b32 s39, s32, 3
    s_lshl_b32 s39, s39, 9
    s_add_u32 s39, s39, s34
    s_add_u32 s39, s39, {MLB}
    v_lshrrev_b32 v20, 2, v0
    v_lshl_add_u32 v20, v20, 4, s39
    s_lshl_b32 s39, s47, 9
    s_lshl_b32 s38, s32, 4
    s_add_u32 s39, s39, s38
    s_add_u32 s39, s39, s34
    s_add_u32 s39, s39, {MLB}
    v_mov_b32 v13, s39
    s_lshl_b32 s38, s47, 2
    v_mov_b32 v16, s38
    s_lshl_b32 s38, s47, 5
    v_mov_b32 v24, s38
    v_mov_b32 v25, 1
    {consts}
    v_cmp_eq_u32 vcc, 1, v7
    v_mov_b32 v{DS}, 0x0000ffff
    v_mov_b32 v{DS+1}, 0xffff0000
    v_cndmask_b32 v{DS}, v{DS}, v{DS+1}, vcc
    v_bfe_u32 v{DS+2}, v0, 1, 3'''.split('\n')
    for r in range(4):
        setup += [f'v_cmp_eq_u32 vcc, {r}, v{DS+2}', f'v_cndmask_b32 v{28+r}, 0, v{DS}, vcc']
    for j in range(4):
        setup += [f's_mov_b32 s{66+2*j}, {hex(0x11111111 << j)}', f's_mov_b32 s{67+2*j}, {hex(0x11111111 << j)}']
    setup += [f'v_xor_b32 v{T0+5}, 64, v{T0+4}', f'v_xor_b32 v{T0+6}, 0x80, v{T0+4}', f'v_xor_b32 v{T0+7}, 0xc0, v{T0+4}']
    issued = []
    def issue(tag, ins): a(ins); issued.append(tag)
    def waitfor(tag): a(f's_waitcnt vmcnt({len(issued) - 1 - issued.index(tag)})')
    chunk = (len(setup) + WIN - 1) // WIN if SPREAD else 0
    for n in range(WIN):
        issue(('D', n), D[n])
        if SPREAD: a('\n'.join(setup[n*chunk:(n+1)*chunk]))
    if not SPREAD: a('\n'.join(setup))
    iVP = 8 + PA - 1
    nstop = min(iVP + WIN, len(D) - 1)
    for n in range(WIN, nstop + 1):
        waitfor(('D', n - WIN))
        ts2(n - WIN)
        if n == WIN: mktag(23)
        issue(('D', n), D[n])
        if n == iVP:
            issue('P0', pl[0]); issue('P1', pl[1])
        if n == 15: a(f'ds_write_b32 v16, v25 offset:{FV}')
        if n - WIN == 7:
            for b in range(2):
                for t in range(4):
                    r = KR + 16*b + 4*t
                    a(f'ds_read_b128 v[{r}:{r+3}], v{T0+4+t} offset:{4096*b}')
    assert nstop >= 15 and nstop - WIN >= 7
    a('s_branch L_A2')

    a('L_Q2:')
    a(consts)
    a(f'''s_lshl_b32 s3, s33, 8
    v_mov_b32 v17, s3
    s_movk_i32 s62, 0x700
    s_lshl_b32 s39, s32, 8
    s_add_u32 s39, s39, s34
    v_add_u32 v18, s39, v2
    v_add_u32 v3, {H1S-H1F}, v18
    v_mov_b32 v19, 0
    s_waitcnt vmcnt(12)''')
    ts(1)
    for r in range(148, 152): a(f'v_dot2c_f32_bf16 v19, s38, v{r}')
    mktag(16)
    wave_sum([19])
    a(f'''v_readlane_b32 s63, v19, 63
    v_mov_b32 v19, {hex(f2u(1.0/512))}
    v_mul_f32 v19, s63, v19''')
    rnd(19, 19)
    T = 84; DQ = 116
    for h in range(2):
        for pr in range(4):
            ia = 8*h + 2*pr; ib = ia + 1
            if ib > 3: a(f's_waitcnt vmcnt({15 - ib})')
            for d in range(4):
                a(f'v_perm_b32 v{T + 4*(2*d) + pr}, v{20+4*ib+d}, v{20+4*ia+d}, s40')
                a(f'v_perm_b32 v{T + 4*(2*d+1) + pr}, v{20+4*ib+d}, v{20+4*ia+d}, s41')
        if h == 1: ts(2)
        for j in range(8):
            c = '0' if h == 0 else f'v[{DQ+4*j}:{DQ+4*j+3}]'
            a(f'v_mfma_f32_16x16x32_bf16 v[{DQ+4*j}:{DQ+4*j+3}], v[{8+4*h}:{11+4*h}], v[{T+4*j}:{T+4*j+3}], {c}')
    a('v_mov_b32 v23, s35\nv_mov_b32 v27, s35')
    for j in range(8):
        d = DQ + 4*j
        a(f'v_add_f32_dpp v{d}, v{d+1}, v{d} row_ror:8 row_mask:0xf bank_mask:0xf')
        a(f'v_add_f32_dpp v{d+2}, v{d+2}, v{d+2} row_ror:8 row_mask:0xf bank_mask:0xf')
        a(f'v_fma_f32 v{d}, -v19, v{d+2}, v{d}')
    for hq in range(2):
        o = 20 + 4*hq
        pack(o, DQ + 16*hq, DQ + 16*hq + 4, DQ + 16*hq + 8, DQ + 16*hq + 12)
        a(f'v_bfi_b32 v{o}, s62, v17, v{o}')
    a('s_mov_b64 exec, 0xff')
    if H1FAST:
        a(f'''global_store_dwordx4 v18, v[20:23], s[28:29]
        global_store_dwordx4 v18, v[24:27], s[28:29] offset:128''')
    a(f'''global_store_dwordx4 v3, v[20:23], s[28:29] sc1
    global_store_dwordx4 v3, v[24:27], s[28:29] offset:128 sc1
    s_mov_b64 exec, -1''')
    ts(3)
    a(f'''s_setprio 1
    s_mul_i32 s38, s32, {IS}
    s_add_u32 s38, s38, s34
    s_add_u32 s39, s38, {OIB}
    v_add_u32 v8, s39, v2
    s_add_u32 s39, s38, {SIB}
    v_add_u32 v9, s39, v2
    s_lshr_b32 s39, s32, 3
    s_lshl_b32 s39, s39, 9
    s_add_u32 s39, s39, s34
    s_add_u32 s39, s39, {MLB}
    v_lshl_add_u32 v10, v0, 3, s39
    s_lshl_b32 s38, s32, 10
    s_lshl_b32 s39, s31, 7
    s_add_u32 s38, s38, s39
    s_add_u32 s38, s38, {H3S_}
    v_and_b32 v11, 3, v0
    v_lshl_add_u32 v11, v6, 2, v11
    v_lshl_add_u32 v11, v11, 3, s38
    v_mov_b32 v13, s35
    s_mov_b32 s60, 0x000f000f
    s_mov_b32 s61, 0x000f000f
    L_Q_vi:
    ds_read_b128 v[28:31], v1 offset:{FV}''')
    spin_guard()
    a(f'''s_waitcnt lgkmcnt(0)
    v_and_b32 v28, v28, v29
    v_and_b32 v30, v30, v31
    v_and_b32 v28, v28, v30
    v_cmp_eq_u32 vcc, 0, v28
    s_cbranch_vccnz L_Q_vi''')
    ts(4)
    sl = [f'global_load_dwordx4 v[{40+4*i}:{43+4*i}], v9, s[28:29] offset:{1024*i} sc1' for i in range(2)]
    a(f'''global_load_dwordx2 v[48:49], v10, s[28:29] sc1
    global_load_dwordx4 v[32:35], v8, s[28:29] sc1
    global_load_dwordx4 v[36:39], v8, s[28:29] offset:1024 sc1''')
    for x in sl: a(x)
    poll('S', sl, [43, 47], 0)
    ts(5)
    unpack3(40); unpack3(44)
    for k in range(4): a(f'v_add_f32 v{40+k}, v{40+k}, v{44+k}')
    scatter4(40)
    ror('v_add_f32', 40, (8, 4), dst=12)
    a(f'''s_mov_b64 exec, s[60:61]
    global_store_dwordx2 v11, v[12:13], s[28:29] sc1''')
    ts(6)
    a('s_branch L_fin')

    a('L_M2:')
    a(consts)
    a(f'''s_mul_i32 s39, s32, {MHS}
    s_add_u32 s39, s39, s34
    s_add_u32 s39, s39, {MHB}
    v_add_u32 v18, s39, v2
    s_lshl_b32 s62, s32, 1
    s_add_u32 s63, s62, 1
    s_lshl_b32 s3, s33, 8
    v_mov_b32 v17, s3
    s_waitcnt vmcnt(16)''')
    ts(1)
    mktag(16)
    def layernorm(first):
        for d in range(4):
            a(f'v_lshlrev_b32 v{60+2*d}, 16, v{8+d}')
            a(f'v_and_b32 v{61+2*d}, 0xffff0000, v{8+d}')
        a('v_readfirstlane_b32 s38, v60')
        for k in range(8): a(f'v_subrev_f32 v{70+k}, s38, v{60+k}')
        a('v_add_f32 v68, v70, v71')
        a('v_mul_f32 v69, v70, v70')
        for k in range(1, 8):
            if k >= 2: a(f'v_add_f32 v68, v68, v{70+k}')
            a(f'v_fmac_f32 v69, v{70+k}, v{70+k}')
        wave_sum([68, 69])
        a(f'''v_readlane_b32 s39, v68, 63
        v_readlane_b32 s64, v69, 63
        v_mov_b32 v70, {hex(f2u(1.0/512))}
        v_mul_f32 v68, s39, v70
        v_mul_f32 v69, s64, v70
        v_fma_f32 v69, -v68, v68, v69
        v_max_f32 v69, 0, v69
        v_add_f32 v68, s38, v68''')
        rnd(68, 68); rnd(69, 69)
        a(f'v_add_f32 v69, {hex(f2u(1e-5))}, v69')
        rnd(69, 69)
        a('v_sqrt_f32 v69, v69')
        rnd(69, 69)
        a('v_rcp_f32 v69, v69')
        if first:
            a(f'v_mul_f32 v70, {hex(f2u(LOG2E / math.sqrt(128.0)))}, v69')
            a(f'v_or_b32 v70, 1, v70')
            a(f'ds_write_b32 v1, v70 offset:{RS}')
        for k in range(8): a(f'v_sub_f32 v{60+k}, v{60+k}, v68')
        for d in range(4): a(f'v_cvt_pk_bf16_f32 v{8+d}, v{60+2*d}, v{61+2*d}')
        for d in range(4):
            a(f'v_lshlrev_b32 v{60+2*d}, 16, v{8+d}')
            a(f'v_and_b32 v{61+2*d}, 0xffff0000, v{8+d}')
        for k in range(8): a(f'v_mul_f32 v{60+k}, v{60+k}, v69')
        for d in range(4): a(f'v_cvt_pk_bf16_f32 v{8+d}, v{60+2*d}, v{61+2*d}')
    layernorm(True)
    layernorm(False)
    for d in range(4):
        a(f'v_readlane_b32 s{66+d}, v{8+d}, s62')
        a(f'v_readlane_b32 s{70+d}, v{8+d}, s63')
    for c in range(4): a(f'v_mov_b32 v{80+c}, 0')
    a('v_mov_b32 v87, s35')
    a(f'''s_movk_i32 s62, 0x700
    s_min_u32 s3, s32, 27
    s_lshl_b32 s39, s3, 5
    s_add_u32 s38, s34, s39
    s_add_u32 s38, s38, {MHB}
    v_and_b32 v7, 1, v0
    v_lshrrev_b32 v13, 1, v0
    v_mul_u32_u24 v13, {MHS}, v13
    v_lshl_add_u32 v13, v7, 4, v13
    v_add_u32 v13, s38, v13
    s_mul_i32 s38, s31, 224
    s_lshl_b32 s39, s3, 3
    s_add_u32 s38, s38, s39
    v_lshl_add_u32 v12, v7, 2, v6
    v_add_lshl_u32 v12, v12, s38, 1
    s_lshl_b32 s38, s38, 10
    s_add_u32 s38, s38, 4096
    v_lshlrev_b32 v14, 10, v6
    v_lshl_add_u32 v14, v5, 4, v14
    v_add_u32 v14, s38, v14
    s_lshr_b32 s38, s32, 1
    s_lshl_b32 s38, s38, 5
    s_and_b32 s39, s32, 1
    s_lshl_b32 s39, s39, 2
    s_add_u32 s38, s38, s39
    v_and_b32 v3, 3, v0
    v_lshl_add_u32 v15, v3, 3, v6
    v_add_lshl_u32 v15, v15, s38, 1''')
    ts(2)
    for p in range(8):
        a(f's_waitcnt vmcnt({14 - 2*p})')
        ra = 20 + 4*p; rb = ra + 2
        for d in range(2):
            a(f'v_perm_b32 v{60+2*d}, v{rb+d}, v{ra+d}, s40')
            a(f'v_perm_b32 v{61+2*d}, v{rb+d}, v{ra+d}, s41')
        for c in range(4): a(f'v_dot2c_f32_bf16 v{80+c}, s{66+p}, v{60+c}')
    pack(84, 80, 81, 82, 83)
    a(f'''v_bfi_b32 v84, s62, v17, v84
    s_mov_b64 exec, s[60:61]
    global_store_dwordx4 v18, v[84:87], s[28:29] sc1
    s_mov_b64 exec, -1
    s_setprio 1''')
    ts(3)
    W2 = 88
    for cb in range(4):
        for i in range(2):
            r = W2 + 8*cb + 4*i
            a(f'global_load_dwordx4 v[{r}:{r+3}], v14, s[20:21] offset:{256*cb + 4096*i - 4096} nt')
    a(f'''global_load_ushort v56, v12, s[18:19]
    global_load_ushort v57, v15, s[4:5]
    global_load_ushort v58, v15, s[22:23]''')
    a(f'''v_cmp_eq_u32 vcc, 1, v7
    v_mov_b32 v60, 0x0000ffff
    v_mov_b32 v61, 0xffff0000
    v_cndmask_b32 v60, v60, v61, vcc
    s_cmp_lt_u32 s32, 28
    s_cselect_b32 s38, -1, 0
    v_and_b32 v60, s38, v60
    v_bfe_u32 v61, v0, 1, 3''')
    for r in range(8):
        a(f'v_cmp_eq_u32 vcc, {r}, v61')
        a(f'v_cndmask_b32 v{44+r}, 0, v60, vcc')
    a(f'''s_lshl_b32 s39, s32, 6
    s_add_u32 s39, s39, s34
    s_add_u32 s39, s39, {MIB}
    v_lshrrev_b32 v8, 2, v5
    v_lshlrev_b32 v8, 1, v8
    v_and_b32 v9, 1, v6
    v_add_u32 v8, v8, v9
    v_lshrrev_b32 v9, 5, v0
    v_lshl_add_u32 v8, v9, 3, v8
    v_mul_u32_u24 v8, {IS}, v8
    v_lshl_add_u32 v8, v3, 4, v8
    v_add_u32 v8, s39, v8
    v_add_u32 v9, {16*IS}, v8
    s_mul_i32 s38, s32, {IS}
    s_add_u32 s38, s38, s34
    s_add_u32 s38, s38, {MIB}
    v_add_u32 v10, s38, v2
    s_lshl_b32 s38, s32, 10
    s_add_u32 s38, s38, {H3M_}
    s_lshl_b32 s39, s31, 7
    s_add_u32 s39, s39, s38
    v_lshl_add_u32 v11, v6, 2, v3
    v_lshlrev_b32 v11, 3, v11
    v_bfe_u32 v12, v0, 2, 2
    v_lshl_add_u32 v12, v12, 7, v11
    v_add_u32 v12, s38, v12
    v_add_u32 v11, s39, v11
    v_mov_b32 v39, s35
    v_mov_b32 v43, s35
    v_mov_b32 v65, s35
    s_mov_b32 s60, 0x000f000f
    s_mov_b32 s61, 0x000f000f
    s_waitcnt vmcnt(0)''')
    ml = ['global_load_dwordx4 v[52:55], v13, s[28:29] sc1']
    mil = [f'global_load_dwordx4 v[{68+4*i}:{71+4*i}], v10, s[28:29] offset:{1024*i} sc1' for i in range(2)]
    for x in ml + mil: a(x)
    poll('MH', ml, [55], 2)
    ts(4)
    a(f'''v_bfe_u32 v60, v52, 8, 3
    v_cmp_ne_u32 s[52:53], s33, v60''')
    unpack3(52)
    a('v_lshlrev_b32 v56, 16, v56')
    scatter4(52)
    ror('v_add_f32', 52, (8, 4, 2))
    rnd(52, 52)
    a('v_add_f32 v52, v52, v56')
    rnd(52, 52)
    a(f'''s_mov_b32 s38, {hex(f2u(0.044715))}
    s_mov_b32 s39, {hex(f2u(-2.0 * math.sqrt(2.0 / math.pi) * LOG2E))}
    v_mul_f32 v53, v52, v52
    v_fma_f32 v53, v53, s38, 1.0
    v_mul_f32 v53, v53, v52
    v_mul_f32 v53, s39, v53
    v_exp_f32 v53, v53
    v_add_f32 v53, 1.0, v53
    v_rcp_f32 v53, v53
    v_mul_f32 v52, v52, v53
    v_cvt_pk_bf16_f32 v52, v52, v52''')
    for hi in range(2):
        for i in range(2):
            for r in range(4): a(f'v_and_b32_dpp v{20+8*hi+4*i+r}, v52, v{44+4*hi+r} quad_perm:[{i},{i},{i},{i}] row_mask:0xf bank_mask:0xf')
    for hi in range(2):
        for i in range(2):
            for pp in range(2):
                d = 76 + 4*pp; r = W2 + 8*(2*pp+hi) + 4*i; A = 20 + 8*hi + 4*i
                c = '0' if (hi == 0 and i == 0) else f'v[{d}:{d+3}]'
                a(f'v_mfma_f32_16x16x32_bf16 v[{d}:{d+3}], v[{A}:{A+3}], v[{r}:{r+3}], {c}')
    pack(36, 76, 77, 78, 79); pack(40, 80, 81, 82, 83)
    a('s_cmp_lg_u64 s[52:53], 0')
    store_mode('stm', ['global_store_dwordx4 v8, v[36:39], s[28:29]', 'global_store_dwordx4 v9, v[40:43], s[28:29]'])
    ts(5)
    poll('MI', mil, [71, 75], 0)
    ts(6)
    unpack3(68); unpack3(72)
    for k in range(4): a(f'v_add_f32 v{68+k}, v{68+k}, v{72+k}')
    scatter4(68)
    ror('v_add_f32', 68, (8, 4), dst=64)
    a(f'''s_mov_b64 exec, s[60:61]
    global_store_dwordx2 v11, v[64:65], s[28:29] sc1
    s_mov_b64 exec, -1
    s_and_b32 s38, s32, 7
    s_cmp_lg_u32 s38, s31
    s_cbranch_scc1 L_fin
    v_add_u32 v13, {(H3S_-H3M_) & 0xffffffff}, v12''')
    hm = [f'global_load_dwordx2 v[{20+2*i}:{21+2*i}], v12, s[28:29] offset:{512*i} sc1' for i in range(2)]
    hs = [f'global_load_dwordx2 v[{24+2*i}:{25+2*i}], v13, s[28:29] offset:{512*i} sc1' for i in range(2)]
    for x in hm + hs: a(x)
    a(f'''v_lshlrev_b32 v57, 16, v57
    v_lshlrev_b32 v58, 16, v58
    s_mov_b32 s39, {hex(f2u(-LOG2E))}
    s_setprio 3''')
    poll('HM', hm, [21, 23], 0)
    ts(7)
    a('v_add_f32 v20, v20, v22')
    ror('v_add_f32', 20, (8, 4))
    rnd(20, 20)
    a('v_add_f32 v20, v20, v58')
    rnd(20, 20)
    a(f'''v_mul_f32 v21, s39, v20
    v_exp_f32 v21, v21
    v_add_f32 v21, 1.0, v21
    v_rcp_f32 v21, v21
    v_mul_f32 v20, v20, v21''')
    rnd(20, 20)
    poll('HS', hs, [25, 27], 0)
    ts(8)
    a('v_add_f32 v24, v24, v26')
    ror('v_add_f32', 24, (8, 4))
    rnd(24, 24)
    a('v_mul_f32 v24, v24, v20')
    rnd(24, 24)
    a(f'''v_add_f32 v24, v24, v57
    v_cvt_pk_bf16_f32 v24, v24, v24
    s_mov_b64 exec, s[60:61]
    global_store_short v15, v24, s[24:25]
    s_cmp_lg_u32 s2, 0
    s_cbranch_scc1 L_fin
    s_mov_b64 exec, 1
    v_mov_b32 v4, s35
    global_store_dword v1, v4, s[28:29] sc1
    s_branch L_fin''')

    att[0] = True
    a('L_A2:')
    waitfor('P1')
    ts(1)
    for n in range(nstop + 1, len(D)): issue(('D', n), D[n])
    sw = f'''s_cmp_eq_u32 s48, 16
    s_cselect_b32 s38, {H1S-H1F}, 0
    v_add_u32 v12, s38, v12''' if H1FAST else ''
    poll('P', pl, [PR+3, PR+7], 63, sw)
    ts(2)
    a(f'''v_bfe_u32 v{T0}, v{PR}, 8, 3
    v_bfe_u32 v{T0+1}, v{PR+4}, 8, 3
    v_cmp_ne_u32 s[50:51], s33, v{T0}
    v_cmp_ne_u32 s[52:53], s33, v{T0+1}''')
    unpack3(PR); unpack3(PR+4)
    a('s_or_b64 s[50:51], s[50:51], s[52:53]')
    a('s_cselect_b32 s49, 3, 1')
    for k in range(4): a(f'v_add_f32 v{PR+k}, v{PR+k}, v{PR+4+k}')
    a(f'''v_mov_b32 v{T0}, s49
    v_permlane32_swap_b32 v{PR}, v{PR+2}
    v_permlane32_swap_b32 v{PR+1}, v{PR+3}
    v_add_f32 v{PR}, v{PR}, v{PR+2}
    v_add_f32 v{PR+1}, v{PR+1}, v{PR+3}
    v_cvt_pk_bf16_f32 v{PR}, v{PR}, v{PR+1}
    ds_write_b32 v17, v{PR}
    ds_write_b32 v16, v{T0} offset:{FQ}
    L_q_spin:
    ds_read_b128 v[{PR}:{PR+3}], v1 offset:{FQ}
    ds_read_b32 v{PR+4}, v1 offset:{RS}''')
    for t in range(4): a(f'ds_read_b128 v[{QF+4*t}:{QF+4*t+3}], v18 offset:{64*t}')
    spin_guard()
    for t in range(4):
        lgkm(3 - t)
        for b in range(2):
            c = '0' if t == 0 else f'v[{DS+4*b}:{DS+4*b+3}]'
            k = KR + 16*b + 4*t
            a(f'v_mfma_f32_16x16x32_bf16 v[{DS+4*b}:{DS+4*b+3}], v[{k}:{k+3}], v[{QF+4*t}:{QF+4*t+3}], {c}')
        if t == 0:
            a(f'''v_and_b32 v{T0}, v{PR}, v{PR+1}
            v_and_b32 v{T0+1}, v{PR+2}, v{PR+3}
            v_or3_b32 v{T0+2}, v{PR}, v{PR+1}, v{PR+2}
            v_and_b32 v{T0}, v{T0}, v{PR+4}''')
        if t == 1:
            a(f'''v_and_b32 v{T0}, v{T0}, v{T0+1}
            v_or_b32 v{T0+2}, v{T0+2}, v{PR+3}
            v_readfirstlane_b32 s38, v{T0}
            v_readfirstlane_b32 s49, v{T0+2}''')
    a(f'''s_bitcmp1_b32 s38, 0
    s_cbranch_scc0 L_q_spin
    s_and_b32 s49, s49, 2''')
    for k in range(8): a(f'v_mul_f32 v{DS+k}, v{DS+k}, v{PR+4}')
    a(f'''v_max3_f32 v{T0}, v{DS}, v{DS+1}, v{DS+2}
    v_max3_f32 v{T0+1}, v{DS+3}, v{DS+4}, v{DS+5}
    v_max3_f32 v{T0}, v{T0}, v{DS+6}, v{DS+7}
    v_max_f32 v{T0}, v{T0}, v{T0+1}''')
    allrows('v_max_f32', T0, T0+1)
    for k in range(8): a(f'v_sub_f32 v{DS+k}, v{DS+k}, v{T0}')
    for k in range(8): a(f'v_exp_f32 v{DS+k}, v{DS+k}')
    a(f'''v_add_f32 v{T0+1}, v{DS}, v{DS+1}
    v_add_f32 v{T0+2}, v{DS+2}, v{DS+3}
    v_add_f32 v{T0+3}, v{DS+4}, v{DS+5}
    v_add_f32 v{T0+1}, v{T0+1}, v{T0+2}
    v_add_f32 v{T0+2}, v{DS+6}, v{DS+7}
    v_add_f32 v{T0+1}, v{T0+1}, v{T0+3}
    v_add_f32 v{T0+1}, v{T0+1}, v{T0+2}''')
    allrows('v_add_f32', T0+1, T0+2)
    a(f'ds_write_b64 v19, v[{T0}:{T0+1}] offset:{MLX}')
    for k in range(4): a(f'v_cvt_pk_bf16_f32 v{PR+k}, v{DS+2*k}, v{DS+2*k+1}')
    for j in range(4):
        for k in range(4): a(f'v_cndmask_b32 v{QF+4*j+k}, 0, v{PR+k}, s[{66+2*j}:{67+2*j}]')
    ts(3)
    VT = KR
    def vperm(pr):
        ia = 2*pr; ib = ia + 1
        for d in range(4):
            a(f'v_perm_b32 v{VT + 4*(2*d) + pr}, v{VR+4*ib+d}, v{VR+4*ia+d}, s40')
            a(f'v_perm_b32 v{VT + 4*(2*d+1) + pr}, v{VR+4*ib+d}, v{VR+4*ia+d}, s41')
    for pr in range(4):
        if 2*pr + 1 >= PA: waitfor(('D', 8 + 2*pr + 1))
        vperm(pr)
    ts(4)
    a(f'''ds_read_b128 v[{T0}:{T0+3}], v24 offset:{MLX}
    ds_read_b128 v[{T0+4}:{T0+7}], v24 offset:{MLX+16}''')
    for j in [0, 4, 1, 5, 2, 6, 3, 7]:
        h = j >> 2
        c = '0' if (j & 3) == 0 else f'v[{DS+4*h}:{DS+4*h+3}]'
        a(f'v_mfma_f32_16x16x32_bf16 v[{DS+4*h}:{DS+4*h+3}], v[{QF+4*(j&3)}:{QF+4*(j&3)+3}], v[{VT+4*j}:{VT+4*j+3}], {c}')
    a(f'''v_mov_b32 v{PR+3}, s35
    v_mov_b32 v{PR+7}, s35
    ds_write_b128 v21, v[{DS}:{DS+3}]
    ds_write_b128 v21, v[{DS+4}:{DS+7}] offset:{OH}
    ds_write_b32 v16, v25 offset:{FO}
    s_branch L_ml_chk
    L_ml_spin:
    ds_read_b128 v[{T0}:{T0+3}], v24 offset:{MLX}
    ds_read_b128 v[{T0+4}:{T0+7}], v24 offset:{MLX+16}''')
    spin_guard()
    a('s_waitcnt lgkmcnt(0)')
    a('L_ml_chk:')
    lgkm(3)
    a(f'''v_min_u32 v{T0+8}, v{T0+1}, v{T0+3}
    v_min3_u32 v{T0+8}, v{T0+8}, v{T0+5}, v{T0+7}
    v_max3_f32 v{PR+4}, v{T0}, v{T0+2}, v{T0+4}
    v_cmp_eq_u32 vcc, 0, v{T0+8}
    v_max_f32 v{PR+4}, v{PR+4}, v{T0+6}
    s_cbranch_vccnz L_ml_spin
    L_o_spin:
    ds_read_b128 v[{T0+8}:{T0+11}], v1 offset:{FO}''')
    for wp in range(4): a(f'ds_read_b128 v[{VR+4*wp}:{VR+4*wp+3}], v22 offset:{OW*wp}')
    for k in range(4): a(f'v_sub_f32 v{VR+16+k}, v{T0+2*k}, v{PR+4}')
    for k in range(4): a(f'v_exp_f32 v{VR+16+k}, v{VR+16+k}')
    a(f'v_mul_f32 v{PR+5}, v{VR+16}, v{T0+1}')
    for k in range(1, 4): a(f'v_fmac_f32 v{PR+5}, v{VR+16+k}, v{T0+2*k+1}')
    spin_guard()
    lgkm(3)
    a(f'''v_and_b32 v{T0+8}, v{T0+8}, v{T0+9}
    v_and_b32 v{T0+10}, v{T0+10}, v{T0+11}''')
    for k in range(4): a(f'v_mul_f32 v{VR+k}, v{VR+k}, v{VR+16}')
    a(f'''v_and_b32 v{T0+8}, v{T0+8}, v{T0+10}''')
    a(f'v_cmp_eq_u32 vcc, 0, v{T0+8}')
    for wp in range(1, 4):
        lgkm(3 - wp)
        for k in range(4): a(f'v_fmac_f32 v{VR+k}, v{VR+4*wp+k}, v{VR+16+wp}')
    a('s_cbranch_vccnz L_o_spin')
    a('s_cmp_lg_u32 s49, 0')
    a('s_mov_b32 exec_hi, 0')
    pack(PR, VR, VR+1, VR+2, VR+3)
    a('s_cbranch_scc1 L_st2_slow')
    a(f'''global_store_dwordx4 v10, v[{PR}:{PR+3}], s[28:29]
    s_mov_b64 exec, 1
    global_store_dwordx4 v13, v[{PR+4}:{PR+7}], s[28:29]
    L_st2_done:
    s_mov_b64 exec, -1''')
    tail.append(f'''L_st2_slow:
    global_store_dwordx4 v10, v[{PR}:{PR+3}], s[28:29] sc1
    s_mov_b64 exec, 1
    global_store_dwordx4 v13, v[{PR+4}:{PR+7}], s[28:29] sc1
    s_branch L_st2_done''')
    ts(5)
    LR = KR; HR = KR + 8
    mll = [f'global_load_dwordx4 v[{LR+4*i}:{LR+4*i+3}], v20, s[28:29] offset:{256*i} sc1' for i in range(2)]
    ol = [f'global_load_dwordx4 v[{HR+4*i}:{HR+4*i+3}], v15, s[28:29] offset:{1024*i} sc1' for i in range(2)]
    for x in mll + ol: a(x)
    poll('ML', mll, [LR+3, LR+7], 2)
    ts(6)
    for x in ol: a(x)
    a(f'v_max_f32 v{T0}, v{LR}, v{LR+4}')
    ror('v_max_f32', T0, (8, 4))
    allrows('v_max_f32', T0, T0+1)
    a(f'''v_sub_f32 v{LR}, v{LR}, v{T0}
    v_sub_f32 v{LR+4}, v{LR+4}, v{T0}
    v_exp_f32 v{LR}, v{LR}
    v_exp_f32 v{LR+4}, v{LR+4}
    v_mul_f32 v{T0}, v{LR}, v{LR+1}
    v_fmac_f32 v{T0}, v{LR+4}, v{LR+5}''')
    ror('v_add_f32', T0, (8, 4))
    allrows('v_add_f32', T0, T0+1)
    a(f'''v_rcp_f32 v{T0}, v{T0}
    v_mul_f32 v{LR}, v{LR}, v{T0}
    v_mul_f32 v{LR+4}, v{LR+4}, v{T0}''')
    poll('O', ol, [HR+3, HR+7], 0)
    ts(7)
    unpack3(HR); unpack3(HR+4)
    for k in range(4): a(f'v_mul_f32 v{HR+k}, v{HR+k}, v{LR}')
    for k in range(4): a(f'v_fmac_f32 v{HR+k}, v{HR+4+k}, v{LR+4}')
    scatter4(HR)
    ror('v_add_f32', HR, (8, 4))
    a(f'v_cvt_pk_bf16_f32 v{HR}, v{HR}, v{HR}')
    AT = QF; DO = DS
    for i in range(5):
        if i < 4:
            for r in range(4): a(f'v_and_b32_dpp v{AT+4*i+r}, v{HR}, v{28+r} quad_perm:[{i},{i},{i},{i}] row_mask:0xf bank_mask:0xf')
        if i >= 1:
            c = '0' if i == 1 else f'v[{DO}:{DO+3}]'
            a(f'v_mfma_f32_16x16x32_bf16 v[{DO}:{DO+3}], v[{AT+4*(i-1)}:{AT+4*(i-1)+3}], v[{WOR+4*(i-1)}:{WOR+4*(i-1)+3}], {c}')
    a('s_cmp_lg_u32 s49, 0')
    a('s_mov_b32 exec_hi, 0')
    pack(PR, DO, DO+1, DO+2, DO+3)
    store_mode('st3', [f'global_store_dwordx4 v11, v[{PR}:{PR+3}], s[28:29]'])
    ts(8)
    a('L_fin:')
    if TS:
        att[0] = False
        if not TS2: ts(12)
        a(f'''s_mul_i32 s38, s2, 6
        s_add_u32 s38, s38, s30
        s_lshl_b32 s38, s38, 7
        s_add_u32 s38, s38, {TSB}
        s_mov_b64 exec, 1
        v_mov_b32 v1, s38
        s_waitcnt lgkmcnt(0)''')
        for k in range(13):
            a(f'v_mov_b32 v2, s{76+2*k}')
            a(f'global_store_dword v1, v2, s[28:29] offset:{4*k}')
        a('v_mov_b32 v2, s48')
        a(f'global_store_dword v1, v2, s[28:29] offset:64')
    a('s_endpgm')
    for t in tail: a(t)
    a('L_end:')
    a('s_endpgm')
    a.raw(f'''.section .rodata,"a"
.p2align 6
.amdhsa_kernel {KN}_kernel
  .amdhsa_next_free_vgpr 160
  .amdhsa_next_free_sgpr 102
  .amdhsa_accum_offset 160
  .amdhsa_group_segment_fixed_size 0
  .amdhsa_kernarg_size 104
  .amdhsa_user_sgpr_count 2
  .amdhsa_user_sgpr_kernarg_segment_ptr 1
  .amdhsa_system_sgpr_workgroup_id_x 1
.end_amdhsa_kernel''')
    return a.text()

if __name__ == '__main__':
    for spec in sys.argv[1:]:
        name, kw = spec.split('=', 1)
        kw = eval('dict(' + kw + ')')
        open(f'exp/{name}.s', 'w').write(gen(**kw))
```

```python
import sys, struct, math
sys.path.insert(0, 'gen')
from asmlib import Asm
KN = 'recurrent_scan__sliding_block_cached__mixer_channel_mlp__decode'
def f2u(f): return struct.unpack('<I', struct.pack('<f', f))[0]
GB0 = 0x10000; GA = 0x4C000
H1F = 0; H1S = 0x2000; MLB = 0x4000; MHB = 0x5000; MHS = 896; MH2 = 0x45000 - 0x5000
OIB = 0x10000; SIB = 0x22000; MIB = 0x34000; IS = 2176
H3S_ = 0x280000; H3M_ = 0x288000
TSB = 0x800000
QL = 0; QS = 320; FQ = 1280; RS = 1296; FV = 1312; FO = 1328; MLX = 1344; FT = 1472; FE = 1476; FM = 1488; O16 = 1536; OL = 2048; OH = 1152; OW = 2304; KL = 16384; LDSZ = 16384 + 32768
LOG2E = 1.4426950408889634
MAXPOLL = 400000

def gen(TS=False, TS2=False, WIN=6, PA=4, H1FAST=True, PF=True, SPREAD=True, WNT=False, MLEARLY=True, DBG=False, SLP=2, LATEF=True, PE=1, BURST=True, STREAM=0, NOP=False, ROT='g', NST=15, PSL=2, MWAIT=True, PPOS=(1, 4, 7), SNT=False, TOUCH=0):
    a = Asm()
    hdr = open('cdna_kernels/' + KN + '.s.ref').read().split('\n')
    for l in hdr:
        if l.startswith('; @launch'): break
        a.raw(l)
    a.raw(f'; @launch grid=(256,1,1) block=(384,1,1) lds={LDSZ}')
    a.raw('.amdgcn_target "amdgcn-amd-amdhsa--gfx950"\n.text')
    a.raw(f'.globl {KN}_kernel\n.p2align 8\n.type {KN}_kernel,@function\n{KN}_kernel:')
    att = [False]
    def ts2(k):
        if TS2 and k <= 12: a(f's_memrealtime s[{76+2*k}:{77+2*k}]')
    def ts(k):
        if TS2 and att[0]: return
        if TS: a(f's_memrealtime s[{76+2*k}:{77+2*k}]')
    def lgkm(n): a(f's_waitcnt lgkmcnt({0 if TS else n})')
    def wave_sum(vs):
        for sh in (1, 2, 4, 8):
            for x in vs: a(f'v_add_f32_dpp v{x}, v{x}, v{x} row_shr:{sh} row_mask:0xf bank_mask:0xf bound_ctrl:0')
        for x in vs: a(f'v_add_f32_dpp v{x}, v{x}, v{x} row_bcast:15 row_mask:0xa bank_mask:0xf')
        for x in vs: a(f'v_add_f32_dpp v{x}, v{x}, v{x} row_bcast:31 row_mask:0xc bank_mask:0xf')
    def ror(op, x, shs, dst=None):
        for i, sh in enumerate(shs):
            d = dst if (dst is not None and i == len(shs) - 1) else x
            a(f'{op}_dpp v{d}, v{x}, v{x} row_ror:{sh} row_mask:0xf bank_mask:0xf')
    def scatter4(r):
        a(f'''v_permlane32_swap_b32 v{r}, v{r+2}
        v_permlane32_swap_b32 v{r+1}, v{r+3}
        v_add_f32 v{r}, v{r}, v{r+2}
        v_add_f32 v{r+1}, v{r+1}, v{r+3}
        v_permlane16_swap_b32 v{r}, v{r+1}
        v_add_f32 v{r}, v{r}, v{r+1}''')
    def allrows(op, x, t):
        a(f'''v_mov_b32 v{t}, v{x}
        v_permlane32_swap_b32 v{x}, v{t}
        {op} v{x}, v{x}, v{t}
        v_mov_b32 v{t}, v{x}
        v_permlane16_swap_b32 v{x}, v{t}
        {op} v{x}, v{x}, v{t}''')
    def rnd(dst, src):
        a(f'v_cvt_pk_bf16_f32 v{dst}, v{src}, v{src}')
        a(f'v_and_b32 v{dst}, 0xffff0000, v{dst}')
    def mktag(ve):
        a(f'''v_readfirstlane_b32 s35, v{ve}
        s_add_u32 s35, s35, 0x9E3779B9
        s_or_b32 s35, s35, 1''')
    def pack(d, v0, v1, v2, v3):
        a(f'v_perm_b32 v{d}, v{v0}, v{v3}, s42')
        a(f'v_perm_b32 v{d+1}, v{v1}, v{v3}, s43')
        a(f'v_perm_b32 v{d+2}, v{v2}, v{v3}, s44')
    def unpack3(d):
        a(f'v_perm_b32 v{d+3}, v{d+1}, v{d}, s45')
        a(f'v_perm_b32 v{d+3}, v{d+2}, v{d+3}, s46')
    def poll(name, loads, tagregs, first_wait, pre='', slp=0):
        a(f's_waitcnt vmcnt({first_wait})')
        a(f's_branch L_{name}_chk')
        a(f'L_{name}_retry:')
        if slp: a(f's_sleep {slp}')
        a(f'''s_add_u32 s48, s48, 1
        {pre}
        s_mov_b64 exec, s[50:51]''')
        for x in loads: a(x)
        a(f'''s_mov_b64 exec, -1
        s_cmp_gt_u32 s48, {MAXPOLL}
        s_cbranch_scc1 L_end
        s_waitcnt vmcnt(0)
        L_{name}_chk:''')
        for i, r in enumerate(tagregs):
            a(f'v_cmp_ne_u32 s[{50+2*i}:{51+2*i}], s35, v{r}')
        if len(tagregs) == 1: a('s_cmp_lg_u64 s[50:51], 0')
        else:
            for i in range(1, len(tagregs)): a(f's_or_b64 s[50:51], s[50:51], s[{50+2*i}:{51+2*i}]')
        a(f's_cbranch_scc1 L_{name}_retry')
    def npoll(name, loads, tagregs, slp):
        a('s_mov_b64 s[50:51], -1')
        a(f'L_{name}_l:')
        a('s_mov_b64 exec, s[50:51]')
        for x in loads: a(x)
        a(f'''s_mov_b64 exec, -1
        s_add_u32 s48, s48, 1
        s_cmp_gt_u32 s48, {MAXPOLL}
        s_cbranch_scc1 L_end
        s_sleep {slp}
        s_waitcnt vmcnt(32)''')
        for i, r in enumerate(tagregs):
            a(f'v_cmp_ne_u32 s[{50+2*i}:{51+2*i}], s35, v{r}')
        for i in range(1, len(tagregs)): a(f's_or_b64 s[50:51], s[50:51], s[{50+2*i}:{51+2*i}]')
        a(f's_cbranch_scc1 L_{name}_l')
    def unpack_to(t, d):
        a(f'v_perm_b32 v{t}, v{d+1}, v{d}, s45')
        a(f'v_perm_b32 v{t}, v{d+2}, v{t}, s46')
    def sum2(dst, r0, r1, t):
        unpack_to(dst+3, r0); unpack_to(t, r1)
        for k in range(3): a(f'v_add_f32 v{dst+k}, v{r0+k}, v{r1+k}')
        a(f'v_add_f32 v{dst+3}, v{dst+3}, v{t}')
    tail = []
    def store_mode(name, ins):
        a(f's_cbranch_scc1 L_{name}_slow')
        for x in ins: a(x)
        a(f'L_{name}_done:')
        tail.append(f'L_{name}_slow:\n' + '\n'.join(x + ' sc1' for x in ins) + f'\ns_branch L_{name}_done')
    consts = '''s_mov_b32 s40, 0x05040100
        s_mov_b32 s41, 0x07060302
        s_mov_b32 s42, 0x07060501
        s_mov_b32 s43, 0x07060502
        s_mov_b32 s44, 0x07060503
        s_mov_b32 s45, 0x0c04000c
        s_mov_b32 s46, 0x04020100
        s_getreg_b32 s33, hwreg(HW_REG_XCC_ID)
        s_and_b32 s33, s33, 7'''
    spin = [0]
    def spin_guard():
        a(f'''s_add_u32 s48, s48, 1
        s_cmp_gt_u32 s48, {MAXPOLL}
        s_cbranch_scc1 L_end''')

    ts(0)
    a(f'''s_load_dwordx16 s[4:19], s[0:1], 0
    s_load_dwordx8 s[20:27], s[0:1], 64
    s_load_dwordx2 s[28:29], s[0:1], 96
    s_cmp_ge_u32 s2, 256
    s_cbranch_scc1 L_end
    v_lshrrev_b32 v1, 6, v0
    v_and_b32 v0, 63, v0
    s_getpc_b64 s[36:37]
    L_pc:
    v_readfirstlane_b32 s30, v1
    s_and_b32 s31, s2, 7
    s_lshr_b32 s32, s2, 3
    s_mul_i32 s38, s32, 6
    s_add_u32 s38, s38, s30
    s_lshl_b32 s38, s38, 7
    s_min_u32 s38, s38, L_end-L_pc
    v_mov_b32 v1, s38
    {'global_load_dword v26, v1, s[36:37]' if PF else 's_nop 0'}
    s_mul_i32 s34, s31, {GA}
    s_add_u32 s34, s34, {GB0}
    s_mov_b32 s48, 0
    v_mov_b32 v1, 0
    v_lshlrev_b32 v2, 4, v0
    v_and_b32 v5, 15, v0
    v_lshrrev_b32 v6, 4, v0
    s_cmp_eq_u32 s30, 1
    s_cbranch_scc1 L_M
    s_cmp_gt_u32 s30, 1
    s_cbranch_scc1 L_A''')
    a(f'''s_setprio 3
    v_and_b32 v4, 1, v0
    v_lshl_add_u32 v3, v6, 1, v4
    v_lshlrev_b32 v3, 5, v3
    s_and_b32 s38, s32, 3
    s_lshl_b32 s39, s38, 8
    v_add_u32 v3, s39, v3
    v_lshrrev_b32 v4, 3, v0
    v_lshlrev_b32 v4, 17, v4
    v_and_b32 v7, 7, v0
    v_lshl_add_u32 v4, v7, 4, v4
    s_lshl_b32 s39, s38, 20
    s_lshl_b32 s38, s31, 10
    s_add_u32 s39, s39, s38
    s_lshr_b32 s38, s32, 2
    s_lshl_b32 s38, s38, 7
    s_add_u32 s39, s39, s38
    v_add_u32 v4, s39, v4
    s_mov_b32 s38, 0x3f803f80
    s_movk_i32 s39, 0x2000''')
    for r in range(8, 16): a(f'v_mov_b32 v{r}, s38')
    a(f'''s_mov_b32 s60, 0x00030003
    s_mov_b32 s61, 0x00030003
    s_waitcnt lgkmcnt(0)''')
    for i in range(16):
        a(f'global_load_dwordx4 v[{20+4*i}:{23+4*i}], v4, s[10:11] nt')
        if i < 15: a('v_add_u32 v4, s39, v4')
        if i == 3:
            a('''s_mov_b64 exec, s[60:61]
            global_load_dwordx4 v[8:11], v3, s[4:5]
            global_load_dwordx4 v[12:15], v3, s[4:5] offset:16
            s_mov_b64 exec, -1
            global_load_dwordx4 v[148:151], v2, s[4:5]
            global_load_dword v16, v1, s[28:29] sc1''')
    a('s_barrier')
    a('s_branch L_Q2')
    a(f'''L_M:
    s_mul_i32 s38, s32, {16*3584}
    s_mul_i32 s39, s31, 448
    s_add_u32 s38, s38, s39
    v_lshl_add_u32 v4, v0, 3, s38
    s_movk_i32 s39, 7168
    s_mov_b32 s60, -1
    s_mov_b32 s61, 0x00ffffff
    v_lshlrev_b32 v3, 2, v0
    ds_write_b32 v3, v1 offset:{FQ}
    s_waitcnt lgkmcnt(0)
    global_load_dwordx4 v[8:11], v2, s[4:5]
    global_load_dword v16, v1, s[28:29] sc1
    s_barrier
    {'s_branch L_fin' if STREAM & 2 else ''}
    s_setprio 2
    s_mov_b64 exec, s[60:61]''')
    for p in range(8):
        a(f'global_load_dwordx2 v[{20+4*p}:{21+4*p}], v4, s[16:17] nt')
        a(f'global_load_dwordx2 v[{22+4*p}:{23+4*p}], v4, s[16:17] offset:3584 nt')
        if p < 7: a('v_add_u32 v4, s39, v4')
    a('s_mov_b64 exec, -1')
    a('s_branch L_M2')
    KR = 32; VR = 64; PR = 96; WOR = 104; QF = 120; DS = 136; T0 = 144; KS = 50; PB = 160
    rot = {'s2w': 's_lshl_b32 s3, s47, 1\ns_add_u32 s3, s3, s32', 'g': 's_mov_b32 s3, s31', 'g2w': 's_lshl_b32 s3, s47, 1\ns_add_u32 s3, s3, s31',
           '0': 's_mov_b32 s3, 0', '2w': 's_lshl_b32 s3, s47, 1', 's': 's_mov_b32 s3, s32', 'sh': 's_lshr_b32 s3, s32, 2\ns_add_u32 s3, s3, s31'}[ROT]
    a(f'''L_A:
    s_sub_u32 s47, s30, 2
    s_lshl_b32 s38, s31, 24
    s_lshl_b32 s39, s32, 15
    s_add_u32 s38, s38, s39
    s_lshl_b32 s39, s47, 10
    s_add_u32 s38, s38, s39
    s_add_u32 s38, s38, {0xF00000}
    s_lshl_b32 s39, s47, 13
    s_add_u32 s39, s39, {KL}
    s_mov_b32 m0, s39
    {rot}
    v_xor_b32 v7, v5, v6
    v_lshlrev_b32 v7, 4, v7
    v_lshl_add_u32 v{T0}, v6, 8, v7
    v_add_u32 v{T0}, s38, v{T0}
    v_xor_b32 v{T0+1}, 64, v{T0}
    v_xor_b32 v{T0+2}, 0x80, v{T0}
    v_xor_b32 v{T0+3}, 0xc0, v{T0}
    v_lshl_add_u32 v{T0+4}, v5, 8, v7
    v_add_u32 v{T0+4}, s39, v{T0+4}
    v_add_u32 v4, s3, v6
    v_and_b32 v4, 7, v4
    v_lshlrev_b32 v4, 12, v4
    v_lshl_add_u32 v4, v5, 4, v4
    v_add_u32 v4, s38, v4
    v_xor_b32 v27, 0x4000, v4
    s_waitcnt lgkmcnt(0)
    global_load_dword v23, v1, s[28:29] sc1''')
    if TOUCH:
        a(f'''s_mov_b64 exec, 1
        s_cmp_eq_u32 s47, 1
        s_cbranch_scc1 L_tch1
        s_cmp_eq_u32 s47, 2
        s_cbranch_scc1 L_tch2
        s_cmp_eq_u32 s47, 3
        s_cbranch_scc1 L_tch3
        s_lshl_b32 s39, s31, 5
        s_add_u32 s39, s39, s32
        s_lshl_b32 s39, s39, 14
        v_mov_b32 v8, s39
        global_load_dword v26, v4, s[8:9] nt
        global_load_dword v26, v8, s[12:13] nt
        global_load_dword v26, v{T0}, s[6:7] nt
        s_branch L_tchd
        L_tch1:
        s_mul_i32 s39, s31, {224*1024}
        v_mov_b32 v8, s39
        global_load_dword v26, v8, s[20:21] nt
        global_load_dword v26, v1, s[18:19]
        global_load_dword v26, v1, s[22:23]
        s_branch L_tchd
        L_tch2:
        v_mov_b32 v8, {H3S_}
        v_mov_b32 v9, s34
        global_load_dword v26, v1, s[24:25]
        global_load_dword v26, v8, s[28:29] offset:-128
        global_load_dword v26, v9, s[28:29] offset:-128
        s_branch L_tchd
        L_tch3:
        s_add_u32 s39, s34, {SIB}
        v_mov_b32 v8, s39
        s_add_u32 s39, s34, {MIB}
        v_mov_b32 v9, s39
        s_add_u32 s39, s34, {OIB}
        v_mov_b32 v10, s39
        global_load_dword v26, v8, s[28:29] offset:-128
        global_load_dword v26, v9, s[28:29] offset:-128
        global_load_dword v26, v10, s[28:29] offset:-128
        L_tchd:
        s_mov_b64 exec, -1''')
    for i in range(8):
        a(f'''s_add_u32 s39, s3, {i}
        s_and_b32 s39, s39, 7
        s_lshl_b32 s39, s39, 12
        s_add_u32 s{KS+2*i}, s6, s39
        s_addc_u32 s{KS+2*i+1}, s7, 0''')
    a('s_barrier')
    D = []
    for i in range(8):
        pre = 's_add_u32 m0, m0, 1024\ns_nop 0\n' if i > 0 else ''
        D.append(pre + f'global_load_lds_dwordx4 v{T0+(i&3)}, s[{KS+2*i}:{KS+2*i+1}] nt')
    for e in range(8):
        r = VR + 4*e
        D.append(f'global_load_dwordx4 v[{r}:{r+3}], v{4 if e < 4 else 27}, s[8:9] offset:{256*(e&3)} nt')
    for i in range(4):
        D.append(f'global_load_dwordx4 v[{WOR+4*i}:{WOR+4*i+3}], v{9 if i < 2 else 14}, s[12:13] offset:{4096*(i&1)-4096} nt')
    pl = [f'global_load_dwordx4 v[{PR}:{PR+3}], v12, s[28:29] sc1', f'global_load_dwordx4 v[{PR+4}:{PR+7}], v12, s[28:29] offset:256 sc1']
    setup = f'''s_lshl_b32 s39, s47, 11
    s_add_u32 s38, s34, s39
    s_add_u32 s38, s38, {H1F if H1FAST else H1S}
    v_and_b32 v8, 1, v6
    v_lshlrev_b32 v12, 10, v8
    v_lshrrev_b32 v9, 5, v0
    v_lshl_add_u32 v12, v9, 9, v12
    v_lshl_add_u32 v12, v5, 4, v12
    v_add_u32 v12, s38, v12
    s_mul_i32 s38, s47, {QS}
    v_lshlrev_b32 v17, 7, v8
    v_lshl_add_u32 v17, v9, 2, v17
    v_and_b32 v7, 7, v0
    v_lshl_add_u32 v17, v7, 4, v17
    v_bfe_u32 v7, v0, 3, 1
    v_lshl_add_u32 v17, v7, 3, v17
    v_add_u32 v17, s38, v17
    s_mul_i32 s38, s47, {8*IS}
    s_lshl_b32 s39, s32, 6
    s_add_u32 s38, s38, s39
    s_add_u32 s38, s38, s34
    s_add_u32 s39, s38, {SIB}
    v_lshrrev_b32 v7, 2, v5
    v_lshl_add_u32 v11, v7, 1, v8
    v_mul_u32_u24 v11, {IS}, v11
    v_and_b32 v3, 3, v0
    v_lshl_add_u32 v11, v3, 4, v11
    v_add_u32 v11, s39, v11
    s_add_u32 s39, s38, {OIB}
    v_bfe_u32 v10, v0, 2, 3
    v_mul_u32_u24 v10, {IS}, v10
    v_lshl_add_u32 v10, v3, 4, v10
    v_add_u32 v10, s39, v10
    v_mul_u32_u24 v18, {QS}, v7
    v_lshl_add_u32 v18, v6, 4, v18
    s_lshl_b32 s38, s47, 3
    v_lshl_add_u32 v19, v7, 5, s38
    s_mul_i32 s38, s47, {OW}
    s_add_u32 s38, s38, {OL}
    v_add_u32 v21, s38, v2
    s_lshl_b32 s38, s47, 8
    s_add_u32 s38, s38, {OL}
    v_and_b32 v7, 1, v0
    v_mul_u32_u24 v22, {OH}, v7
    v_bfe_u32 v20, v0, 1, 4
    v_lshl_add_u32 v22, v20, 4, v22
    v_add_u32 v22, s38, v22
    s_lshl_b32 s38, s31, 5
    s_add_u32 s38, s38, s32
    s_lshl_b32 s38, s38, 14
    s_lshl_b32 s39, s47, 8
    s_add_u32 s38, s38, s39
    s_add_u32 s38, s38, 4096
    v_lshlrev_b32 v14, 10, v6
    v_lshl_add_u32 v14, v5, 4, v14
    v_add_u32 v9, s38, v14
    v_add_u32 v14, 0x2000, v9
    s_lshl_b32 s39, s47, 9
    s_lshl_b32 s38, s32, 4
    s_add_u32 s39, s39, s38
    s_add_u32 s39, s39, s34
    s_add_u32 s39, s39, {MLB}
    v_mov_b32 v13, s39
    s_lshl_b32 s38, s47, 2
    v_mov_b32 v16, s38
    s_lshl_b32 s38, s47, 5
    v_mov_b32 v24, s38
    v_mov_b32 v25, 1
    {consts}
    v_cmp_eq_u32 vcc, 1, v7
    v_mov_b32 v{DS}, 0x0000ffff
    v_mov_b32 v{DS+1}, 0xffff0000
    v_cndmask_b32 v{DS}, v{DS}, v{DS+1}, vcc
    v_bfe_u32 v{DS+2}, v0, 1, 3'''.split('\n')
    for r in range(4):
        setup += [f'v_cmp_eq_u32 vcc, {r}, v{DS+2}', f'v_cndmask_b32 v{28+r}, 0, v{DS}, vcc']
    for j in range(4):
        setup += [f's_mov_b32 s{66+2*j}, {hex(0x11111111 << j)}', f's_mov_b32 s{67+2*j}, {hex(0x11111111 << j)}']
    setup += [f'v_xor_b32 v{T0+5}, 64, v{T0+4}', f'v_xor_b32 v{T0+6}, 0x80, v{T0+4}', f'v_xor_b32 v{T0+7}, 0xc0, v{T0+4}']
    issued = []
    def issue(tag, ins): a(ins); issued.append(tag)
    def waitfor(tag): a(f's_waitcnt vmcnt({len(issued) - 1 - issued.index(tag)})')
    chunk = (len(setup) + WIN - 1) // WIN if SPREAD else 0
    for n in range(WIN):
        issue(('D', n), D[n])
        if SPREAD: a('\n'.join(setup[n*chunk:(n+1)*chunk]))
    if not SPREAD: a('\n'.join(setup))
    nstop = NST if BURST else 19
    a(f'v_mov_b32 v{PB+3}, 0\nv_mov_b32 v{PB+7}, 0')
    pl = [x.replace(f'v[{PR}:{PR+3}]', f'v[{PB}:{PB+3}]').replace(f'v[{PR+4}:{PR+7}]', f'v[{PB+4}:{PB+7}]') for x in pl]
    for n in range(WIN, len(D)):
        if n <= nstop:
            waitfor(('D', n - WIN))
            if not STREAM: ts2(n - WIN)
            elif n - WIN >= 7: ts2(n - WIN - 7)
        if n == WIN: mktag(23)
        issue(('D', n), D[n])
        if n - 8 in PPOS and not NOP:
            issue(('P0', n - 8), pl[0]); issue(('P1', n - 8), pl[1])
        if n == 15: a(f'ds_write_b32 v16, v25 offset:{FV}')
        if n - WIN == 7:
            for b in range(2):
                for t in range(4):
                    r = KR + 16*b + 4*t
                    a(f'ds_read_b128 v[{r}:{r+3}], v{T0+4+t} offset:{4096*b}')
    if STREAM:
        for n in range(min(nstop, 19) - WIN + 1, 20):
            waitfor(('D', n))
            ts2(n - 7)
        a('s_branch L_fin')
        issued += [('P1', e) for e in PPOS]
    a('s_branch L_A2')

    a('L_Q2:')
    a(consts)
    a(f'''s_lshl_b32 s3, s33, 8
    v_mov_b32 v17, s3
    s_movk_i32 s62, 0x700
    s_lshl_b32 s39, s32, 8
    s_add_u32 s39, s39, s34
    v_add_u32 v18, s39, v2
    v_add_u32 v3, {H1S-H1F}, v18
    v_mov_b32 v19, 0
    s_waitcnt vmcnt(12)''')
    ts(1)
    for r in range(148, 152): a(f'v_dot2c_f32_bf16 v19, s38, v{r}')
    mktag(16)
    wave_sum([19])
    a(f'''v_readlane_b32 s63, v19, 63
    v_mov_b32 v19, {hex(f2u(1.0/512))}
    v_mul_f32 v19, s63, v19''')
    rnd(19, 19)
    T = 84; DQ = 116
    for h in range(2):
        for pr in range(4):
            ia = 8*h + 2*pr; ib = ia + 1
            if ib > 3: a(f's_waitcnt vmcnt({15 - ib})')
            for d in range(4):
                a(f'v_perm_b32 v{T + 4*(2*d) + pr}, v{20+4*ib+d}, v{20+4*ia+d}, s40')
                a(f'v_perm_b32 v{T + 4*(2*d+1) + pr}, v{20+4*ib+d}, v{20+4*ia+d}, s41')
        if h == 1: ts(2)
        for j in range(8):
            c = '0' if h == 0 else f'v[{DQ+4*j}:{DQ+4*j+3}]'
            a(f'v_mfma_f32_16x16x32_bf16 v[{DQ+4*j}:{DQ+4*j+3}], v[{8+4*h}:{11+4*h}], v[{T+4*j}:{T+4*j+3}], {c}')
    a('v_mov_b32 v23, s35\nv_mov_b32 v27, s35')
    for j in range(8):
        d = DQ + 4*j
        a(f'v_add_f32_dpp v{d}, v{d+1}, v{d} row_ror:8 row_mask:0xf bank_mask:0xf')
        a(f'v_add_f32_dpp v{d+2}, v{d+2}, v{d+2} row_ror:8 row_mask:0xf bank_mask:0xf')
        a(f'v_fma_f32 v{d}, -v19, v{d+2}, v{d}')
    for hq in range(2):
        o = 20 + 4*hq
        pack(o, DQ + 16*hq, DQ + 16*hq + 4, DQ + 16*hq + 8, DQ + 16*hq + 12)
        a(f'v_bfi_b32 v{o}, s62, v17, v{o}')
    a('s_mov_b64 exec, 0xff')
    if H1FAST:
        a(f'''global_store_dwordx4 v18, v[20:23], s[28:29]
        global_store_dwordx4 v18, v[24:27], s[28:29] offset:128''')
    a(f'''global_store_dwordx4 v3, v[20:23], s[28:29] sc1
    global_store_dwordx4 v3, v[24:27], s[28:29] offset:128 sc1
    s_mov_b64 exec, -1''')
    ts(3)
    def lds_wait4(name, off):
        a(f'''L_{name}:
        s_sleep 1
        ds_read_b128 v[28:31], v1 offset:{off}''')
        spin_guard()
        a(f'''s_waitcnt lgkmcnt(0)
        v_and_b32 v28, v28, v29
        v_and_b32 v30, v30, v31
        v_and_b32 v28, v28, v30
        v_cmp_eq_u32 vcc, 0, v28
        s_cbranch_vccnz L_{name}''')
    a(f'''s_mul_i32 s38, s32, {IS}
    s_add_u32 s38, s38, s34
    s_add_u32 s39, s38, {OIB}
    v_add_u32 v8, s39, v2
    s_add_u32 s39, s38, {SIB}
    v_add_u32 v9, s39, v2
    s_lshr_b32 s39, s32, 3
    s_lshl_b32 s39, s39, 9
    s_add_u32 s39, s39, s34
    s_add_u32 s39, s39, {MLB}
    v_lshrrev_b32 v10, 2, v0
    v_lshl_add_u32 v10, v10, 4, s39
    s_lshl_b32 s38, s32, 10
    s_lshl_b32 s39, s31, 7
    s_add_u32 s38, s38, s39
    s_add_u32 s38, s38, {H3S_}
    v_and_b32 v11, 3, v0
    v_lshl_add_u32 v11, v6, 2, v11
    v_lshlrev_b32 v14, 2, v11
    v_lshl_add_u32 v11, v11, 3, s38
    v_mov_b32 v13, s35
    v_mov_b32 v15, 1
    v_mov_b32 v35, 0
    v_mov_b32 v39, 0
    v_mov_b32 v43, 0
    v_mov_b32 v47, 0
    v_mov_b32 v51, 0
    v_mov_b32 v55, 0
    s_mov_b32 s60, 0x000f000f
    s_mov_b32 s61, 0x000f000f''')
    if STREAM and not STREAM & 8: a('s_branch L_fin')
    lds_wait4('Q_vi', FV)
    ts(4)
    wp = 'sc1 nt' if WNT else 'sc1'
    LR = 48; HR = 32
    sl = [f'global_load_dwordx4 v[{40+4*i}:{43+4*i}], v9, s[28:29] offset:{1024*i} sc1' for i in range(2)]
    mll = [f'global_load_dwordx4 v[{LR+4*i}:{LR+4*i+3}], v10, s[28:29] offset:{256*i} sc1' for i in range(2)]
    ol = [f'global_load_dwordx4 v[{HR+4*i}:{HR+4*i+3}], v8, s[28:29] offset:{1024*i} sc1' for i in range(2)]
    for x in mll + ol + sl: a(x.replace('sc1', wp))
    if STREAM: a('s_waitcnt vmcnt(0)\ns_branch L_fin')
    lds_wait4('Q_fm', FM)
    npoll('ML', mll, [LR+3, LR+7], 3)
    ts(7)
    for x in ol: a(x)
    a(f'v_max_f32 v56, v{LR}, v{LR+4}')
    ror('v_max_f32', 56, (8, 4))
    allrows('v_max_f32', 56, 57)
    a(f'''v_sub_f32 v58, v{LR}, v56
    v_sub_f32 v59, v{LR+4}, v56
    v_exp_f32 v58, v58
    v_exp_f32 v59, v59''')
    for x in ol: a(x)
    a(f'''v_mul_f32 v56, v58, v{LR+1}
    v_fmac_f32 v56, v59, v{LR+5}''')
    ror('v_add_f32', 56, (8, 4))
    allrows('v_add_f32', 56, 57)
    a(f'''v_rcp_f32 v56, v56
    v_mul_f32 v58, v58, v56
    v_mul_f32 v59, v59, v56''')
    npoll('O', ol, [HR+3, HR+7], PSL)
    ts(8)
    unpack_to(63, HR); unpack_to(64, HR+4)
    for k in range(3): a(f'v_mul_f32 v{60+k}, v{HR+k}, v58')
    a('v_mul_f32 v63, v63, v58')
    for k in range(3): a(f'v_fmac_f32 v{60+k}, v{HR+4+k}, v59')
    a('v_fmac_f32 v63, v64, v59')
    scatter4(60)
    ror('v_add_f32', 60, (8, 4))
    a(f'''v_cvt_pk_bf16_f32 v60, v60, v60
    ds_write_b32 v14, v60 offset:{O16}
    ds_write_b32 v1, v15 offset:{FT}''')
    ts(9)
    npoll('S', sl, [43, 47], PSL)
    ts(5)
    sum2(60, 40, 44, 64)
    scatter4(60)
    ror('v_add_f32', 60, (8, 4), dst=12)
    a(f'''s_mov_b64 exec, s[60:61]
    global_store_dwordx2 v11, v[12:13], s[28:29] sc1
    ds_write_b32 v1, v15 offset:{FE}
    s_waitcnt lgkmcnt(0)''')
    ts(6)
    a('s_branch L_fin')

    a('L_M2:')
    a(consts)
    a(f'''s_mul_i32 s39, s32, {MHS}
    s_add_u32 s39, s39, s34
    s_add_u32 s39, s39, {MHB}
    v_add_u32 v18, s39, v2
    s_lshl_b32 s62, s32, 1
    s_add_u32 s63, s62, 1
    s_lshl_b32 s3, s33, 8
    v_mov_b32 v17, s3
    s_waitcnt vmcnt(16)''')
    ts(1)
    mktag(16)
    def layernorm(first):
        for d in range(4):
            a(f'v_lshlrev_b32 v{60+2*d}, 16, v{8+d}')
            a(f'v_and_b32 v{61+2*d}, 0xffff0000, v{8+d}')
        a('v_readfirstlane_b32 s38, v60')
        for k in range(8): a(f'v_subrev_f32 v{70+k}, s38, v{60+k}')
        a('v_add_f32 v68, v70, v71')
        a('v_mul_f32 v69, v70, v70')
        for k in range(1, 8):
            if k >= 2: a(f'v_add_f32 v68, v68, v{70+k}')
            a(f'v_fmac_f32 v69, v{70+k}, v{70+k}')
        wave_sum([68, 69])
        a(f'''v_readlane_b32 s39, v68, 63
        v_readlane_b32 s64, v69, 63
        v_mov_b32 v70, {hex(f2u(1.0/512))}
        v_mul_f32 v68, s39, v70
        v_mul_f32 v69, s64, v70
        v_fma_f32 v69, -v68, v68, v69
        v_max_f32 v69, 0, v69
        v_add_f32 v68, s38, v68''')
        rnd(68, 68); rnd(69, 69)
        a(f'v_add_f32 v69, {hex(f2u(1e-5))}, v69')
        rnd(69, 69)
        a('v_sqrt_f32 v69, v69')
        rnd(69, 69)
        a('v_rcp_f32 v69, v69')
        if first:
            a(f'v_mul_f32 v70, {hex(f2u(LOG2E / math.sqrt(128.0)))}, v69')
            a(f'v_or_b32 v70, 1, v70')
            a(f'ds_write_b32 v1, v70 offset:{RS}')
        for k in range(8): a(f'v_sub_f32 v{60+k}, v{60+k}, v68')
        for d in range(4): a(f'v_cvt_pk_bf16_f32 v{8+d}, v{60+2*d}, v{61+2*d}')
        for d in range(4):
            a(f'v_lshlrev_b32 v{60+2*d}, 16, v{8+d}')
            a(f'v_and_b32 v{61+2*d}, 0xffff0000, v{8+d}')
        for k in range(8): a(f'v_mul_f32 v{60+k}, v{60+k}, v69')
        for d in range(4): a(f'v_cvt_pk_bf16_f32 v{8+d}, v{60+2*d}, v{61+2*d}')
    layernorm(True)
    layernorm(False)
    for d in range(4):
        a(f'v_readlane_b32 s{66+d}, v{8+d}, s62')
        a(f'v_readlane_b32 s{70+d}, v{8+d}, s63')
    for c in range(4): a(f'v_mov_b32 v{80+c}, 0')
    a('v_mov_b32 v87, s35')
    a(f'''s_movk_i32 s62, 0x700
    s_min_u32 s3, s32, 27
    s_lshl_b32 s39, s3, 5
    s_add_u32 s38, s34, s39
    s_add_u32 s38, s38, {MHB}
    v_and_b32 v7, 1, v0
    v_lshrrev_b32 v13, 1, v0
    v_mul_u32_u24 v13, {MHS}, v13
    v_lshl_add_u32 v13, v7, 4, v13
    v_add_u32 v13, s38, v13
    s_mul_i32 s38, s31, 224
    s_lshl_b32 s39, s3, 3
    s_add_u32 s38, s38, s39
    v_lshl_add_u32 v12, v7, 2, v6
    v_add_lshl_u32 v12, v12, s38, 1
    s_lshl_b32 s38, s38, 10
    s_add_u32 s38, s38, 4096
    v_lshlrev_b32 v14, 10, v6
    v_lshl_add_u32 v14, v5, 4, v14
    v_add_u32 v14, s38, v14
    s_lshr_b32 s38, s32, 1
    s_lshl_b32 s38, s38, 5
    s_and_b32 s39, s32, 1
    s_lshl_b32 s39, s39, 2
    s_add_u32 s38, s38, s39
    v_and_b32 v3, 3, v0
    v_lshl_add_u32 v15, v3, 3, v6
    v_add_lshl_u32 v15, v15, s38, 1''')
    ts(2)
    for p in range(8):
        a(f's_waitcnt vmcnt({14 - 2*p})')
        ra = 20 + 4*p; rb = ra + 2
        for d in range(2):
            a(f'v_perm_b32 v{60+2*d}, v{rb+d}, v{ra+d}, s40')
            a(f'v_perm_b32 v{61+2*d}, v{rb+d}, v{ra+d}, s41')
        for c in range(4): a(f'v_dot2c_f32_bf16 v{80+c}, s{66+p}, v{60+c}')
    pack(84, 80, 81, 82, 83)
    a(f'''v_bfi_b32 v84, s62, v17, v84
    v_add_u32 v19, {MH2}, v18
    s_mov_b64 exec, s[60:61]
    global_store_dwordx4 v18, v[84:87], s[28:29]
    global_store_dwordx4 v19, v[84:87], s[28:29] sc1
    s_mov_b64 exec, -1
    s_setprio 1''')
    ts(3)
    if STREAM & 4: a('s_branch L_fin')
    W2 = 88
    a('v_mov_b32 v59, v12')
    a(f'''v_cmp_eq_u32 vcc, 1, v7
    v_mov_b32 v60, 0x0000ffff
    v_mov_b32 v61, 0xffff0000
    v_cndmask_b32 v60, v60, v61, vcc
    s_cmp_lt_u32 s32, 28
    s_cselect_b32 s38, -1, 0
    v_and_b32 v60, s38, v60
    v_bfe_u32 v61, v0, 1, 3''')
    for r in range(8):
        a(f'v_cmp_eq_u32 vcc, {r}, v61')
        a(f'v_cndmask_b32 v{44+r}, 0, v60, vcc')
    a(f'''s_lshl_b32 s39, s32, 6
    s_add_u32 s39, s39, s34
    s_add_u32 s39, s39, {MIB}
    v_lshrrev_b32 v8, 2, v5
    v_lshlrev_b32 v8, 1, v8
    v_and_b32 v9, 1, v6
    v_add_u32 v8, v8, v9
    v_lshrrev_b32 v9, 5, v0
    v_lshl_add_u32 v8, v9, 3, v8
    v_mul_u32_u24 v8, {IS}, v8
    v_lshl_add_u32 v8, v3, 4, v8
    v_add_u32 v8, s39, v8
    v_add_u32 v9, {16*IS}, v8
    s_mul_i32 s38, s32, {IS}
    s_add_u32 s38, s38, s34
    s_add_u32 s38, s38, {MIB}
    v_add_u32 v10, s38, v2
    s_lshl_b32 s38, s32, 10
    s_add_u32 s38, s38, {H3M_}
    s_lshl_b32 s39, s31, 7
    s_add_u32 s39, s39, s38
    v_lshl_add_u32 v11, v6, 2, v3
    v_lshlrev_b32 v11, 3, v11
    v_bfe_u32 v12, v0, 2, 2
    v_lshl_add_u32 v12, v12, 7, v11
    v_add_u32 v12, s38, v12
    v_add_u32 v11, s39, v11
    v_mov_b32 v39, s35
    v_mov_b32 v43, s35
    v_mov_b32 v65, s35
    s_mov_b32 s60, 0x000f000f
    s_mov_b32 s61, 0x000f000f
    v_mov_b32 v71, 0
    v_mov_b32 v75, 0''')
    if MWAIT: lds_wait4('M_vi', FV)
    a('s_mov_b32 s48, 0')
    ml = ['global_load_dwordx4 v[52:55], v13, s[28:29] sc1']
    mil = [f'global_load_dwordx4 v[{68+4*i}:{71+4*i}], v10, s[28:29] offset:{1024*i} sc1' for i in range(2)]
    snt = ' nt' if SNT else ''
    a(f'''global_load_ushort v56, v59, s[18:19]{snt}
    global_load_ushort v57, v15, s[4:5]{snt}
    global_load_ushort v58, v15, s[22:23]{snt}''')
    for x in ml: a(x + snt)
    for cb in range(4):
        for i in range(2):
            r = W2 + 8*cb + 4*i
            a(f'global_load_dwordx4 v[{r}:{r+3}], v14, s[20:21] offset:{256*cb + 4096*i - 4096} nt')
    for x in mil: a(x.replace('sc1', wp))
    swm = f'''s_cmp_eq_u32 s48, 16
    s_cselect_b32 s38, {MH2}, 0
    v_add_u32 v13, s38, v13'''
    poll('MH', ml, [55], 10, swm, slp=1)
    ts(4)
    if STREAM: a('s_branch L_fin')
    a(f'''v_bfe_u32 v60, v52, 8, 3
    v_cmp_ne_u32 s[52:53], s33, v60''')
    unpack3(52)
    a('v_lshlrev_b32 v56, 16, v56')
    scatter4(52)
    ror('v_add_f32', 52, (8, 4, 2))
    rnd(52, 52)
    a('v_add_f32 v52, v52, v56')
    rnd(52, 52)
    a(f'''s_mov_b32 s38, {hex(f2u(0.044715))}
    s_mov_b32 s39, {hex(f2u(-2.0 * math.sqrt(2.0 / math.pi) * LOG2E))}
    v_mul_f32 v53, v52, v52
    v_fma_f32 v53, v53, s38, 1.0
    v_mul_f32 v53, v53, v52
    v_mul_f32 v53, s39, v53
    v_exp_f32 v53, v53
    v_add_f32 v53, 1.0, v53
    v_rcp_f32 v53, v53
    v_mul_f32 v52, v52, v53
    v_cvt_pk_bf16_f32 v52, v52, v52''')
    for hi in range(2):
        for i in range(2):
            for r in range(4): a(f'v_and_b32_dpp v{20+8*hi+4*i+r}, v52, v{44+4*hi+r} quad_perm:[{i},{i},{i},{i}] row_mask:0xf bank_mask:0xf')
    a('s_waitcnt vmcnt(2)')
    for hi in range(2):
        for i in range(2):
            for pp in range(2):
                d = 76 + 4*pp; r = W2 + 8*(2*pp+hi) + 4*i; A = 20 + 8*hi + 4*i
                c = '0' if (hi == 0 and i == 0) else f'v[{d}:{d+3}]'
                a(f'v_mfma_f32_16x16x32_bf16 v[{d}:{d+3}], v[{A}:{A+3}], v[{r}:{r+3}], {c}')
    pack(36, 76, 77, 78, 79); pack(40, 80, 81, 82, 83)
    a('s_cmp_lg_u64 s[52:53], 0')
    store_mode('stm', ['global_store_dwordx4 v8, v[36:39], s[28:29]', 'global_store_dwordx4 v9, v[40:43], s[28:29]'])
    ts(5)
    npoll('MI', mil, [71, 75], PSL)
    ts(6)
    sum2(60, 68, 72, 66)
    scatter4(60)
    ror('v_add_f32', 60, (8, 4), dst=64)
    a(f'''s_mov_b64 exec, s[60:61]
    global_store_dwordx2 v11, v[64:65], s[28:29] sc1
    s_mov_b64 exec, -1
    s_and_b32 s38, s32, 7
    s_cmp_lg_u32 s38, s31
    s_cbranch_scc1 L_fin
    v_add_u32 v13, {(H3S_-H3M_) & 0xffffffff}, v12''')
    hm = [f'global_load_dwordx2 v[{20+2*i}:{21+2*i}], v12, s[28:29] offset:{512*i} sc1' for i in range(2)]
    hs = [f'global_load_dwordx2 v[{24+2*i}:{25+2*i}], v13, s[28:29] offset:{512*i} sc1' for i in range(2)]
    a(f'''v_lshlrev_b32 v57, 16, v57
    v_lshlrev_b32 v58, 16, v58
    v_mov_b32 v21, 0
    v_mov_b32 v23, 0
    v_mov_b32 v25, 0
    v_mov_b32 v27, 0
    s_mov_b32 s39, {hex(f2u(-LOG2E))}
    L_M_fe:
    s_sleep 1
    ds_read_b32 v28, v1 offset:{FE}''')
    spin_guard()
    a(f'''s_waitcnt lgkmcnt(0)
    v_cmp_eq_u32 vcc, 0, v28
    s_cbranch_vccnz L_M_fe
    s_setprio 3''')
    for x in hs: a(x)
    npoll('HM', hm, [21, 23], 1)
    ts(7)
    for x in hs: a(x)
    a('v_add_f32 v30, v20, v22')
    ror('v_add_f32', 30, (8, 4))
    rnd(30, 30)
    a('v_add_f32 v30, v30, v58')
    rnd(30, 30)
    a(f'''v_mul_f32 v31, s39, v30
    v_exp_f32 v31, v31
    v_add_f32 v31, 1.0, v31
    v_rcp_f32 v31, v31
    v_mul_f32 v30, v30, v31''')
    rnd(30, 30)
    npoll('HS', hs, [25, 27], 1)
    ts(8)
    a('v_add_f32 v32, v24, v26')
    ror('v_add_f32', 32, (8, 4))
    rnd(32, 32)
    a('v_mul_f32 v32, v32, v30')
    rnd(32, 32)
    a(f'''v_add_f32 v32, v32, v57
    v_cvt_pk_bf16_f32 v32, v32, v32
    s_mov_b64 exec, s[60:61]
    global_store_short v15, v32, s[24:25]
    s_cmp_lg_u32 s2, 0
    s_cbranch_scc1 L_fin
    s_mov_b64 exec, 1
    v_mov_b32 v4, s35
    global_store_dword v1, v4, s[28:29] sc1
    s_branch L_fin''')

    att[0] = True
    a('L_A2:')
    for i, e in enumerate(PPOS[:-1]):
        waitfor(('P1', e))
        if i == 0: ts(1)
        a(f'''v_cmp_ne_u32 s[50:51], s35, v{PB+3}
        v_cmp_ne_u32 s[52:53], s35, v{PB+7}
        s_or_b64 s[50:51], s[50:51], s[52:53]
        s_cbranch_scc0 L_P_ok''')
    sw = f'''s_cmp_eq_u32 s48, 16
    s_cselect_b32 s38, {H1S-H1F}, 0
    v_add_u32 v12, s38, v12''' if H1FAST else ''
    poll('P', pl, [PB+3, PB+7], len(issued) - 1 - issued.index(('P1', PPOS[-1])), sw)
    a('L_P_ok:')
    ts(2)
    a(f'''v_bfe_u32 v{T0}, v{PB}, 8, 3
    v_bfe_u32 v{T0+1}, v{PB+4}, 8, 3
    v_cmp_ne_u32 s[50:51], s33, v{T0}
    v_cmp_ne_u32 s[52:53], s33, v{T0+1}''')
    sum2(PR, PB, PB+4, PR+4)
    a('s_or_b64 s[50:51], s[50:51], s[52:53]')
    a('s_cselect_b32 s49, 3, 1')
    a(f'''v_mov_b32 v{T0}, s49
    v_permlane32_swap_b32 v{PR}, v{PR+2}
    v_permlane32_swap_b32 v{PR+1}, v{PR+3}
    v_add_f32 v{PR}, v{PR}, v{PR+2}
    v_add_f32 v{PR+1}, v{PR+1}, v{PR+3}
    v_cvt_pk_bf16_f32 v{PR}, v{PR}, v{PR+1}
    ds_write_b32 v17, v{PR}
    ds_write_b32 v16, v{T0} offset:{FQ}
    L_q_spin:
    ds_read_b128 v[{PR}:{PR+3}], v1 offset:{FQ}
    ds_read_b32 v{PR+4}, v1 offset:{RS}''')
    for t in range(4): a(f'ds_read_b128 v[{QF+4*t}:{QF+4*t+3}], v18 offset:{64*t}')
    spin_guard()
    for t in range(4):
        lgkm(3 - t)
        for b in range(2):
            c = '0' if t == 0 else f'v[{DS+4*b}:{DS+4*b+3}]'
            k = KR + 16*b + 4*t
            a(f'v_mfma_f32_16x16x32_bf16 v[{DS+4*b}:{DS+4*b+3}], v[{k}:{k+3}], v[{QF+4*t}:{QF+4*t+3}], {c}')
        if t == 0:
            a(f'''v_and_b32 v{T0}, v{PR}, v{PR+1}
            v_and_b32 v{T0+1}, v{PR+2}, v{PR+3}
            v_or3_b32 v{T0+2}, v{PR}, v{PR+1}, v{PR+2}
            v_and_b32 v{T0}, v{T0}, v{PR+4}''')
        if t == 1:
            a(f'''v_and_b32 v{T0}, v{T0}, v{T0+1}
            v_or_b32 v{T0+2}, v{T0+2}, v{PR+3}
            v_readfirstlane_b32 s38, v{T0}
            v_readfirstlane_b32 s49, v{T0+2}''')
    a(f'''s_bitcmp1_b32 s38, 0
    s_cbranch_scc0 L_q_spin
    s_and_b32 s49, s49, 2''')
    for k in range(8): a(f'v_mul_f32 v{DS+k}, v{DS+k}, v{PR+4}')
    a(f'''v_max3_f32 v{T0}, v{DS}, v{DS+1}, v{DS+2}
    v_max3_f32 v{T0+1}, v{DS+3}, v{DS+4}, v{DS+5}
    v_max3_f32 v{T0}, v{T0}, v{DS+6}, v{DS+7}
    v_max_f32 v{T0}, v{T0}, v{T0+1}''')
    allrows('v_max_f32', T0, T0+1)
    for k in range(8): a(f'v_sub_f32 v{DS+k}, v{DS+k}, v{T0}')
    for k in range(8): a(f'v_exp_f32 v{DS+k}, v{DS+k}')
    a(f'''v_add_f32 v{T0+1}, v{DS}, v{DS+1}
    v_add_f32 v{T0+2}, v{DS+2}, v{DS+3}
    v_add_f32 v{T0+3}, v{DS+4}, v{DS+5}
    v_add_f32 v{T0+1}, v{T0+1}, v{T0+2}
    v_add_f32 v{T0+2}, v{DS+6}, v{DS+7}
    v_add_f32 v{T0+1}, v{T0+1}, v{T0+3}
    v_add_f32 v{T0+1}, v{T0+1}, v{T0+2}''')
    allrows('v_add_f32', T0+1, T0+2)
    a(f'ds_write_b64 v19, v[{T0}:{T0+1}] offset:{MLX}')
    for k in range(4): a(f'v_cvt_pk_bf16_f32 v{PR+k}, v{DS+2*k}, v{DS+2*k+1}')
    for j in range(4):
        for k in range(4): a(f'v_cndmask_b32 v{QF+4*j+k}, 0, v{PR+k}, s[{66+2*j}:{67+2*j}]')
    ts(3)
    VT = KR
    def vperm(pr):
        ia = 2*pr; ib = ia + 1
        for d in range(4):
            a(f'v_perm_b32 v{VT + 4*(2*d) + pr}, v{VR+4*ib+d}, v{VR+4*ia+d}, s40')
            a(f'v_perm_b32 v{VT + 4*(2*d+1) + pr}, v{VR+4*ib+d}, v{VR+4*ia+d}, s41')
    FR = T0 + 12
    def mlx_read():
        a(f'''ds_read_b128 v[{T0}:{T0+3}], v24 offset:{MLX}
        ds_read_b128 v[{T0+4}:{T0+7}], v24 offset:{MLX+16}''')
    def mlx_check(nyoung):
        a('s_branch L_ml_chk')
        a('L_ml_spin:')
        mlx_read()
        spin_guard()
        a('s_waitcnt lgkmcnt(0)')
        a('L_ml_chk:')
        lgkm(nyoung)
        a(f'''v_min_u32 v{T0+8}, v{T0+1}, v{T0+3}
        v_min3_u32 v{T0+8}, v{T0+8}, v{T0+5}, v{T0+7}
        v_max3_f32 v{PR+4}, v{T0}, v{T0+2}, v{T0+4}
        v_cmp_eq_u32 vcc, 0, v{T0+8}
        v_max_f32 v{PR+4}, v{PR+4}, v{T0+6}
        s_cbranch_vccnz L_ml_spin''')
    def factors():
        for k in range(4): a(f'v_sub_f32 v{FR+k}, v{T0+2*k}, v{PR+4}')
        for k in range(4): a(f'v_exp_f32 v{FR+k}, v{FR+k}')
        a(f'v_mul_f32 v{PR+5}, v{FR}, v{T0+1}')
        for k in range(1, 4): a(f'v_fmac_f32 v{PR+5}, v{FR+k}, v{T0+2*k+1}')
    def mlstore():
        a('s_cmp_lg_u32 s49, 0')
        a('s_mov_b64 exec, 1')
        store_mode('stml', [f'global_store_dwordx4 v13, v[{PR+4}:{PR+7}], s[28:29]'])
        issued.append('MLst')
        a('s_mov_b64 exec, -1')
        a(f'ds_write_b32 v16, v25 offset:{FM}')
    a(f'v_mov_b32 v{PR+7}, s35')
    if MLEARLY:
        mlx_read()
        waitfor(('D', 9))
        vperm(0)
        mlx_check(0)
        factors()
        mlstore()
    for pr in range(1 if MLEARLY else 0, 4):
        waitfor(('D', 8 + 2*pr + 1))
        vperm(pr)
    ts(4)
    if not MLEARLY: mlx_read()
    for j in [0, 4, 1, 5, 2, 6, 3, 7]:
        h = j >> 2
        c = '0' if (j & 3) == 0 else f'v[{DS+4*h}:{DS+4*h+3}]'
        a(f'v_mfma_f32_16x16x32_bf16 v[{DS+4*h}:{DS+4*h+3}], v[{QF+4*(j&3)}:{QF+4*(j&3)+3}], v[{VT+4*j}:{VT+4*j+3}], {c}')
    a(f'''v_mov_b32 v{PR+3}, s35
    ds_write_b128 v21, v[{DS}:{DS+3}]
    ds_write_b128 v21, v[{DS+4}:{DS+7}] offset:{OH}
    ds_write_b32 v16, v25 offset:{FO}''')
    if not MLEARLY:
        mlx_check(3)
        factors()
        mlstore()
    a(f'''L_o_spin:
    ds_read_b128 v[{T0+8}:{T0+11}], v1 offset:{FO}''')
    for wp_ in range(4): a(f'ds_read_b128 v[{VR+4*wp_}:{VR+4*wp_+3}], v22 offset:{OW*wp_}')
    spin_guard()
    lgkm(3)
    a(f'''v_and_b32 v{T0+8}, v{T0+8}, v{T0+9}
    v_and_b32 v{T0+10}, v{T0+10}, v{T0+11}''')
    for k in range(4): a(f'v_mul_f32 v{VR+k}, v{VR+k}, v{FR}')
    a(f'v_and_b32 v{T0+8}, v{T0+8}, v{T0+10}')
    a(f'v_cmp_eq_u32 vcc, 0, v{T0+8}')
    for wp_ in range(1, 4):
        lgkm(3 - wp_)
        for k in range(4): a(f'v_fmac_f32 v{VR+k}, v{VR+4*wp_+k}, v{FR+wp_}')
    a('s_cbranch_vccnz L_o_spin')
    a('s_cmp_lg_u32 s49, 0')
    a('s_mov_b32 exec_hi, 0')
    pack(PR, VR, VR+1, VR+2, VR+3)
    store_mode('st2', [f'global_store_dwordx4 v10, v[{PR}:{PR+3}], s[28:29]'])
    a('s_mov_b64 exec, -1')
    ts(5)
    a(f'''v_lshlrev_b32 v15, 4, v6
    s_waitcnt vmcnt(2)''')
    ts(6)
    a(f'''L_t_spin:
    ds_read_b32 v{T0+4}, v1 offset:{FT}
    ds_read_b128 v[{T0}:{T0+3}], v15 offset:{O16}''')
    spin_guard()
    a(f'''s_waitcnt lgkmcnt(0)
    v_cmp_eq_u32 vcc, 0, v{T0+4}''')
    AT = QF; DO = DS
    for r in range(4): a(f'v_and_b32 v{AT+r}, v{T0}, v{28+r}')
    a('s_cbranch_vccnz L_t_spin')
    ts(7)
    for i in range(1, 5):
        if i < 4:
            for r in range(4): a(f'v_and_b32 v{AT+4*i+r}, v{T0+i}, v{28+r}')
        c = '0' if i == 1 else f'v[{DO}:{DO+3}]'
        a(f'v_mfma_f32_16x16x32_bf16 v[{DO}:{DO+3}], v[{AT+4*(i-1)}:{AT+4*(i-1)+3}], v[{WOR+4*(i-1)}:{WOR+4*(i-1)+3}], {c}')
    a('s_cmp_lg_u32 s49, 0')
    a('s_mov_b32 exec_hi, 0')
    pack(PR, DO, DO+1, DO+2, DO+3)
    store_mode('st3', [f'global_store_dwordx4 v11, v[{PR}:{PR+3}], s[28:29]'])
    ts(8)
    a('L_fin:')
    if DBG:
        a('''s_memrealtime s[100:101]
        s_mov_b64 exec, 1
        v_mov_b32 v1, 0
        s_waitcnt lgkmcnt(0)
        s_not_b32 s38, s76
        v_mov_b32 v2, s38
        global_atomic_umax v1, v2, s[26:27] offset:60
        v_mov_b32 v2, s76
        global_atomic_umax v1, v2, s[26:27] offset:56
        v_mov_b32 v2, s100
        global_atomic_umax v1, v2, s[26:27] offset:52
        s_cmp_lt_u32 s30, 2
        s_cbranch_scc1 L_dbg0''')
        for k in range(1, 9):
            a(f'v_mov_b32 v2, s{76+2*k}')
            a(f'global_atomic_umax v1, v2, s[26:27] offset:{4*(k-1)}')
        a('s_endpgm')
        a('L_dbg0:')
        a('s_cmp_eq_u32 s30, 1\ns_cbranch_scc1 L_end')
        for i, k in enumerate((1, 2, 3, 5)):
            a(f'v_mov_b32 v2, s{76+2*k}')
            a(f'global_atomic_umax v1, v2, s[26:27] offset:{4*(8+i)}')
    elif TS:
        att[0] = False
        if not TS2: ts(12)
        a(f'''s_mul_i32 s38, s2, 6
        s_add_u32 s38, s38, s30
        s_lshl_b32 s38, s38, 7
        s_add_u32 s38, s38, {TSB}
        s_mov_b64 exec, 1
        v_mov_b32 v1, s38
        s_waitcnt lgkmcnt(0)''')
        for k in range(13):
            a(f'v_mov_b32 v2, s{76+2*k}')
            a(f'global_store_dword v1, v2, s[28:29] offset:{4*k}')
        a('v_mov_b32 v2, s48')
        a(f'global_store_dword v1, v2, s[28:29] offset:64')
    a('s_endpgm')
    for t in tail: a(t)
    a('L_end:')
    a('s_endpgm')
    a.raw(f'''.section .rodata,"a"
.p2align 6
.amdhsa_kernel {KN}_kernel
  .amdhsa_next_free_vgpr 168
  .amdhsa_next_free_sgpr 102
  .amdhsa_accum_offset 168
  .amdhsa_group_segment_fixed_size 0
  .amdhsa_kernarg_size 104
  .amdhsa_user_sgpr_count 2
  .amdhsa_user_sgpr_kernarg_segment_ptr 1
  .amdhsa_system_sgpr_workgroup_id_x 1
.end_amdhsa_kernel''')
    return a.text()

if __name__ == '__main__':
    for spec in sys.argv[1:]:
        name, kw = spec.split('=', 1)
        kw = eval('dict(' + kw + ')')
        open(f'exp/{name}.s', 'w').write(gen(**kw))
```

```python
import sys, struct, math
sys.path.insert(0, 'gen')
from asmlib import Asm
KN = 'recurrent_scan__sliding_block_cached__mixer_channel_mlp__decode'
def f2u(f): return struct.unpack('<I', struct.pack('<f', f))[0]
GB0 = 0x10000; GA = 0x4C000
H1F = 0; H1S = 0x2000; MLB = 0x4000; MHB = 0x5000; MHS = 896; MH2 = 0x45000 - 0x5000
OIB = 0x10000; SIB = 0x22000; MIB = 0x34000; IS = 2176
H3S_ = 0x280000; H3M_ = 0x288000
TSB = 0x800000
QL = 0; QS = 320; FQ = 1280; RS = 1296; FV = 1312; FO = 1328; MLX = 1344; FT = 1472; FE = 1476; FM = 1488; O16 = 1536; OL = 2048; OH = 1152; OW = 2304; KL = 16384; LDSZ = 16384 + 32768
LOG2E = 1.4426950408889634
MAXPOLL = 400000

def gen(TS=False, TS2=False, WIN=6, PA=4, H1FAST=True, PF=True, SPREAD=True, WNT=False, MLEARLY=True, DBG=False, SLP=2, LATEF=True, PE=1, BURST=True, STREAM=0, NOP=False, ROT='g', NST=15, PSL=2, MWAIT=True, PPOS=(1, 4, 7), SNT=False, TOUCH=0, DIAG=0, DIAGG=-1):
    a = Asm()
    hdr = open('cdna_kernels/' + KN + '.s.ref').read().split('\n')
    for l in hdr:
        if l.startswith('; @launch'): break
        a.raw(l)
    a.raw(f'; @launch grid=(256,1,1) block=(384,1,1) lds={LDSZ}')
    a.raw('.amdgcn_target "amdgcn-amd-amdhsa--gfx950"\n.text')
    a.raw(f'.globl {KN}_kernel\n.p2align 8\n.type {KN}_kernel,@function\n{KN}_kernel:')
    att = [False]
    def ts2(k):
        if TS2 and k <= 12: a(f's_memrealtime s[{76+2*k}:{77+2*k}]')
    def ts(k):
        if TS2 and att[0]: return
        if TS: a(f's_memrealtime s[{76+2*k}:{77+2*k}]')
    def lgkm(n): a(f's_waitcnt lgkmcnt({0 if TS else n})')
    def wave_sum(vs):
        for sh in (1, 2, 4, 8):
            for x in vs: a(f'v_add_f32_dpp v{x}, v{x}, v{x} row_shr:{sh} row_mask:0xf bank_mask:0xf bound_ctrl:0')
        for x in vs: a(f'v_add_f32_dpp v{x}, v{x}, v{x} row_bcast:15 row_mask:0xa bank_mask:0xf')
        for x in vs: a(f'v_add_f32_dpp v{x}, v{x}, v{x} row_bcast:31 row_mask:0xc bank_mask:0xf')
    def ror(op, x, shs, dst=None):
        for i, sh in enumerate(shs):
            d = dst if (dst is not None and i == len(shs) - 1) else x
            a(f'{op}_dpp v{d}, v{x}, v{x} row_ror:{sh} row_mask:0xf bank_mask:0xf')
    def scatter4(r):
        a(f'''v_permlane32_swap_b32 v{r}, v{r+2}
        v_permlane32_swap_b32 v{r+1}, v{r+3}
        v_add_f32 v{r}, v{r}, v{r+2}
        v_add_f32 v{r+1}, v{r+1}, v{r+3}
        v_permlane16_swap_b32 v{r}, v{r+1}
        v_add_f32 v{r}, v{r}, v{r+1}''')
    def allrows(op, x, t):
        a(f'''v_mov_b32 v{t}, v{x}
        v_permlane32_swap_b32 v{x}, v{t}
        {op} v{x}, v{x}, v{t}
        v_mov_b32 v{t}, v{x}
        v_permlane16_swap_b32 v{x}, v{t}
        {op} v{x}, v{x}, v{t}''')
    def rnd(dst, src):
        a(f'v_cvt_pk_bf16_f32 v{dst}, v{src}, v{src}')
        a(f'v_and_b32 v{dst}, 0xffff0000, v{dst}')
    def mktag(ve):
        a(f'''v_readfirstlane_b32 s35, v{ve}
        s_add_u32 s35, s35, 0x9E3779B9
        s_or_b32 s35, s35, 1''')
    def pack(d, v0, v1, v2, v3):
        a(f'v_perm_b32 v{d}, v{v0}, v{v3}, s42')
        a(f'v_perm_b32 v{d+1}, v{v1}, v{v3}, s43')
        a(f'v_perm_b32 v{d+2}, v{v2}, v{v3}, s44')
    def unpack3(d):
        a(f'v_perm_b32 v{d+3}, v{d+1}, v{d}, s45')
        a(f'v_perm_b32 v{d+3}, v{d+2}, v{d+3}, s46')
    def poll(name, loads, tagregs, first_wait, pre='', slp=0):
        a(f's_waitcnt vmcnt({first_wait})')
        a(f's_branch L_{name}_chk')
        a(f'L_{name}_retry:')
        if slp: a(f's_sleep {slp}')
        a(f'''s_add_u32 s48, s48, 1
        {pre}
        s_mov_b64 exec, s[50:51]''')
        for x in loads: a(x)
        a(f'''s_mov_b64 exec, -1
        s_cmp_gt_u32 s48, {MAXPOLL}
        s_cbranch_scc1 L_end
        s_waitcnt vmcnt(0)
        L_{name}_chk:''')
        for i, r in enumerate(tagregs):
            a(f'v_cmp_ne_u32 s[{50+2*i}:{51+2*i}], s35, v{r}')
        if len(tagregs) == 1: a('s_cmp_lg_u64 s[50:51], 0')
        else:
            for i in range(1, len(tagregs)): a(f's_or_b64 s[50:51], s[50:51], s[{50+2*i}:{51+2*i}]')
        a(f's_cbranch_scc1 L_{name}_retry')
    def npoll(name, loads, tagregs, slp):
        a('s_mov_b64 s[50:51], -1')
        a(f'L_{name}_l:')
        a('s_mov_b64 exec, s[50:51]')
        for x in loads: a(x)
        a(f'''s_mov_b64 exec, -1
        s_add_u32 s48, s48, 1
        s_cmp_gt_u32 s48, {MAXPOLL}
        s_cbranch_scc1 L_end
        s_sleep {slp}
        s_waitcnt vmcnt(32)''')
        for i, r in enumerate(tagregs):
            a(f'v_cmp_ne_u32 s[{50+2*i}:{51+2*i}], s35, v{r}')
        for i in range(1, len(tagregs)): a(f's_or_b64 s[50:51], s[50:51], s[{50+2*i}:{51+2*i}]')
        a(f's_cbranch_scc1 L_{name}_l')
    def unpack_to(t, d):
        a(f'v_perm_b32 v{t}, v{d+1}, v{d}, s45')
        a(f'v_perm_b32 v{t}, v{d+2}, v{t}, s46')
    def sum2(dst, r0, r1, t):
        unpack_to(dst+3, r0); unpack_to(t, r1)
        for k in range(3): a(f'v_add_f32 v{dst+k}, v{r0+k}, v{r1+k}')
        a(f'v_add_f32 v{dst+3}, v{dst+3}, v{t}')
    tail = []
    def store_mode(name, ins):
        a(f's_cbranch_scc1 L_{name}_slow')
        for x in ins: a(x)
        a(f'L_{name}_done:')
        tail.append(f'L_{name}_slow:\n' + '\n'.join(x + ' sc1' for x in ins) + f'\ns_branch L_{name}_done')
    consts = '''s_mov_b32 s40, 0x05040100
        s_mov_b32 s41, 0x07060302
        s_mov_b32 s42, 0x07060501
        s_mov_b32 s43, 0x07060502
        s_mov_b32 s44, 0x07060503
        s_mov_b32 s45, 0x0c04000c
        s_mov_b32 s46, 0x04020100
        s_getreg_b32 s33, hwreg(HW_REG_XCC_ID)
        s_and_b32 s33, s33, 7'''
    spin = [0]
    def spin_guard():
        a(f'''s_add_u32 s48, s48, 1
        s_cmp_gt_u32 s48, {MAXPOLL}
        s_cbranch_scc1 L_end''')

    ts(0)
    if DIAG: a('s_memrealtime s[76:77]')
    a(f'''s_load_dwordx16 s[4:19], s[0:1], 0
    s_load_dwordx8 s[20:27], s[0:1], 64
    s_load_dwordx2 s[28:29], s[0:1], 96
    s_cmp_ge_u32 s2, 256
    s_cbranch_scc1 L_end
    v_lshrrev_b32 v1, 6, v0
    v_and_b32 v0, 63, v0
    s_getpc_b64 s[36:37]
    L_pc:
    v_readfirstlane_b32 s30, v1
    s_and_b32 s31, s2, 7
    s_lshr_b32 s32, s2, 3
    s_mul_i32 s38, s32, 6
    s_add_u32 s38, s38, s30
    s_lshl_b32 s38, s38, 7
    s_min_u32 s38, s38, L_end-L_pc
    v_mov_b32 v1, s38
    {'global_load_dword v26, v1, s[36:37]' if PF else 's_nop 0'}
    s_mul_i32 s34, s31, {GA}
    s_add_u32 s34, s34, {GB0}
    s_mov_b32 s48, 0
    v_mov_b32 v1, 0
    v_lshlrev_b32 v2, 4, v0
    v_and_b32 v5, 15, v0
    v_lshrrev_b32 v6, 4, v0
    s_cmp_eq_u32 s30, 1
    s_cbranch_scc1 L_M
    s_cmp_gt_u32 s30, 1
    s_cbranch_scc1 L_A''')
    a(f'''s_setprio 3
    v_and_b32 v4, 1, v0
    v_lshl_add_u32 v3, v6, 1, v4
    v_lshlrev_b32 v3, 5, v3
    s_and_b32 s38, s32, 3
    s_lshl_b32 s39, s38, 8
    v_add_u32 v3, s39, v3
    v_lshrrev_b32 v4, 3, v0
    v_lshlrev_b32 v4, 17, v4
    v_and_b32 v7, 7, v0
    v_lshl_add_u32 v4, v7, 4, v4
    s_lshl_b32 s39, s38, 20
    s_lshl_b32 s38, s31, 10
    s_add_u32 s39, s39, s38
    s_lshr_b32 s38, s32, 2
    s_lshl_b32 s38, s38, 7
    s_add_u32 s39, s39, s38
    v_add_u32 v4, s39, v4
    s_mov_b32 s38, 0x3f803f80
    s_movk_i32 s39, 0x2000''')
    for r in range(8, 16): a(f'v_mov_b32 v{r}, s38')
    a(f'''s_mov_b32 s60, 0x00030003
    s_mov_b32 s61, 0x00030003
    s_waitcnt lgkmcnt(0)''')
    for i in range(16):
        a(f'global_load_dwordx4 v[{20+4*i}:{23+4*i}], v4, s[10:11] nt')
        if i < 15: a('v_add_u32 v4, s39, v4')
        if i == 3:
            a('''s_mov_b64 exec, s[60:61]
            global_load_dwordx4 v[8:11], v3, s[4:5]
            global_load_dwordx4 v[12:15], v3, s[4:5] offset:16
            s_mov_b64 exec, -1
            global_load_dwordx4 v[148:151], v2, s[4:5]
            global_load_dword v16, v1, s[28:29] sc1''')
    a('s_barrier')
    a('s_branch L_Q2')
    a(f'''L_M:
    s_mul_i32 s38, s32, {16*3584}
    s_mul_i32 s39, s31, 448
    s_add_u32 s38, s38, s39
    v_lshl_add_u32 v4, v0, 3, s38
    s_movk_i32 s39, 7168
    s_mov_b32 s60, -1
    s_mov_b32 s61, 0x00ffffff
    v_lshlrev_b32 v3, 2, v0
    ds_write_b32 v3, v1 offset:{FQ}
    s_waitcnt lgkmcnt(0)
    global_load_dwordx4 v[8:11], v2, s[4:5]
    global_load_dword v16, v1, s[28:29] sc1
    s_barrier
    {'s_branch L_fin' if STREAM & 2 else ''}
    s_setprio 2
    s_mov_b64 exec, s[60:61]''')
    for p in range(8):
        a(f'global_load_dwordx2 v[{20+4*p}:{21+4*p}], v4, s[16:17] nt')
        a(f'global_load_dwordx2 v[{22+4*p}:{23+4*p}], v4, s[16:17] offset:3584 nt')
        if p < 7: a('v_add_u32 v4, s39, v4')
    a('s_mov_b64 exec, -1')
    a('s_branch L_M2')
    KR = 32; VR = 64; PR = 96; WOR = 104; QF = 120; DS = 136; T0 = 144; KS = 50; PB = 160
    rot = {'s2w': 's_lshl_b32 s3, s47, 1\ns_add_u32 s3, s3, s32', 'g': 's_mov_b32 s3, s31', 'g2w': 's_lshl_b32 s3, s47, 1\ns_add_u32 s3, s3, s31',
           '0': 's_mov_b32 s3, 0', '2w': 's_lshl_b32 s3, s47, 1', 's': 's_mov_b32 s3, s32', 'sh': 's_lshr_b32 s3, s32, 2\ns_add_u32 s3, s3, s31'}[ROT]
    a(f'''L_A:
    s_sub_u32 s47, s30, 2
    s_lshl_b32 s38, s31, 24
    s_lshl_b32 s39, s32, 15
    s_add_u32 s38, s38, s39
    s_lshl_b32 s39, s47, 10
    s_add_u32 s38, s38, s39
    s_add_u32 s38, s38, {0xF00000}
    s_lshl_b32 s39, s47, 13
    s_add_u32 s39, s39, {KL}
    s_mov_b32 m0, s39
    {rot}
    v_xor_b32 v7, v5, v6
    v_lshlrev_b32 v7, 4, v7
    v_lshl_add_u32 v{T0}, v6, 8, v7
    v_add_u32 v{T0}, s38, v{T0}
    v_xor_b32 v{T0+1}, 64, v{T0}
    v_xor_b32 v{T0+2}, 0x80, v{T0}
    v_xor_b32 v{T0+3}, 0xc0, v{T0}
    v_lshl_add_u32 v{T0+4}, v5, 8, v7
    v_add_u32 v{T0+4}, s39, v{T0+4}
    v_add_u32 v4, s3, v6
    v_and_b32 v4, 7, v4
    v_lshlrev_b32 v4, 12, v4
    v_lshl_add_u32 v4, v5, 4, v4
    v_add_u32 v4, s38, v4
    v_xor_b32 v27, 0x4000, v4
    s_waitcnt lgkmcnt(0)
    global_load_dword v23, v1, s[28:29] sc1''')
    if TOUCH:
        a(f'''s_mov_b64 exec, 1
        s_cmp_eq_u32 s47, 1
        s_cbranch_scc1 L_tch1
        s_cmp_eq_u32 s47, 2
        s_cbranch_scc1 L_tch2
        s_cmp_eq_u32 s47, 3
        s_cbranch_scc1 L_tch3
        s_lshl_b32 s39, s31, 5
        s_add_u32 s39, s39, s32
        s_lshl_b32 s39, s39, 14
        v_mov_b32 v8, s39
        global_load_dword v26, v4, s[8:9] nt
        global_load_dword v26, v8, s[12:13] nt
        global_load_dword v26, v{T0}, s[6:7] nt
        s_branch L_tchd
        L_tch1:
        s_mul_i32 s39, s31, {224*1024}
        v_mov_b32 v8, s39
        global_load_dword v26, v8, s[20:21] nt
        global_load_dword v26, v1, s[18:19]
        global_load_dword v26, v1, s[22:23]
        s_branch L_tchd
        L_tch2:
        v_mov_b32 v8, {H3S_}
        v_mov_b32 v9, s34
        global_load_dword v26, v1, s[24:25]
        global_load_dword v26, v8, s[28:29] offset:-128
        global_load_dword v26, v9, s[28:29] offset:-128
        s_branch L_tchd
        L_tch3:
        s_add_u32 s39, s34, {SIB}
        v_mov_b32 v8, s39
        s_add_u32 s39, s34, {MIB}
        v_mov_b32 v9, s39
        s_add_u32 s39, s34, {OIB}
        v_mov_b32 v10, s39
        global_load_dword v26, v8, s[28:29] offset:-128
        global_load_dword v26, v9, s[28:29] offset:-128
        global_load_dword v26, v10, s[28:29] offset:-128
        L_tchd:
        s_mov_b64 exec, -1''')
    for i in range(8):
        a(f'''s_add_u32 s39, s3, {i}
        s_and_b32 s39, s39, 7
        s_lshl_b32 s39, s39, 12
        s_add_u32 s{KS+2*i}, s6, s39
        s_addc_u32 s{KS+2*i+1}, s7, 0''')
    a('s_barrier')
    D = []
    for i in range(8):
        pre = 's_add_u32 m0, m0, 1024\ns_nop 0\n' if i > 0 else ''
        D.append(pre + f'global_load_lds_dwordx4 v{T0+(i&3)}, s[{KS+2*i}:{KS+2*i+1}] nt')
    for e in range(8):
        r = VR + 4*e
        D.append(f'global_load_dwordx4 v[{r}:{r+3}], v{4 if e < 4 else 27}, s[8:9] offset:{256*(e&3)} nt')
    for i in range(4):
        D.append(f'global_load_dwordx4 v[{WOR+4*i}:{WOR+4*i+3}], v{9 if i < 2 else 14}, s[12:13] offset:{4096*(i&1)-4096} nt')
    pl = [f'global_load_dwordx4 v[{PR}:{PR+3}], v12, s[28:29] sc1', f'global_load_dwordx4 v[{PR+4}:{PR+7}], v12, s[28:29] offset:256 sc1']
    setup = f'''s_lshl_b32 s39, s47, 11
    s_add_u32 s38, s34, s39
    s_add_u32 s38, s38, {H1F if H1FAST else H1S}
    v_and_b32 v8, 1, v6
    v_lshlrev_b32 v12, 10, v8
    v_lshrrev_b32 v9, 5, v0
    v_lshl_add_u32 v12, v9, 9, v12
    v_lshl_add_u32 v12, v5, 4, v12
    v_add_u32 v12, s38, v12
    s_mul_i32 s38, s47, {QS}
    v_lshlrev_b32 v17, 7, v8
    v_lshl_add_u32 v17, v9, 2, v17
    v_and_b32 v7, 7, v0
    v_lshl_add_u32 v17, v7, 4, v17
    v_bfe_u32 v7, v0, 3, 1
    v_lshl_add_u32 v17, v7, 3, v17
    v_add_u32 v17, s38, v17
    s_mul_i32 s38, s47, {8*IS}
    s_lshl_b32 s39, s32, 6
    s_add_u32 s38, s38, s39
    s_add_u32 s38, s38, s34
    s_add_u32 s39, s38, {SIB}
    v_lshrrev_b32 v7, 2, v5
    v_lshl_add_u32 v11, v7, 1, v8
    v_mul_u32_u24 v11, {IS}, v11
    v_and_b32 v3, 3, v0
    v_lshl_add_u32 v11, v3, 4, v11
    v_add_u32 v11, s39, v11
    s_add_u32 s39, s38, {OIB}
    v_bfe_u32 v10, v0, 2, 3
    v_mul_u32_u24 v10, {IS}, v10
    v_lshl_add_u32 v10, v3, 4, v10
    v_add_u32 v10, s39, v10
    v_mul_u32_u24 v18, {QS}, v7
    v_lshl_add_u32 v18, v6, 4, v18
    s_lshl_b32 s38, s47, 3
    v_lshl_add_u32 v19, v7, 5, s38
    s_mul_i32 s38, s47, {OW}
    s_add_u32 s38, s38, {OL}
    v_add_u32 v21, s38, v2
    s_lshl_b32 s38, s47, 8
    s_add_u32 s38, s38, {OL}
    v_and_b32 v7, 1, v0
    v_mul_u32_u24 v22, {OH}, v7
    v_bfe_u32 v20, v0, 1, 4
    v_lshl_add_u32 v22, v20, 4, v22
    v_add_u32 v22, s38, v22
    s_lshl_b32 s38, s31, 5
    s_add_u32 s38, s38, s32
    s_lshl_b32 s38, s38, 14
    s_lshl_b32 s39, s47, 8
    s_add_u32 s38, s38, s39
    s_add_u32 s38, s38, 4096
    v_lshlrev_b32 v14, 10, v6
    v_lshl_add_u32 v14, v5, 4, v14
    v_add_u32 v9, s38, v14
    v_add_u32 v14, 0x2000, v9
    s_lshl_b32 s39, s47, 9
    s_lshl_b32 s38, s32, 4
    s_add_u32 s39, s39, s38
    s_add_u32 s39, s39, s34
    s_add_u32 s39, s39, {MLB}
    v_mov_b32 v13, s39
    s_lshl_b32 s38, s47, 2
    v_mov_b32 v16, s38
    s_lshl_b32 s38, s47, 5
    v_mov_b32 v24, s38
    v_mov_b32 v25, 1
    {consts}
    v_cmp_eq_u32 vcc, 1, v7
    v_mov_b32 v{DS}, 0x0000ffff
    v_mov_b32 v{DS+1}, 0xffff0000
    v_cndmask_b32 v{DS}, v{DS}, v{DS+1}, vcc
    v_bfe_u32 v{DS+2}, v0, 1, 3'''.split('\n')
    for r in range(4):
        setup += [f'v_cmp_eq_u32 vcc, {r}, v{DS+2}', f'v_cndmask_b32 v{28+r}, 0, v{DS}, vcc']
    for j in range(4):
        setup += [f's_mov_b32 s{66+2*j}, {hex(0x11111111 << j)}', f's_mov_b32 s{67+2*j}, {hex(0x11111111 << j)}']
    setup += [f'v_xor_b32 v{T0+5}, 64, v{T0+4}', f'v_xor_b32 v{T0+6}, 0x80, v{T0+4}', f'v_xor_b32 v{T0+7}, 0xc0, v{T0+4}']
    issued = []
    def issue(tag, ins): a(ins); issued.append(tag)
    def waitfor(tag): a(f's_waitcnt vmcnt({len(issued) - 1 - issued.index(tag)})')
    chunk = (len(setup) + WIN - 1) // WIN if SPREAD else 0
    for n in range(WIN):
        issue(('D', n), D[n])
        if SPREAD: a('\n'.join(setup[n*chunk:(n+1)*chunk]))
    if not SPREAD: a('\n'.join(setup))
    nstop = NST if BURST else 19
    a(f'v_mov_b32 v{PB+3}, 0\nv_mov_b32 v{PB+7}, 0')
    pl = [x.replace(f'v[{PR}:{PR+3}]', f'v[{PB}:{PB+3}]').replace(f'v[{PR+4}:{PR+7}]', f'v[{PB+4}:{PB+7}]') for x in pl]
    for n in range(WIN, len(D)):
        if n <= nstop:
            waitfor(('D', n - WIN))
            if not STREAM: ts2(n - WIN)
            elif n - WIN >= 7: ts2(n - WIN - 7)
        if n == WIN: mktag(23)
        issue(('D', n), D[n])
        if n - 8 in PPOS and not NOP:
            issue(('P0', n - 8), pl[0]); issue(('P1', n - 8), pl[1])
        if n == 15: a(f'ds_write_b32 v16, v25 offset:{FV}')
        if n - WIN == 7:
            for b in range(2):
                for t in range(4):
                    r = KR + 16*b + 4*t
                    a(f'ds_read_b128 v[{r}:{r+3}], v{T0+4+t} offset:{4096*b}')
    if STREAM:
        for n in range(min(nstop, 19) - WIN + 1, 20):
            waitfor(('D', n))
            ts2(n - 7)
        a('s_branch L_fin')
        issued += [('P1', e) for e in PPOS]
    a('s_branch L_A2')

    a('L_Q2:')
    a(consts)
    a(f'''s_lshl_b32 s3, s33, 8
    v_mov_b32 v17, s3
    s_movk_i32 s62, 0x700
    s_lshl_b32 s39, s32, 8
    s_add_u32 s39, s39, s34
    v_add_u32 v18, s39, v2
    v_add_u32 v3, {H1S-H1F}, v18
    v_mov_b32 v19, 0
    s_waitcnt vmcnt(12)''')
    ts(1)
    for r in range(148, 152): a(f'v_dot2c_f32_bf16 v19, s38, v{r}')
    mktag(16)
    wave_sum([19])
    a(f'''v_readlane_b32 s63, v19, 63
    v_mov_b32 v19, {hex(f2u(1.0/512))}
    v_mul_f32 v19, s63, v19''')
    rnd(19, 19)
    T = 84; DQ = 116
    for h in range(2):
        for pr in range(4):
            ia = 8*h + 2*pr; ib = ia + 1
            if ib > 3: a(f's_waitcnt vmcnt({15 - ib})')
            for d in range(4):
                a(f'v_perm_b32 v{T + 4*(2*d) + pr}, v{20+4*ib+d}, v{20+4*ia+d}, s40')
                a(f'v_perm_b32 v{T + 4*(2*d+1) + pr}, v{20+4*ib+d}, v{20+4*ia+d}, s41')
        if h == 1: ts(2)
        for j in range(8):
            c = '0' if h == 0 else f'v[{DQ+4*j}:{DQ+4*j+3}]'
            a(f'v_mfma_f32_16x16x32_bf16 v[{DQ+4*j}:{DQ+4*j+3}], v[{8+4*h}:{11+4*h}], v[{T+4*j}:{T+4*j+3}], {c}')
    a('v_mov_b32 v23, s35\nv_mov_b32 v27, s35')
    for j in range(8):
        d = DQ + 4*j
        a(f'v_add_f32_dpp v{d}, v{d+1}, v{d} row_ror:8 row_mask:0xf bank_mask:0xf')
        a(f'v_add_f32_dpp v{d+2}, v{d+2}, v{d+2} row_ror:8 row_mask:0xf bank_mask:0xf')
        a(f'v_fma_f32 v{d}, -v19, v{d+2}, v{d}')
    for hq in range(2):
        o = 20 + 4*hq
        pack(o, DQ + 16*hq, DQ + 16*hq + 4, DQ + 16*hq + 8, DQ + 16*hq + 12)
        a(f'v_bfi_b32 v{o}, s62, v17, v{o}')
    a('s_mov_b64 exec, 0xff')
    if H1FAST:
        a(f'''global_store_dwordx4 v18, v[20:23], s[28:29]
        global_store_dwordx4 v18, v[24:27], s[28:29] offset:128''')
    a(f'''global_store_dwordx4 v3, v[20:23], s[28:29] sc1
    global_store_dwordx4 v3, v[24:27], s[28:29] offset:128 sc1
    s_mov_b64 exec, -1''')
    ts(3)
    def lds_wait4(name, off):
        a(f'''L_{name}:
        s_sleep 1
        ds_read_b128 v[28:31], v1 offset:{off}''')
        spin_guard()
        a(f'''s_waitcnt lgkmcnt(0)
        v_and_b32 v28, v28, v29
        v_and_b32 v30, v30, v31
        v_and_b32 v28, v28, v30
        v_cmp_eq_u32 vcc, 0, v28
        s_cbranch_vccnz L_{name}''')
    a(f'''s_mul_i32 s38, s32, {IS}
    s_add_u32 s38, s38, s34
    s_add_u32 s39, s38, {OIB}
    v_add_u32 v8, s39, v2
    s_add_u32 s39, s38, {SIB}
    v_add_u32 v9, s39, v2
    s_lshr_b32 s39, s32, 3
    s_lshl_b32 s39, s39, 9
    s_add_u32 s39, s39, s34
    s_add_u32 s39, s39, {MLB}
    v_lshrrev_b32 v10, 2, v0
    v_lshl_add_u32 v10, v10, 4, s39
    s_lshl_b32 s38, s32, 10
    s_lshl_b32 s39, s31, 7
    s_add_u32 s38, s38, s39
    s_add_u32 s38, s38, {H3S_}
    v_and_b32 v11, 3, v0
    v_lshl_add_u32 v11, v6, 2, v11
    v_lshlrev_b32 v14, 2, v11
    v_lshl_add_u32 v11, v11, 3, s38
    v_mov_b32 v13, s35
    v_mov_b32 v15, 1
    v_mov_b32 v35, 0
    v_mov_b32 v39, 0
    v_mov_b32 v43, 0
    v_mov_b32 v47, 0
    v_mov_b32 v51, 0
    v_mov_b32 v55, 0
    s_mov_b32 s60, 0x000f000f
    s_mov_b32 s61, 0x000f000f''')
    if STREAM and not STREAM & 8: a('s_branch L_fin')
    lds_wait4('Q_vi', FV)
    ts(4)
    wp = 'sc1 nt' if WNT else 'sc1'
    LR = 48; HR = 32
    sl = [f'global_load_dwordx4 v[{40+4*i}:{43+4*i}], v9, s[28:29] offset:{1024*i} sc1' for i in range(2)]
    mll = [f'global_load_dwordx4 v[{LR+4*i}:{LR+4*i+3}], v10, s[28:29] offset:{256*i} sc1' for i in range(2)]
    ol = [f'global_load_dwordx4 v[{HR+4*i}:{HR+4*i+3}], v8, s[28:29] offset:{1024*i} sc1' for i in range(2)]
    for x in mll + ol + sl: a(x.replace('sc1', wp))
    if STREAM: a('s_waitcnt vmcnt(0)\ns_branch L_fin')
    lds_wait4('Q_fm', FM)
    npoll('ML', mll, [LR+3, LR+7], 3)
    ts(7)
    for x in ol: a(x)
    a(f'v_max_f32 v56, v{LR}, v{LR+4}')
    ror('v_max_f32', 56, (8, 4))
    allrows('v_max_f32', 56, 57)
    a(f'''v_sub_f32 v58, v{LR}, v56
    v_sub_f32 v59, v{LR+4}, v56
    v_exp_f32 v58, v58
    v_exp_f32 v59, v59''')
    for x in ol: a(x)
    a(f'''v_mul_f32 v56, v58, v{LR+1}
    v_fmac_f32 v56, v59, v{LR+5}''')
    ror('v_add_f32', 56, (8, 4))
    allrows('v_add_f32', 56, 57)
    a(f'''v_rcp_f32 v56, v56
    v_mul_f32 v58, v58, v56
    v_mul_f32 v59, v59, v56''')
    npoll('O', ol, [HR+3, HR+7], PSL)
    ts(8)
    unpack_to(63, HR); unpack_to(64, HR+4)
    for k in range(3): a(f'v_mul_f32 v{60+k}, v{HR+k}, v58')
    a('v_mul_f32 v63, v63, v58')
    for k in range(3): a(f'v_fmac_f32 v{60+k}, v{HR+4+k}, v59')
    a('v_fmac_f32 v63, v64, v59')
    scatter4(60)
    ror('v_add_f32', 60, (8, 4))
    a(f'''v_cvt_pk_bf16_f32 v60, v60, v60
    ds_write_b32 v14, v60 offset:{O16}
    ds_write_b32 v1, v15 offset:{FT}''')
    ts(9)
    npoll('S', sl, [43, 47], PSL)
    ts(5)
    sum2(60, 40, 44, 64)
    scatter4(60)
    ror('v_add_f32', 60, (8, 4), dst=12)
    a(f'''s_mov_b64 exec, s[60:61]
    global_store_dwordx2 v11, v[12:13], s[28:29] sc1
    ds_write_b32 v1, v15 offset:{FE}
    s_waitcnt lgkmcnt(0)''')
    ts(6)
    a('s_branch L_fin')

    a('L_M2:')
    a(consts)
    a(f'''s_mul_i32 s39, s32, {MHS}
    s_add_u32 s39, s39, s34
    s_add_u32 s39, s39, {MHB}
    v_add_u32 v18, s39, v2
    s_lshl_b32 s62, s32, 1
    s_add_u32 s63, s62, 1
    s_lshl_b32 s3, s33, 8
    v_mov_b32 v17, s3
    s_waitcnt vmcnt(16)''')
    ts(1)
    mktag(16)
    def layernorm(first):
        for d in range(4):
            a(f'v_lshlrev_b32 v{60+2*d}, 16, v{8+d}')
            a(f'v_and_b32 v{61+2*d}, 0xffff0000, v{8+d}')
        a('v_readfirstlane_b32 s38, v60')
        for k in range(8): a(f'v_subrev_f32 v{70+k}, s38, v{60+k}')
        a('v_add_f32 v68, v70, v71')
        a('v_mul_f32 v69, v70, v70')
        for k in range(1, 8):
            if k >= 2: a(f'v_add_f32 v68, v68, v{70+k}')
            a(f'v_fmac_f32 v69, v{70+k}, v{70+k}')
        wave_sum([68, 69])
        a(f'''v_readlane_b32 s39, v68, 63
        v_readlane_b32 s64, v69, 63
        v_mov_b32 v70, {hex(f2u(1.0/512))}
        v_mul_f32 v68, s39, v70
        v_mul_f32 v69, s64, v70
        v_fma_f32 v69, -v68, v68, v69
        v_max_f32 v69, 0, v69
        v_add_f32 v68, s38, v68''')
        rnd(68, 68); rnd(69, 69)
        a(f'v_add_f32 v69, {hex(f2u(1e-5))}, v69')
        rnd(69, 69)
        a('v_sqrt_f32 v69, v69')
        rnd(69, 69)
        a('v_rcp_f32 v69, v69')
        if first:
            a(f'v_mul_f32 v70, {hex(f2u(LOG2E / math.sqrt(128.0)))}, v69')
            a(f'v_or_b32 v70, 1, v70')
            a(f'ds_write_b32 v1, v70 offset:{RS}')
        for k in range(8): a(f'v_sub_f32 v{60+k}, v{60+k}, v68')
        for d in range(4): a(f'v_cvt_pk_bf16_f32 v{8+d}, v{60+2*d}, v{61+2*d}')
        for d in range(4):
            a(f'v_lshlrev_b32 v{60+2*d}, 16, v{8+d}')
            a(f'v_and_b32 v{61+2*d}, 0xffff0000, v{8+d}')
        for k in range(8): a(f'v_mul_f32 v{60+k}, v{60+k}, v69')
        for d in range(4): a(f'v_cvt_pk_bf16_f32 v{8+d}, v{60+2*d}, v{61+2*d}')
    layernorm(True)
    layernorm(False)
    for d in range(4):
        a(f'v_readlane_b32 s{66+d}, v{8+d}, s62')
        a(f'v_readlane_b32 s{70+d}, v{8+d}, s63')
    for c in range(4): a(f'v_mov_b32 v{80+c}, 0')
    a('v_mov_b32 v87, s35')
    a(f'''s_movk_i32 s62, 0x700
    s_min_u32 s3, s32, 27
    s_lshl_b32 s39, s3, 5
    s_add_u32 s38, s34, s39
    s_add_u32 s38, s38, {MHB}
    v_and_b32 v7, 1, v0
    v_lshrrev_b32 v13, 1, v0
    v_mul_u32_u24 v13, {MHS}, v13
    v_lshl_add_u32 v13, v7, 4, v13
    v_add_u32 v13, s38, v13
    s_mul_i32 s38, s31, 224
    s_lshl_b32 s39, s3, 3
    s_add_u32 s38, s38, s39
    v_lshl_add_u32 v12, v7, 2, v6
    v_add_lshl_u32 v12, v12, s38, 1
    s_lshl_b32 s38, s38, 10
    s_add_u32 s38, s38, 4096
    v_lshlrev_b32 v14, 10, v6
    v_lshl_add_u32 v14, v5, 4, v14
    v_add_u32 v14, s38, v14
    s_lshr_b32 s38, s32, 1
    s_lshl_b32 s38, s38, 5
    s_and_b32 s39, s32, 1
    s_lshl_b32 s39, s39, 2
    s_add_u32 s38, s38, s39
    v_and_b32 v3, 3, v0
    v_lshl_add_u32 v15, v3, 3, v6
    v_add_lshl_u32 v15, v15, s38, 1''')
    ts(2)
    for p in range(8):
        a(f's_waitcnt vmcnt({14 - 2*p})')
        ra = 20 + 4*p; rb = ra + 2
        for d in range(2):
            a(f'v_perm_b32 v{60+2*d}, v{rb+d}, v{ra+d}, s40')
            a(f'v_perm_b32 v{61+2*d}, v{rb+d}, v{ra+d}, s41')
        for c in range(4): a(f'v_dot2c_f32_bf16 v{80+c}, s{66+p}, v{60+c}')
    pack(84, 80, 81, 82, 83)
    a(f'''v_bfi_b32 v84, s62, v17, v84
    v_add_u32 v19, {MH2}, v18
    s_mov_b64 exec, s[60:61]
    global_store_dwordx4 v18, v[84:87], s[28:29]
    global_store_dwordx4 v19, v[84:87], s[28:29] sc1
    s_mov_b64 exec, -1
    s_setprio 1''')
    ts(3)
    if STREAM & 4: a('s_branch L_fin')
    W2 = 88
    a('v_mov_b32 v59, v12')
    a(f'''v_cmp_eq_u32 vcc, 1, v7
    v_mov_b32 v60, 0x0000ffff
    v_mov_b32 v61, 0xffff0000
    v_cndmask_b32 v60, v60, v61, vcc
    s_cmp_lt_u32 s32, 28
    s_cselect_b32 s38, -1, 0
    v_and_b32 v60, s38, v60
    v_bfe_u32 v61, v0, 1, 3''')
    for r in range(8):
        a(f'v_cmp_eq_u32 vcc, {r}, v61')
        a(f'v_cndmask_b32 v{44+r}, 0, v60, vcc')
    a(f'''s_lshl_b32 s39, s32, 6
    s_add_u32 s39, s39, s34
    s_add_u32 s39, s39, {MIB}
    v_lshrrev_b32 v8, 2, v5
    v_lshlrev_b32 v8, 1, v8
    v_and_b32 v9, 1, v6
    v_add_u32 v8, v8, v9
    v_lshrrev_b32 v9, 5, v0
    v_lshl_add_u32 v8, v9, 3, v8
    v_mul_u32_u24 v8, {IS}, v8
    v_lshl_add_u32 v8, v3, 4, v8
    v_add_u32 v8, s39, v8
    v_add_u32 v9, {16*IS}, v8
    s_mul_i32 s38, s32, {IS}
    s_add_u32 s38, s38, s34
    s_add_u32 s38, s38, {MIB}
    v_add_u32 v10, s38, v2
    s_lshl_b32 s38, s32, 10
    s_add_u32 s38, s38, {H3M_}
    s_lshl_b32 s39, s31, 7
    s_add_u32 s39, s39, s38
    v_lshl_add_u32 v11, v6, 2, v3
    v_lshlrev_b32 v11, 3, v11
    v_bfe_u32 v12, v0, 2, 2
    v_lshl_add_u32 v12, v12, 7, v11
    v_add_u32 v12, s38, v12
    v_add_u32 v11, s39, v11
    v_mov_b32 v39, s35
    v_mov_b32 v43, s35
    v_mov_b32 v65, s35
    s_mov_b32 s60, 0x000f000f
    s_mov_b32 s61, 0x000f000f
    v_mov_b32 v71, 0
    v_mov_b32 v75, 0''')
    if MWAIT: lds_wait4('M_vi', FV)
    a('s_mov_b32 s48, 0')
    ml = ['global_load_dwordx4 v[52:55], v13, s[28:29] sc1']
    mil = [f'global_load_dwordx4 v[{68+4*i}:{71+4*i}], v10, s[28:29] offset:{1024*i} sc1' for i in range(2)]
    snt = ' nt' if SNT else ''
    a(f'''global_load_ushort v56, v59, s[18:19]{snt}
    global_load_ushort v57, v15, s[4:5]{snt}
    global_load_ushort v58, v15, s[22:23]{snt}''')
    for x in ml: a(x + snt)
    for cb in range(4):
        for i in range(2):
            r = W2 + 8*cb + 4*i
            a(f'global_load_dwordx4 v[{r}:{r+3}], v14, s[20:21] offset:{256*cb + 4096*i - 4096} nt')
    for x in mil: a(x.replace('sc1', wp))
    swm = f'''s_cmp_eq_u32 s48, 16
    s_cselect_b32 s38, {MH2}, 0
    v_add_u32 v13, s38, v13'''
    poll('MH', ml, [55], 10, swm, slp=1)
    ts(4)
    if STREAM: a('s_branch L_fin')
    a(f'''v_bfe_u32 v60, v52, 8, 3
    v_cmp_ne_u32 s[52:53], s33, v60''')
    unpack3(52)
    a('v_lshlrev_b32 v56, 16, v56')
    scatter4(52)
    ror('v_add_f32', 52, (8, 4, 2))
    rnd(52, 52)
    a('v_add_f32 v52, v52, v56')
    rnd(52, 52)
    a(f'''s_mov_b32 s38, {hex(f2u(0.044715))}
    s_mov_b32 s39, {hex(f2u(-2.0 * math.sqrt(2.0 / math.pi) * LOG2E))}
    v_mul_f32 v53, v52, v52
    v_fma_f32 v53, v53, s38, 1.0
    v_mul_f32 v53, v53, v52
    v_mul_f32 v53, s39, v53
    v_exp_f32 v53, v53
    v_add_f32 v53, 1.0, v53
    v_rcp_f32 v53, v53
    v_mul_f32 v52, v52, v53
    v_cvt_pk_bf16_f32 v52, v52, v52''')
    for hi in range(2):
        for i in range(2):
            for r in range(4): a(f'v_and_b32_dpp v{20+8*hi+4*i+r}, v52, v{44+4*hi+r} quad_perm:[{i},{i},{i},{i}] row_mask:0xf bank_mask:0xf')
    a('s_waitcnt vmcnt(2)')
    for hi in range(2):
        for i in range(2):
            for pp in range(2):
                d = 76 + 4*pp; r = W2 + 8*(2*pp+hi) + 4*i; A = 20 + 8*hi + 4*i
                c = '0' if (hi == 0 and i == 0) else f'v[{d}:{d+3}]'
                a(f'v_mfma_f32_16x16x32_bf16 v[{d}:{d+3}], v[{A}:{A+3}], v[{r}:{r+3}], {c}')
    pack(36, 76, 77, 78, 79); pack(40, 80, 81, 82, 83)
    a('s_cmp_lg_u64 s[52:53], 0')
    store_mode('stm', ['global_store_dwordx4 v8, v[36:39], s[28:29]', 'global_store_dwordx4 v9, v[40:43], s[28:29]'])
    ts(5)
    npoll('MI', mil, [71, 75], PSL)
    ts(6)
    sum2(60, 68, 72, 66)
    scatter4(60)
    ror('v_add_f32', 60, (8, 4), dst=64)
    a(f'''s_mov_b64 exec, s[60:61]
    global_store_dwordx2 v11, v[64:65], s[28:29] sc1
    s_mov_b64 exec, -1
    s_and_b32 s38, s32, 7
    s_cmp_lg_u32 s38, s31
    s_cbranch_scc1 L_fin
    v_add_u32 v13, {(H3S_-H3M_) & 0xffffffff}, v12''')
    hm = [f'global_load_dwordx2 v[{20+2*i}:{21+2*i}], v12, s[28:29] offset:{512*i} sc1' for i in range(2)]
    hs = [f'global_load_dwordx2 v[{24+2*i}:{25+2*i}], v13, s[28:29] offset:{512*i} sc1' for i in range(2)]
    a(f'''v_lshlrev_b32 v57, 16, v57
    v_lshlrev_b32 v58, 16, v58
    v_mov_b32 v21, 0
    v_mov_b32 v23, 0
    v_mov_b32 v25, 0
    v_mov_b32 v27, 0
    s_mov_b32 s39, {hex(f2u(-LOG2E))}
    L_M_fe:
    s_sleep 1
    ds_read_b32 v28, v1 offset:{FE}''')
    spin_guard()
    a(f'''s_waitcnt lgkmcnt(0)
    v_cmp_eq_u32 vcc, 0, v28
    s_cbranch_vccnz L_M_fe
    s_setprio 3''')
    for x in hs: a(x)
    npoll('HM', hm, [21, 23], 1)
    ts(7)
    for x in hs: a(x)
    a('v_add_f32 v30, v20, v22')
    ror('v_add_f32', 30, (8, 4))
    rnd(30, 30)
    a('v_add_f32 v30, v30, v58')
    rnd(30, 30)
    a(f'''v_mul_f32 v31, s39, v30
    v_exp_f32 v31, v31
    v_add_f32 v31, 1.0, v31
    v_rcp_f32 v31, v31
    v_mul_f32 v30, v30, v31''')
    rnd(30, 30)
    npoll('HS', hs, [25, 27], 1)
    ts(8)
    a('v_add_f32 v32, v24, v26')
    ror('v_add_f32', 32, (8, 4))
    rnd(32, 32)
    a('v_mul_f32 v32, v32, v30')
    rnd(32, 32)
    a(f'''v_add_f32 v32, v32, v57
    v_cvt_pk_bf16_f32 v32, v32, v32
    s_mov_b64 exec, s[60:61]
    global_store_short v15, v32, s[24:25]
    s_cmp_lg_u32 s2, 0
    s_cbranch_scc1 L_fin
    s_mov_b64 exec, 1
    v_mov_b32 v4, s35
    global_store_dword v1, v4, s[28:29] sc1
    s_branch L_fin''')

    att[0] = True
    a('L_A2:')
    for i, e in enumerate(PPOS[:-1]):
        waitfor(('P1', e))
        if i == 0: ts(1)
        a(f'''v_cmp_ne_u32 s[50:51], s35, v{PB+3}
        v_cmp_ne_u32 s[52:53], s35, v{PB+7}
        s_or_b64 s[50:51], s[50:51], s[52:53]
        s_cbranch_scc0 L_P_ok''')
    sw = f'''s_cmp_eq_u32 s48, 16
    s_cselect_b32 s38, {H1S-H1F}, 0
    v_add_u32 v12, s38, v12''' if H1FAST else ''
    poll('P', pl, [PB+3, PB+7], len(issued) - 1 - issued.index(('P1', PPOS[-1])), sw)
    a('L_P_ok:')
    ts(2)
    a(f'''v_bfe_u32 v{T0}, v{PB}, 8, 3
    v_bfe_u32 v{T0+1}, v{PB+4}, 8, 3
    v_cmp_ne_u32 s[50:51], s33, v{T0}
    v_cmp_ne_u32 s[52:53], s33, v{T0+1}''')
    sum2(PR, PB, PB+4, PR+4)
    a('s_or_b64 s[50:51], s[50:51], s[52:53]')
    a('s_cselect_b32 s49, 3, 1')
    a(f'''v_mov_b32 v{T0}, s49
    v_permlane32_swap_b32 v{PR}, v{PR+2}
    v_permlane32_swap_b32 v{PR+1}, v{PR+3}
    v_add_f32 v{PR}, v{PR}, v{PR+2}
    v_add_f32 v{PR+1}, v{PR+1}, v{PR+3}
    v_cvt_pk_bf16_f32 v{PR}, v{PR}, v{PR+1}
    ds_write_b32 v17, v{PR}
    ds_write_b32 v16, v{T0} offset:{FQ}
    L_q_spin:
    ds_read_b128 v[{PR}:{PR+3}], v1 offset:{FQ}
    ds_read_b32 v{PR+4}, v1 offset:{RS}''')
    for t in range(4): a(f'ds_read_b128 v[{QF+4*t}:{QF+4*t+3}], v18 offset:{64*t}')
    spin_guard()
    for t in range(4):
        lgkm(3 - t)
        for b in range(2):
            c = '0' if t == 0 else f'v[{DS+4*b}:{DS+4*b+3}]'
            k = KR + 16*b + 4*t
            a(f'v_mfma_f32_16x16x32_bf16 v[{DS+4*b}:{DS+4*b+3}], v[{k}:{k+3}], v[{QF+4*t}:{QF+4*t+3}], {c}')
        if t == 0:
            a(f'''v_and_b32 v{T0}, v{PR}, v{PR+1}
            v_and_b32 v{T0+1}, v{PR+2}, v{PR+3}
            v_or3_b32 v{T0+2}, v{PR}, v{PR+1}, v{PR+2}
            v_and_b32 v{T0}, v{T0}, v{PR+4}''')
        if t == 1:
            a(f'''v_and_b32 v{T0}, v{T0}, v{T0+1}
            v_or_b32 v{T0+2}, v{T0+2}, v{PR+3}
            v_readfirstlane_b32 s38, v{T0}
            v_readfirstlane_b32 s49, v{T0+2}''')
    a(f'''s_bitcmp1_b32 s38, 0
    s_cbranch_scc0 L_q_spin
    s_and_b32 s49, s49, 2''')
    for k in range(8): a(f'v_mul_f32 v{DS+k}, v{DS+k}, v{PR+4}')
    a(f'''v_max3_f32 v{T0}, v{DS}, v{DS+1}, v{DS+2}
    v_max3_f32 v{T0+1}, v{DS+3}, v{DS+4}, v{DS+5}
    v_max3_f32 v{T0}, v{T0}, v{DS+6}, v{DS+7}
    v_max_f32 v{T0}, v{T0}, v{T0+1}''')
    allrows('v_max_f32', T0, T0+1)
    for k in range(8): a(f'v_sub_f32 v{DS+k}, v{DS+k}, v{T0}')
    for k in range(8): a(f'v_exp_f32 v{DS+k}, v{DS+k}')
    a(f'''v_add_f32 v{T0+1}, v{DS}, v{DS+1}
    v_add_f32 v{T0+2}, v{DS+2}, v{DS+3}
    v_add_f32 v{T0+3}, v{DS+4}, v{DS+5}
    v_add_f32 v{T0+1}, v{T0+1}, v{T0+2}
    v_add_f32 v{T0+2}, v{DS+6}, v{DS+7}
    v_add_f32 v{T0+1}, v{T0+1}, v{T0+3}
    v_add_f32 v{T0+1}, v{T0+1}, v{T0+2}''')
    allrows('v_add_f32', T0+1, T0+2)
    a(f'ds_write_b64 v19, v[{T0}:{T0+1}] offset:{MLX}')
    for k in range(4): a(f'v_cvt_pk_bf16_f32 v{PR+k}, v{DS+2*k}, v{DS+2*k+1}')
    for j in range(4):
        for k in range(4): a(f'v_cndmask_b32 v{QF+4*j+k}, 0, v{PR+k}, s[{66+2*j}:{67+2*j}]')
    ts(3)
    VT = KR
    def vperm(pr):
        ia = 2*pr; ib = ia + 1
        for d in range(4):
            a(f'v_perm_b32 v{VT + 4*(2*d) + pr}, v{VR+4*ib+d}, v{VR+4*ia+d}, s40')
            a(f'v_perm_b32 v{VT + 4*(2*d+1) + pr}, v{VR+4*ib+d}, v{VR+4*ia+d}, s41')
    FR = T0 + 12
    def mlx_read():
        a(f'''ds_read_b128 v[{T0}:{T0+3}], v24 offset:{MLX}
        ds_read_b128 v[{T0+4}:{T0+7}], v24 offset:{MLX+16}''')
    def mlx_check(nyoung):
        a('s_branch L_ml_chk')
        a('L_ml_spin:')
        mlx_read()
        spin_guard()
        a('s_waitcnt lgkmcnt(0)')
        a('L_ml_chk:')
        lgkm(nyoung)
        a(f'''v_min_u32 v{T0+8}, v{T0+1}, v{T0+3}
        v_min3_u32 v{T0+8}, v{T0+8}, v{T0+5}, v{T0+7}
        v_max3_f32 v{PR+4}, v{T0}, v{T0+2}, v{T0+4}
        v_cmp_eq_u32 vcc, 0, v{T0+8}
        v_max_f32 v{PR+4}, v{PR+4}, v{T0+6}
        s_cbranch_vccnz L_ml_spin''')
    def factors():
        for k in range(4): a(f'v_sub_f32 v{FR+k}, v{T0+2*k}, v{PR+4}')
        for k in range(4): a(f'v_exp_f32 v{FR+k}, v{FR+k}')
        a(f'v_mul_f32 v{PR+5}, v{FR}, v{T0+1}')
        for k in range(1, 4): a(f'v_fmac_f32 v{PR+5}, v{FR+k}, v{T0+2*k+1}')
    def mlstore():
        a('s_cmp_lg_u32 s49, 0')
        a('s_mov_b64 exec, 1')
        store_mode('stml', [f'global_store_dwordx4 v13, v[{PR+4}:{PR+7}], s[28:29]'])
        issued.append('MLst')
        a('s_mov_b64 exec, -1')
        a(f'ds_write_b32 v16, v25 offset:{FM}')
    a(f'v_mov_b32 v{PR+7}, s35')
    if MLEARLY:
        mlx_read()
        waitfor(('D', 9))
        vperm(0)
        mlx_check(0)
        factors()
        mlstore()
    for pr in range(1 if MLEARLY else 0, 4):
        waitfor(('D', 8 + 2*pr + 1))
        vperm(pr)
    ts(4)
    if not MLEARLY: mlx_read()
    for j in [0, 4, 1, 5, 2, 6, 3, 7]:
        h = j >> 2
        c = '0' if (j & 3) == 0 else f'v[{DS+4*h}:{DS+4*h+3}]'
        a(f'v_mfma_f32_16x16x32_bf16 v[{DS+4*h}:{DS+4*h+3}], v[{QF+4*(j&3)}:{QF+4*(j&3)+3}], v[{VT+4*j}:{VT+4*j+3}], {c}')
    a(f'''v_mov_b32 v{PR+3}, s35
    ds_write_b128 v21, v[{DS}:{DS+3}]
    ds_write_b128 v21, v[{DS+4}:{DS+7}] offset:{OH}
    ds_write_b32 v16, v25 offset:{FO}''')
    if not MLEARLY:
        mlx_check(3)
        factors()
        mlstore()
    a(f'''L_o_spin:
    ds_read_b128 v[{T0+8}:{T0+11}], v1 offset:{FO}''')
    for wp_ in range(4): a(f'ds_read_b128 v[{VR+4*wp_}:{VR+4*wp_+3}], v22 offset:{OW*wp_}')
    spin_guard()
    lgkm(3)
    a(f'''v_and_b32 v{T0+8}, v{T0+8}, v{T0+9}
    v_and_b32 v{T0+10}, v{T0+10}, v{T0+11}''')
    for k in range(4): a(f'v_mul_f32 v{VR+k}, v{VR+k}, v{FR}')
    a(f'v_and_b32 v{T0+8}, v{T0+8}, v{T0+10}')
    a(f'v_cmp_eq_u32 vcc, 0, v{T0+8}')
    for wp_ in range(1, 4):
        lgkm(3 - wp_)
        for k in range(4): a(f'v_fmac_f32 v{VR+k}, v{VR+4*wp_+k}, v{FR+wp_}')
    a('s_cbranch_vccnz L_o_spin')
    a('s_cmp_lg_u32 s49, 0')
    a('s_mov_b32 exec_hi, 0')
    pack(PR, VR, VR+1, VR+2, VR+3)
    store_mode('st2', [f'global_store_dwordx4 v10, v[{PR}:{PR+3}], s[28:29]'])
    a('s_mov_b64 exec, -1')
    ts(5)
    a(f'''v_lshlrev_b32 v15, 4, v6
    s_waitcnt vmcnt(2)''')
    ts(6)
    a(f'''L_t_spin:
    ds_read_b32 v{T0+4}, v1 offset:{FT}
    ds_read_b128 v[{T0}:{T0+3}], v15 offset:{O16}''')
    spin_guard()
    a(f'''s_waitcnt lgkmcnt(0)
    v_cmp_eq_u32 vcc, 0, v{T0+4}''')
    AT = QF; DO = DS
    for r in range(4): a(f'v_and_b32 v{AT+r}, v{T0}, v{28+r}')
    a('s_cbranch_vccnz L_t_spin')
    ts(7)
    for i in range(1, 5):
        if i < 4:
            for r in range(4): a(f'v_and_b32 v{AT+4*i+r}, v{T0+i}, v{28+r}')
        c = '0' if i == 1 else f'v[{DO}:{DO+3}]'
        a(f'v_mfma_f32_16x16x32_bf16 v[{DO}:{DO+3}], v[{AT+4*(i-1)}:{AT+4*(i-1)+3}], v[{WOR+4*(i-1)}:{WOR+4*(i-1)+3}], {c}')
    a('s_cmp_lg_u32 s49, 0')
    a('s_mov_b32 exec_hi, 0')
    pack(PR, DO, DO+1, DO+2, DO+3)
    store_mode('st3', [f'global_store_dwordx4 v11, v[{PR}:{PR+3}], s[28:29]'])
    ts(8)
    a('L_fin:')
    if DIAG:
        if DIAGG >= 0: a(f's_cmp_lg_u32 s31, {DIAGG}\ns_cbranch_scc1 L_end')
        a(f'''L_dg:
        s_memrealtime s[78:79]
        s_waitcnt lgkmcnt(0)
        s_sub_u32 s78, s78, s76
        s_cmp_lt_u32 s78, {DIAG}
        s_cbranch_scc1 L_dg''')
    if DBG:
        a('''s_memrealtime s[100:101]
        s_mov_b64 exec, 1
        v_mov_b32 v1, 0
        s_waitcnt lgkmcnt(0)
        s_not_b32 s38, s76
        v_mov_b32 v2, s38
        global_atomic_umax v1, v2, s[26:27] offset:60
        v_mov_b32 v2, s76
        global_atomic_umax v1, v2, s[26:27] offset:56
        v_mov_b32 v2, s100
        global_atomic_umax v1, v2, s[26:27] offset:52
        s_cmp_lt_u32 s30, 2
        s_cbranch_scc1 L_dbg0''')
        for k in range(1, 9):
            a(f'v_mov_b32 v2, s{76+2*k}')
            a(f'global_atomic_umax v1, v2, s[26:27] offset:{4*(k-1)}')
        a('s_endpgm')
        a('L_dbg0:')
        a('s_cmp_eq_u32 s30, 1\ns_cbranch_scc1 L_end')
        for i, k in enumerate((1, 2, 3, 5)):
            a(f'v_mov_b32 v2, s{76+2*k}')
            a(f'global_atomic_umax v1, v2, s[26:27] offset:{4*(8+i)}')
    elif TS:
        att[0] = False
        if not TS2: ts(12)
        a(f'''s_mul_i32 s38, s2, 6
        s_add_u32 s38, s38, s30
        s_lshl_b32 s38, s38, 7
        s_add_u32 s38, s38, {TSB}
        s_mov_b64 exec, 1
        v_mov_b32 v1, s38
        s_waitcnt lgkmcnt(0)''')
        for k in range(13):
            a(f'v_mov_b32 v2, s{76+2*k}')
            a(f'global_store_dword v1, v2, s[28:29] offset:{4*k}')
        a('v_mov_b32 v2, s48')
        a(f'global_store_dword v1, v2, s[28:29] offset:64')
    a('s_endpgm')
    for t in tail: a(t)
    a('L_end:')
    a('s_endpgm')
    a.raw(f'''.section .rodata,"a"
.p2align 6
.amdhsa_kernel {KN}_kernel
  .amdhsa_next_free_vgpr 168
  .amdhsa_next_free_sgpr 102
  .amdhsa_accum_offset 168
  .amdhsa_group_segment_fixed_size 0
  .amdhsa_kernarg_size 104
  .amdhsa_user_sgpr_count 2
  .amdhsa_user_sgpr_kernarg_segment_ptr 1
  .amdhsa_system_sgpr_workgroup_id_x 1
.end_amdhsa_kernel''')
    return a.text()

if __name__ == '__main__':
    for spec in sys.argv[1:]:
        name, kw = spec.split('=', 1)
        kw = eval('dict(' + kw + ')')
        open(f'exp/{name}.s', 'w').write(gen(**kw))
```

```python
import sys, struct, math
sys.path.insert(0, 'gen')
from asmlib import Asm
KN = 'recurrent_scan__sliding_block_cached__mixer_channel_mlp__decode'
def f2u(f): return struct.unpack('<I', struct.pack('<f', f))[0]
GB0 = 0x10000; GA = 0x4C000
H1F = 0; H1S = 0x2000; MLB = 0x4000; MHB = 0x5000; MHS = 896; MH2 = 0x45000 - 0x5000
OIB = 0x10000; SIB = 0x22000; MIB = 0x34000; IS = 2176
H3S_ = 0x280000; H3M_ = 0x288000
TSB = 0x800000
QL = 0; QS = 320; FQ = 1280; RS = 1296; FV = 1312; FO = 1328; MLX = 1344; FT = 1472; FE = 1476; FZ = 1480; FM = 1488; FW = 1504; O16 = 1536; OL = 2048; OH = 1152; OW = 2304; KL = 16384; LDSZ = 16384 + 32768
LOG2E = 1.4426950408889634
MAXPOLL = 400000
DOC = """;
; Workgroups hand data over through d_ws in 16-byte {3 data words, tag} granules; tag = f(epoch word found in d_ws).
; hand-offs between groups are always write-through; all polls are sc1 loads."""

def gen(TS=False, TS2=False, WIN=6, PA=4, H1FAST=True, PF=True, SPREAD=True, WNT=False, MLEARLY=True, DBG=False, SLP=2, LATEF=True, PE=1, BURST=True, STREAM=0, NOP=False, ROT='g', NST=15, PSL=1, MWAIT=True, PPOS=(1, 4, 7), SNT=False, TOUCH=0, DIAG=0, DIAGG=-1, WOPOS=2, FUSE=True, TIGHT=True, FEARLY=False, QMAP=0, ELATE=True, QROW=0, XPOS=15, SPF=False, MTRIG=7, W2LATE=False, QREP=2, ZW=0, MZ=True, HWARM=False, BAL=False):
    a = Asm()
    hdr = open('cdna_kernels/' + KN + '.s.ref').read().split('\n')
    for l in hdr:
        if l.startswith('; @launch'): break
        a.raw(l)
    a.raw(f'; @launch grid=(256,1,1) block=(384,1,1) lds={LDSZ}')
    a.raw(DOC)
    a.raw('.amdgcn_target "amdgcn-amd-amdhsa--gfx950"\n.text')
    a.raw(f'.globl {KN}_kernel\n.p2align 8\n.type {KN}_kernel,@function\n{KN}_kernel:')
    att = [False]
    def ts2(k):
        if TS2 and k <= 12: a(f's_memrealtime s[{76+2*k}:{77+2*k}]')
    def ts(k):
        if TS2 and att[0]: return
        if TS: a(f's_memrealtime s[{76+2*k}:{77+2*k}]')
    def lgkm(n): a(f's_waitcnt lgkmcnt({0 if TS else n})')
    def wave_sum(vs):
        for sh in (1, 2, 4, 8):
            for x in vs: a(f'v_add_f32_dpp v{x}, v{x}, v{x} row_shr:{sh} row_mask:0xf bank_mask:0xf bound_ctrl:0')
        for x in vs: a(f'v_add_f32_dpp v{x}, v{x}, v{x} row_bcast:15 row_mask:0xa bank_mask:0xf')
        for x in vs: a(f'v_add_f32_dpp v{x}, v{x}, v{x} row_bcast:31 row_mask:0xc bank_mask:0xf')
    def ror(op, x, shs, dst=None):
        for i, sh in enumerate(shs):
            d = dst if (dst is not None and i == len(shs) - 1) else x
            a(f'{op}_dpp v{d}, v{x}, v{x} row_ror:{sh} row_mask:0xf bank_mask:0xf')
    def scatter4(r):
        a(f'''v_permlane32_swap_b32 v{r}, v{r+2}
        v_permlane32_swap_b32 v{r+1}, v{r+3}
        v_add_f32 v{r}, v{r}, v{r+2}
        v_add_f32 v{r+1}, v{r+1}, v{r+3}
        v_permlane16_swap_b32 v{r}, v{r+1}
        v_add_f32 v{r}, v{r}, v{r+1}''')
    def allrows(op, x, t):
        a(f'''v_mov_b32 v{t}, v{x}
        v_permlane32_swap_b32 v{x}, v{t}
        {op} v{x}, v{x}, v{t}
        v_mov_b32 v{t}, v{x}
        v_permlane16_swap_b32 v{x}, v{t}
        {op} v{x}, v{x}, v{t}''')
    def rnd(dst, src):
        a(f'v_cvt_pk_bf16_f32 v{dst}, v{src}, v{src}')
        a(f'v_and_b32 v{dst}, 0xffff0000, v{dst}')
    def mktag(ve):
        a(f'''v_readfirstlane_b32 s35, v{ve}
        s_add_u32 s35, s35, 0x9E3779B9
        s_or_b32 s35, s35, 1''')
    def pack(d, v0, v1, v2, v3):
        a(f'v_perm_b32 v{d}, v{v0}, v{v3}, s42')
        a(f'v_perm_b32 v{d+1}, v{v1}, v{v3}, s43')
        a(f'v_perm_b32 v{d+2}, v{v2}, v{v3}, s44')
    def unpack3(d):
        a(f'v_perm_b32 v{d+3}, v{d+1}, v{d}, s45')
        a(f'v_perm_b32 v{d+3}, v{d+2}, v{d+3}, s46')
    def poll(name, loads, tagregs, first_wait, pre='', slp=0):
        a(f's_waitcnt vmcnt({first_wait})')
        a(f's_branch L_{name}_chk')
        a(f'L_{name}_retry:')
        if slp: a(f's_sleep {slp}')
        a(f'''s_add_u32 s48, s48, 1
        {pre}
        s_wqm_b64 exec, s[50:51]''')
        for x in loads: a(x)
        a(f'''s_mov_b64 exec, -1
        s_cmp_gt_u32 s48, {MAXPOLL}
        s_cbranch_scc1 L_end
        s_waitcnt vmcnt(0)
        L_{name}_chk:''')
        for i, r in enumerate(tagregs):
            a(f'v_cmp_ne_u32 s[{50+2*i}:{51+2*i}], s35, v{r}')
        if len(tagregs) == 1: a('s_cmp_lg_u64 s[50:51], 0')
        else:
            for i in range(1, len(tagregs)): a(f's_or_b64 s[50:51], s[50:51], s[{50+2*i}:{51+2*i}]')
        a(f's_cbranch_scc1 L_{name}_retry')
    def npoll(name, loads, tagregs, slp, init=True, pre='', reps=1, masktags=()):
        if init: a('s_mov_b64 s[50:51], -1')
        a(f'L_{name}_l:')
        if pre: a(pre)
        a('s_wqm_b64 exec, s[50:51]')
        for x in loads: a(x)
        a(f'''s_mov_b64 exec, -1
        s_add_u32 s48, s48, 1
        s_cmp_gt_u32 s48, {MAXPOLL}
        s_cbranch_scc1 L_end
        s_waitcnt vmcnt(56)''')
        for rp in range(reps):
            if slp: a(f's_sleep {slp}')
            if rp == reps - 1:
                a(f'L_{name}_c:')
                for i, r in enumerate(masktags):
                    a(f'v_cmp_ne_u32 s[{54+2*i}:{55+2*i}], s35, v{r}')
            for i, r in enumerate(tagregs):
                a(f'v_cmp_ne_u32 s[{50+2*i}:{51+2*i}], s35, v{r}')
            for i in range(1, len(tagregs)): a(f's_or_b64 s[50:51], s[50:51], s[{50+2*i}:{51+2*i}]')
            if len(tagregs) == 1: a('s_cmp_lg_u64 s[50:51], 0')
            if rp < reps - 1 or masktags: a(f's_cbranch_scc0 L_{name}_x')
            else: a(f's_cbranch_scc1 L_{name}_l')
        if masktags:
            for i in range(len(masktags)): a(f's_or_b64 s[50:51], s[50:51], s[{54+2*i}:{55+2*i}]')
            a(f's_branch L_{name}_l')
        a(f'L_{name}_x:')
    def unpack_to(t, d):
        a(f'v_perm_b32 v{t}, v{d+1}, v{d}, s45')
        a(f'v_perm_b32 v{t}, v{d+2}, v{t}, s46')
    def sum2(dst, r0, r1, t):
        unpack_to(dst+3, r0); unpack_to(t, r1)
        for k in range(3): a(f'v_add_f32 v{dst+k}, v{r0+k}, v{r1+k}')
        a(f'v_add_f32 v{dst+3}, v{dst+3}, v{t}')
    tail = []
    def store_mode(name, ins):
        a(f's_cbranch_scc1 L_{name}_slow')
        for x in ins: a(x)
        a(f'L_{name}_done:')
        tail.append(f'L_{name}_slow:\n' + '\n'.join(x + ' sc1' for x in ins) + f'\ns_branch L_{name}_done')
    consts = '''s_mov_b32 s40, 0x05040100
        s_mov_b32 s41, 0x07060302
        s_mov_b32 s42, 0x07060501
        s_mov_b32 s43, 0x07060502
        s_mov_b32 s44, 0x07060503
        s_mov_b32 s45, 0x0c04000c
        s_mov_b32 s46, 0x04020100
        s_getreg_b32 s33, hwreg(HW_REG_XCC_ID)
        s_and_b32 s33, s33, 7'''
    spin = [0]
    def spin_guard():
        a(f'''s_add_u32 s48, s48, 1
        s_cmp_gt_u32 s48, {MAXPOLL}
        s_cbranch_scc1 L_end''')

    ts(0)
    if DIAG: a('s_memrealtime s[76:77]')
    a(f'''s_load_dwordx16 s[4:19], s[0:1], 0
    s_load_dwordx8 s[20:27], s[0:1], 64
    s_load_dwordx2 s[28:29], s[0:1], 96
    s_cmp_ge_u32 s2, 256
    s_cbranch_scc1 L_end
    v_lshrrev_b32 v1, 6, v0
    v_and_b32 v0, 63, v0
    s_getpc_b64 s[36:37]
    L_pc:
    v_readfirstlane_b32 s30, v1
    s_and_b32 s31, s2, 7
    s_lshr_b32 s32, s2, 3
    s_mul_i32 s38, s32, 6
    s_add_u32 s38, s38, s30
    s_lshl_b32 s38, s38, 7
    v_mov_b32 v1, s38
    s_cmp_gt_u32 s38, L_end-L_pc
    s_cbranch_scc1 L_nopf
    s_mov_b64 exec, 1
    {'global_load_dword v26, v1, s[36:37]' if PF and not SPF else 's_nop 0'}
    s_mov_b64 exec, -1
    L_nopf:
    s_mul_i32 s34, s31, {GA}
    s_add_u32 s34, s34, {GB0}
    s_mov_b32 s48, 0
    v_mov_b32 v1, 0
    v_lshlrev_b32 v2, 4, v0
    v_and_b32 v5, 15, v0
    v_lshrrev_b32 v6, 4, v0
    s_cmp_eq_u32 s30, 1
    s_cbranch_scc1 L_M
    s_cmp_gt_u32 s30, 1
    s_cbranch_scc1 L_A''')
    qm = {0: 's_mov_b32 s74, s32', 1: 's_and_b32 s74, s32, 7\ns_lshl_b32 s74, s74, 2\ns_lshr_b32 s38, s32, 3\ns_add_u32 s74, s74, s38', 2: 's_and_b32 s38, s32, 12\ns_cmp_eq_u32 s38, 12\ns_cselect_b32 s38, 16, 0\ns_xor_b32 s74, s32, s38'}[2 if BAL else QMAP]
    a(f'''s_setprio 3
    {qm}
    v_and_b32 v4, 1, v0
    v_lshl_add_u32 v3, v6, 1, v4
    v_lshlrev_b32 v3, {7 if QROW else 5}, v3
    s_and_b32 s38, s74, 3
    s_lshl_b32 s39, s38, {5 if QROW else 8}
    v_add_u32 v3, s39, v3
    v_lshrrev_b32 v4, 3, v0
    v_lshlrev_b32 v4, {19 if QROW else 17}, v4
    v_and_b32 v7, 7, v0
    v_lshl_add_u32 v4, v7, 4, v4
    s_lshl_b32 s39, s38, {17 if QROW else 20}
    s_lshl_b32 s38, s31, 10
    s_add_u32 s39, s39, s38
    s_lshr_b32 s38, s74, 2
    s_lshl_b32 s38, s38, 7
    s_add_u32 s39, s39, s38
    v_add_u32 v4, s39, v4
    s_mov_b32 s38, 0x3f803f80
    s_movk_i32 s39, 0x2000''')
    for r in range(8, 16): a(f'v_mov_b32 v{r}, s38')
    a(f'''s_mov_b32 s60, 0x00030003
    s_mov_b32 s61, 0x00030003
    s_waitcnt lgkmcnt(0)''')
    for i in range(16):
        a(f'global_load_dwordx4 v[{20+4*i}:{23+4*i}], v4, s[10:11] nt')
        if i < 15: a('v_add_u32 v4, s39, v4')
        if i == XPOS:
            a('''s_mov_b64 exec, s[60:61]
            global_load_dwordx4 v[8:11], v3, s[4:5]
            global_load_dwordx4 v[12:15], v3, s[4:5] offset:16
            s_mov_b64 exec, -1
            global_load_dwordx4 v[148:151], v2, s[4:5]
            s_mov_b64 exec, 1
            global_load_dword v16, v1, s[28:29] sc1
            s_mov_b64 exec, -1''')
    a('s_barrier')
    a('s_branch L_Q2')
    a(f'''L_M:
    s_mul_i32 s38, s32, {16*3584}
    s_mul_i32 s39, s31, 448
    s_add_u32 s38, s38, s39
    v_lshl_add_u32 v4, v0, 3, s38
    s_movk_i32 s39, 7168
    s_mov_b32 s60, -1
    s_mov_b32 s61, 0x00ffffff
    v_lshlrev_b32 v3, 2, v0
    ds_write_b32 v3, v1 offset:{FQ}
    s_waitcnt lgkmcnt(0)
    {'' if ELATE else 'global_load_dwordx4 v[8:11], v2, s[4:5]'}
    s_mov_b64 exec, 1
    {'' if ELATE else 'global_load_dword v16, v1, s[28:29] sc1'}
    s_barrier
    {'global_load_dword v16, v1, s[28:29] sc1' if ELATE else ''}
    s_mov_b64 exec, -1
    {'global_load_dwordx4 v[8:11], v2, s[4:5]' if ELATE else ''}
    s_branch L_M2''')
    KR = 32; VR = 64; PR = 96; WOR = 104; QF = 120; DS = 136; T0 = 144; KS = 50; PB = 160
    rot = {'s2w': 's_lshl_b32 s3, s47, 1\ns_add_u32 s3, s3, s32', 'g': 's_mov_b32 s3, s31', 'g2w': 's_lshl_b32 s3, s47, 1\ns_add_u32 s3, s3, s31',
           '0': 's_mov_b32 s3, 0', '2w': 's_lshl_b32 s3, s47, 1', 's': 's_mov_b32 s3, s32', 'sh': 's_lshr_b32 s3, s32, 2\ns_add_u32 s3, s3, s31'}[ROT]
    a(f'''L_A:
    s_sub_u32 s47, s30, 2
    s_lshl_b32 s38, s31, 24
    s_lshl_b32 s39, s32, 15
    s_add_u32 s38, s38, s39
    s_lshl_b32 s39, s47, 10
    s_add_u32 s38, s38, s39
    s_add_u32 s38, s38, {0xF00000}
    s_lshl_b32 s39, s47, 13
    s_add_u32 s39, s39, {KL}
    s_mov_b32 m0, s39
    {rot}
    v_xor_b32 v7, v5, v6
    v_lshlrev_b32 v7, 4, v7
    v_lshl_add_u32 v{T0}, v6, 8, v7
    v_add_u32 v{T0}, s38, v{T0}
    v_xor_b32 v{T0+1}, 64, v{T0}
    v_xor_b32 v{T0+2}, 0x80, v{T0}
    v_xor_b32 v{T0+3}, 0xc0, v{T0}
    v_lshl_add_u32 v{T0+4}, v5, 8, v7
    v_add_u32 v{T0+4}, s39, v{T0+4}
    v_add_u32 v4, s3, v6
    v_and_b32 v4, 7, v4
    v_lshlrev_b32 v4, 12, v4
    v_lshl_add_u32 v4, v5, 4, v4
    v_add_u32 v4, s38, v4
    v_xor_b32 v27, 0x4000, v4
    s_waitcnt lgkmcnt(0)
    s_mov_b64 exec, 1
    {'' if ELATE else 'global_load_dword v23, v1, s[28:29] sc1'}
    s_mov_b64 exec, -1''')
    if TOUCH:
        a(f'''s_mov_b64 exec, 1
        s_cmp_eq_u32 s47, 1
        s_cbranch_scc1 L_tch1
        s_cmp_eq_u32 s47, 2
        s_cbranch_scc1 L_tch2
        s_cmp_eq_u32 s47, 3
        s_cbranch_scc1 L_tch3
        s_lshl_b32 s39, s31, 5
        s_add_u32 s39, s39, s32
        s_lshl_b32 s39, s39, 14
        v_mov_b32 v8, s39
        global_load_dword v26, v4, s[8:9] nt
        global_load_dword v26, v8, s[12:13] nt
        global_load_dword v26, v{T0}, s[6:7] nt
        s_branch L_tchd
        L_tch1:
        s_mul_i32 s39, s31, {224*1024}
        v_mov_b32 v8, s39
        global_load_dword v26, v8, s[20:21] nt
        global_load_dword v26, v1, s[18:19]
        global_load_dword v26, v1, s[22:23]
        s_branch L_tchd
        L_tch2:
        v_mov_b32 v8, {H3S_}
        v_mov_b32 v9, s34
        global_load_dword v26, v1, s[24:25]
        global_load_dword v26, v8, s[28:29] offset:-128
        global_load_dword v26, v9, s[28:29] offset:-128
        s_branch L_tchd
        L_tch3:
        s_add_u32 s39, s34, {SIB}
        v_mov_b32 v8, s39
        s_add_u32 s39, s34, {MIB}
        v_mov_b32 v9, s39
        s_add_u32 s39, s34, {OIB}
        v_mov_b32 v10, s39
        global_load_dword v26, v8, s[28:29] offset:-128
        global_load_dword v26, v9, s[28:29] offset:-128
        global_load_dword v26, v10, s[28:29] offset:-128
        L_tchd:
        s_mov_b64 exec, -1''')
    for i in range(8):
        a(f'''s_add_u32 s39, s3, {i}
        s_and_b32 s39, s39, 7
        s_lshl_b32 s39, s39, 12
        s_add_u32 s{KS+2*i}, s6, s39
        s_addc_u32 s{KS+2*i+1}, s7, 0''')
    a('s_barrier')
    if ELATE: a('s_mov_b64 exec, 1\nglobal_load_dword v23, v1, s[28:29] sc1\ns_mov_b64 exec, -1')
    D = []
    for i in range(8):
        pre = 's_add_u32 m0, m0, 1024\ns_nop 0\n' if i > 0 else ''
        D.append(pre + f'global_load_lds_dwordx4 v{T0+(i&3)}, s[{KS+2*i}:{KS+2*i+1}] nt')
    for e in range(8):
        r = VR + 4*e
        D.append(f'global_load_dwordx4 v[{r}:{r+3}], v{4 if e < 4 else 27}, s[8:9] offset:{256*(e&3)} nt')
    for i in range(4):
        D.append(f'global_load_dwordx4 v[{WOR+4*i}:{WOR+4*i+3}], v{9 if i < 2 else 14}, s[12:13] offset:{4096*(i&1)-4096} nt')
    pl = [f'global_load_dwordx4 v[{PR}:{PR+3}], v12, s[28:29] sc1', f'global_load_dwordx4 v[{PR+4}:{PR+7}], v12, s[28:29] offset:256 sc1']
    setup = f'''s_lshl_b32 s39, s47, 11
    s_add_u32 s38, s34, s39
    s_add_u32 s38, s38, {H1F if H1FAST else H1S}
    v_and_b32 v8, 1, v6
    v_lshlrev_b32 v12, 10, v8
    v_lshrrev_b32 v9, 5, v0
    v_lshl_add_u32 v12, v9, 9, v12
    v_lshl_add_u32 v12, v5, 4, v12
    v_add_u32 v12, s38, v12
    s_mul_i32 s38, s47, {QS}
    v_lshlrev_b32 v17, 7, v8
    v_lshl_add_u32 v17, v9, 2, v17
    v_and_b32 v7, 7, v0
    v_lshl_add_u32 v17, v7, 4, v17
    v_bfe_u32 v7, v0, 3, 1
    v_lshl_add_u32 v17, v7, 3, v17
    v_add_u32 v17, s38, v17
    s_mul_i32 s38, s47, {8*IS}
    s_lshl_b32 s39, s32, 6
    s_add_u32 s38, s38, s39
    s_add_u32 s38, s38, s34
    s_add_u32 s39, s38, {SIB}
    v_lshrrev_b32 v7, 2, v5
    v_lshl_add_u32 v11, v7, 1, v8
    v_mul_u32_u24 v11, {IS}, v11
    v_and_b32 v3, 3, v0
    v_lshl_add_u32 v11, v3, 4, v11
    v_add_u32 v11, s39, v11
    s_add_u32 s39, s38, {OIB}
    v_bfe_u32 v10, v0, 2, 3
    v_mul_u32_u24 v10, {IS}, v10
    v_lshl_add_u32 v10, v3, 4, v10
    v_add_u32 v10, s39, v10
    v_mul_u32_u24 v18, {QS}, v7
    v_lshl_add_u32 v18, v6, 4, v18
    s_lshl_b32 s38, s47, 3
    v_lshl_add_u32 v19, v7, 5, s38
    s_mul_i32 s38, s47, {OW}
    s_add_u32 s38, s38, {OL}
    v_add_u32 v21, s38, v2
    s_lshl_b32 s38, s47, 8
    s_add_u32 s38, s38, {OL}
    v_and_b32 v7, 1, v0
    v_mul_u32_u24 v22, {OH}, v7
    v_bfe_u32 v20, v0, 1, 4
    v_lshl_add_u32 v22, v20, 4, v22
    v_add_u32 v22, s38, v22
    s_lshl_b32 s38, s31, 5
    s_add_u32 s38, s38, s32
    s_lshl_b32 s38, s38, 14
    s_lshl_b32 s39, s47, 8
    s_add_u32 s38, s38, s39
    s_add_u32 s38, s38, 4096
    v_lshlrev_b32 v14, 10, v6
    v_lshl_add_u32 v14, v5, 4, v14
    v_add_u32 v9, s38, v14
    v_add_u32 v14, 0x2000, v9
    s_lshl_b32 s39, s47, 9
    s_lshl_b32 s38, s32, 4
    s_add_u32 s39, s39, s38
    s_add_u32 s39, s39, s34
    s_add_u32 s39, s39, {MLB}
    v_mov_b32 v13, s39
    s_lshl_b32 s38, s47, 2
    v_mov_b32 v16, s38
    s_lshl_b32 s38, s47, 5
    v_mov_b32 v24, s38
    v_mov_b32 v25, 1
    {consts}
    v_cmp_eq_u32 vcc, 1, v7
    v_mov_b32 v{DS}, 0x0000ffff
    v_mov_b32 v{DS+1}, 0xffff0000
    v_cndmask_b32 v{DS}, v{DS}, v{DS+1}, vcc
    v_bfe_u32 v{DS+2}, v0, 1, 3'''.split('\n')
    for r in range(4):
        setup += [f'v_cmp_eq_u32 vcc, {r}, v{DS+2}', f'v_cndmask_b32 v{28+r}, 0, v{DS}, vcc']
    for j in range(4):
        setup += [f's_mov_b32 s{66+2*j}, {hex(0x11111111 << j)}', f's_mov_b32 s{67+2*j}, {hex(0x11111111 << j)}']
    setup += [f'v_xor_b32 v{T0+5}, 64, v{T0+4}', f'v_xor_b32 v{T0+6}, 0x80, v{T0+4}', f'v_xor_b32 v{T0+7}, 0xc0, v{T0+4}']
    issued = []
    def issue(tag, ins): a(ins); issued.append(tag)
    def waitfor(tag): a(f's_waitcnt vmcnt({len(issued) - 1 - issued.index(tag)})')
    chunk = (len(setup) + WIN - 1) // WIN if SPREAD else 0
    for n in range(WIN):
        issue(('D', n), D[n])
        if SPREAD: a('\n'.join(setup[n*chunk:(n+1)*chunk]))
    if not SPREAD: a('\n'.join(setup))
    nstop = NST if BURST else 19
    a(f'v_mov_b32 v{PB+3}, 0\nv_mov_b32 v{PB+7}, 0')
    pl = [x.replace(f'v[{PR}:{PR+3}]', f'v[{PB}:{PB+3}]').replace(f'v[{PR+4}:{PR+7}]', f'v[{PB+4}:{PB+7}]') for x in pl]
    for n in range(WIN, len(D) if WOPOS == 0 else 16):
        if n <= nstop:
            waitfor(('D', n - WIN))
            if not STREAM: ts2(n - WIN)
            elif n - WIN >= 7: ts2(n - WIN - 7)
        if n == WIN: mktag(23)
        issue(('D', n), D[n])
        if n - 8 in PPOS and not NOP:
            issue(('P0', n - 8), pl[0]); issue(('P1', n - 8), pl[1])
        if n == 15: a(f'ds_write_b32 v16, v25 offset:{FV}')
        if n == 8 + MTRIG and MTRIG != 7: a(f'ds_write_b32 v16, v25 offset:{FW}')
        if n - WIN == 7:
            for b in range(2):
                for t in range(4):
                    r = KR + 16*b + 4*t
                    a(f'ds_read_b128 v[{r}:{r+3}], v{T0+4+t} offset:{4096*b}')
    if STREAM:
        for n in range(min(nstop, 19) - WIN + 1, 20):
            waitfor(('D', n))
            ts2(n - 7)
        a('s_branch L_fin')
        issued += [('P1', e) for e in PPOS]
    a('s_branch L_A2')

    a('L_Q2:')
    a(consts)
    a(f'''s_lshl_b32 s3, s33, 8
    v_mov_b32 v17, s3
    s_movk_i32 s62, 0x700
    s_lshl_b32 s39, s74, 8
    s_add_u32 s39, s39, s34
    v_add_u32 v18, s39, v2
    v_add_u32 v3, {H1S-H1F}, v18
    v_mov_b32 v19, 0''')
    def qmean():
        ts(1)
        for r in range(148, 152): a(f'v_dot2c_f32_bf16 v19, s38, v{r}')
        mktag(16)
        wave_sum([19])
        a(f'''v_readlane_b32 s63, v19, 63
        v_mov_b32 v19, {hex(f2u(1.0/512))}
        v_mul_f32 v19, s63, v19''')
        rnd(19, 19)
    T = 84; DQ = 116
    def qperm(h, TT):
        for pr in range(4):
            ia = 8*h + 2*pr; ib = ia + 1
            a(f's_waitcnt vmcnt({15 - ib + (4 if ib <= XPOS else 0)})')
            for d in range(4):
                a(f'v_perm_b32 v{TT + 4*(2*d) + pr}, v{20+4*ib+d}, v{20+4*ia+d}, s40')
                a(f'v_perm_b32 v{TT + 4*(2*d+1) + pr}, v{20+4*ib+d}, v{20+4*ia+d}, s41')
    def qmfma(h, TT):
        for j in range(8):
            c = '0' if h == 0 else f'v[{DQ+4*j}:{DQ+4*j+3}]'
            a(f'v_mfma_f32_16x16x32_bf16 v[{DQ+4*j}:{DQ+4*j+3}], v[{8+4*h}:{11+4*h}], v[{TT+4*j}:{TT+4*j+3}], {c}')
    if XPOS == 3:
        a('s_waitcnt vmcnt(12)')
        qmean()
        qperm(0, T); qmfma(0, T); qperm(1, T); ts(2); qmfma(1, T)
    else:
        qperm(0, T); qperm(1, 20); ts(2)
        a('s_waitcnt vmcnt(2)')
        qmfma(0, T); qmfma(1, 20)
        a('s_waitcnt vmcnt(0)')
        qmean()
    a('v_mov_b32 v23, s35\nv_mov_b32 v27, s35')
    for j in range(8):
        d = DQ + 4*j
        a(f'v_add_f32_dpp v{d}, v{d+1}, v{d} row_ror:8 row_mask:0xf bank_mask:0xf')
        a(f'v_add_f32_dpp v{d+2}, v{d+2}, v{d+2} row_ror:8 row_mask:0xf bank_mask:0xf')
        a(f'v_fma_f32 v{d}, -v19, v{d+2}, v{d}')
    for hq in range(2):
        o = 20 + 4*hq
        pack(o, DQ + 16*hq, DQ + 16*hq + 4, DQ + 16*hq + 8, DQ + 16*hq + 12)
        a(f'v_bfi_b32 v{o}, s62, v17, v{o}')
    a('s_mov_b64 exec, 0xff')
    if H1FAST:
        a(f'''global_store_dwordx4 v18, v[20:23], s[28:29]
        global_store_dwordx4 v18, v[24:27], s[28:29] offset:128''')
    a(f'''global_store_dwordx4 v3, v[20:23], s[28:29] sc1
    global_store_dwordx4 v3, v[24:27], s[28:29] offset:128 sc1
    s_mov_b64 exec, -1''')
    ts(3)
    def lds_wait1(name, off):
        a(f'''L_{name}:
        ds_read_b32 v28, v1 offset:{off}''')
        spin_guard()
        a(f'''s_waitcnt lgkmcnt(0)
        v_cmp_eq_u32 vcc, 0, v28
        s_cbranch_vccnz L_{name}''')
    def lds_wait4(name, off):
        a(f'''L_{name}:
        s_sleep 1
        ds_read_b128 v[28:31], v1 offset:{off}''')
        spin_guard()
        a(f'''s_waitcnt lgkmcnt(0)
        v_and_b32 v28, v28, v29
        v_and_b32 v30, v30, v31
        v_and_b32 v28, v28, v30
        v_cmp_eq_u32 vcc, 0, v28
        s_cbranch_vccnz L_{name}''')
    a(f'''s_mul_i32 s38, s32, {IS}
    s_add_u32 s38, s38, s34
    s_add_u32 s39, s38, {OIB}
    v_add_u32 v8, s39, v2
    s_add_u32 s39, s38, {SIB}
    v_add_u32 v9, s39, v2
    s_lshr_b32 s39, s32, 3
    s_lshl_b32 s39, s39, 9
    s_add_u32 s39, s39, s34
    s_add_u32 s39, s39, {MLB}
    v_lshrrev_b32 v10, 2, v0
    v_lshl_add_u32 v10, v10, 4, s39
    s_lshl_b32 s38, s32, 10
    s_lshl_b32 s39, s31, 7
    s_add_u32 s38, s38, s39
    s_add_u32 s38, s38, {H3S_}
    v_and_b32 v11, 3, v0
    v_lshl_add_u32 v11, v6, 2, v11
    v_lshlrev_b32 v14, 2, v11
    v_lshl_add_u32 v11, v11, 3, s38
    v_mov_b32 v13, s35
    v_mov_b32 v15, 1
    v_mov_b32 v35, 0
    v_mov_b32 v39, 0
    v_mov_b32 v43, 0
    v_mov_b32 v47, 0
    v_mov_b32 v51, 0
    v_mov_b32 v55, 0
    s_mov_b32 s60, 0x000f000f
    s_mov_b32 s61, 0x000f000f''')
    if STREAM and not STREAM & 8: a('s_branch L_fin')
    lds_wait4('Q_vi', FV)
    ts(4)
    wp = 'sc1 nt' if WNT else 'sc1'
    LR = 48; HR = 32
    sl = [f'global_load_dwordx4 v[{40+4*i}:{43+4*i}], v9, s[28:29] offset:{1024*i} sc1' for i in range(2)]
    mll = [f'global_load_dwordx4 v[{LR+4*i}:{LR+4*i+3}], v10, s[28:29] offset:{256*i} sc1' for i in range(2)]
    ol = [f'global_load_dwordx4 v[{HR+4*i}:{HR+4*i+3}], v8, s[28:29] offset:{1024*i} sc1' for i in range(2)]
    for x in mll + ol + sl: a(x.replace('sc1', wp))
    if STREAM: a('s_waitcnt vmcnt(0)\ns_branch L_fin')
    if ZW >= 0: lds_wait1('Q_fz', FZ)
    else: lds_wait4('Q_fm', FM)
    npoll('ML', mll + ol, [LR+3, LR+7], 1, reps=QREP, masktags=(HR+3, HR+7))
    ts(7)
    for x in ol: a(x)
    a(f'v_max_f32 v56, v{LR}, v{LR+4}')
    ror('v_max_f32', 56, (8, 4))
    allrows('v_max_f32', 56, 57)
    a(f'''v_sub_f32 v58, v{LR}, v56
    v_sub_f32 v59, v{LR+4}, v56
    v_cmp_ne_u32 s[50:51], s35, v{HR+3}
    v_exp_f32 v58, v58
    v_cmp_ne_u32 s[52:53], s35, v{HR+7}
    v_exp_f32 v59, v59
    s_or_b64 s[50:51], s[50:51], s[52:53]
    s_cbranch_scc0 L_O_ok''')
    npoll('O', ol, [HR+3, HR+7], PSL, init=False)
    a('L_O_ok:')
    ts(8)
    R = 'row_mask:0xf bank_mask:0xf'
    a(f'''v_mul_f32 v56, v58, v{LR+1}
    v_perm_b32 v63, v{HR+1}, v{HR}, s45
    v_fmac_f32 v56, v59, v{LR+5}
    v_perm_b32 v64, v{HR+5}, v{HR+4}, s45
    v_perm_b32 v63, v{HR+2}, v63, s46
    v_add_f32_dpp v56, v56, v56 row_ror:8 {R}
    v_perm_b32 v64, v{HR+6}, v64, s46
    v_mul_f32 v60, v{HR}, v58
    v_add_f32_dpp v56, v56, v56 row_ror:4 {R}
    v_mul_f32 v62, v{HR+2}, v58
    v_mov_b32 v57, v56
    v_mul_f32 v61, v{HR+1}, v58
    v_mul_f32 v63, v63, v58
    v_permlane32_swap_b32 v56, v57
    v_fmac_f32 v60, v{HR+4}, v59
    v_fmac_f32 v62, v{HR+6}, v59
    v_add_f32 v56, v56, v57
    v_fmac_f32 v61, v{HR+5}, v59
    v_fmac_f32 v63, v64, v59
    v_mov_b32 v57, v56
    v_permlane32_swap_b32 v60, v62
    v_permlane32_swap_b32 v61, v63
    v_permlane16_swap_b32 v56, v57
    v_add_f32 v60, v60, v62
    v_add_f32 v61, v61, v63
    v_add_f32 v56, v56, v57
    v_rcp_f32 v56, v56
    v_permlane16_swap_b32 v60, v61
    v_add_f32 v60, v60, v61''')
    ror('v_add_f32', 60, (8, 4))
    a(f'''v_mul_f32 v60, v60, v56
    v_cvt_pk_bf16_f32 v60, v60, v60
    ds_write_b32 v14, v60 offset:{O16}
    ds_write_b32 v1, v15 offset:{FT}''')
    ts(9)
    npoll('S', sl, [43, 47], PSL)
    ts(5)
    sum2(60, 40, 44, 64)
    scatter4(60)
    ror('v_add_f32', 60, (8, 4), dst=12)
    a(f'''s_mov_b64 exec, s[60:61]
    global_store_dwordx2 v11, v[12:13], s[28:29] sc1
    ds_write_b32 v1, v15 offset:{FE}
    s_waitcnt lgkmcnt(0)''')
    ts(6)
    a('s_branch L_fin')

    a('L_M2:')
    a(consts)
    a(f'''s_mul_i32 s39, s32, {MHS}
    s_add_u32 s39, s39, s34
    s_add_u32 s39, s39, {MHB}
    v_add_u32 v18, s39, v2
    s_lshl_b32 s62, s32, 1
    s_add_u32 s63, s62, 1
    s_lshl_b32 s3, s33, 8
    v_mov_b32 v17, s3
    s_waitcnt vmcnt(0)''')
    ts(1)
    mktag(16)
    def layernorm(first):
        for d in range(4):
            a(f'v_lshlrev_b32 v{60+2*d}, 16, v{8+d}')
            a(f'v_and_b32 v{61+2*d}, 0xffff0000, v{8+d}')
        a('v_readfirstlane_b32 s38, v60')
        for k in range(8): a(f'v_subrev_f32 v{70+k}, s38, v{60+k}')
        a('v_add_f32 v68, v70, v71')
        a('v_mul_f32 v69, v70, v70')
        for k in range(1, 8):
            if k >= 2: a(f'v_add_f32 v68, v68, v{70+k}')
            a(f'v_fmac_f32 v69, v{70+k}, v{70+k}')
        wave_sum([68, 69])
        a(f'''v_readlane_b32 s39, v68, 63
        v_readlane_b32 s64, v69, 63
        v_mov_b32 v70, {hex(f2u(1.0/512))}
        v_mul_f32 v68, s39, v70
        v_mul_f32 v69, s64, v70
        v_fma_f32 v69, -v68, v68, v69
        v_max_f32 v69, 0, v69
        v_add_f32 v68, s38, v68''')
        rnd(68, 68); rnd(69, 69)
        a(f'v_add_f32 v69, {hex(f2u(1e-5))}, v69')
        rnd(69, 69)
        a('v_sqrt_f32 v69, v69')
        rnd(69, 69)
        a('v_rcp_f32 v69, v69')
        if first:
            a(f'v_mul_f32 v70, {hex(f2u(LOG2E / math.sqrt(128.0)))}, v69')
            a(f'v_or_b32 v70, 1, v70')
            a(f'ds_write_b32 v1, v70 offset:{RS}')
        for k in range(8): a(f'v_sub_f32 v{60+k}, v{60+k}, v68')
        for d in range(4): a(f'v_cvt_pk_bf16_f32 v{8+d}, v{60+2*d}, v{61+2*d}')
        for d in range(4):
            a(f'v_lshlrev_b32 v{60+2*d}, 16, v{8+d}')
            a(f'v_and_b32 v{61+2*d}, 0xffff0000, v{8+d}')
        for k in range(8): a(f'v_mul_f32 v{60+k}, v{60+k}, v69')
        for d in range(4): a(f'v_cvt_pk_bf16_f32 v{8+d}, v{60+2*d}, v{61+2*d}')
    layernorm(True)
    layernorm(False)
    for d in range(4):
        a(f'v_readlane_b32 s{66+d}, v{8+d}, s62')
        a(f'v_readlane_b32 s{70+d}, v{8+d}, s63')
    for c in range(4): a(f'v_mov_b32 v{80+c}, 0')
    a('v_mov_b32 v87, s35')
    a(f'''s_movk_i32 s62, 0x700
    s_min_u32 s3, s32, 27
    s_lshl_b32 s39, s3, 5
    s_add_u32 s38, s34, s39
    s_add_u32 s38, s38, {MHB}
    v_and_b32 v7, 1, v0
    v_lshrrev_b32 v13, 1, v0
    v_mul_u32_u24 v13, {MHS}, v13
    v_lshl_add_u32 v13, v7, 4, v13
    v_add_u32 v13, s38, v13
    s_mul_i32 s38, s31, 224
    s_lshl_b32 s39, s3, 3
    s_add_u32 s38, s38, s39
    v_lshl_add_u32 v12, v7, 2, v6
    v_add_lshl_u32 v12, v12, s38, 1
    s_lshl_b32 s38, s38, 10
    s_add_u32 s38, s38, 4096
    v_lshlrev_b32 v14, 10, v6
    v_lshl_add_u32 v14, v5, 4, v14
    v_add_u32 v14, s38, v14
    s_lshr_b32 s38, s32, 1
    s_lshl_b32 s38, s38, 5
    s_and_b32 s39, s32, 1
    s_lshl_b32 s39, s39, 2
    s_add_u32 s38, s38, s39
    v_and_b32 v3, 3, v0
    v_lshl_add_u32 v15, v3, 3, v6
    v_add_lshl_u32 v15, v15, s38, 1''')
    W2 = 88
    a('v_mov_b32 v59, v12')
    a(f'''v_cmp_eq_u32 vcc, 1, v7
    v_mov_b32 v60, 0x0000ffff
    v_mov_b32 v61, 0xffff0000
    v_cndmask_b32 v60, v60, v61, vcc
    s_cmp_lt_u32 s32, 28
    s_cselect_b32 s38, -1, 0
    v_and_b32 v60, s38, v60
    v_bfe_u32 v61, v0, 1, 3''')
    for r in range(8):
        a(f'v_cmp_eq_u32 vcc, {r}, v61')
        a(f'v_cndmask_b32 v{120+r}, 0, v60, vcc')
    a(f'''s_lshl_b32 s39, s32, 6
    s_add_u32 s39, s39, s34
    s_add_u32 s39, s39, {MIB}
    v_lshrrev_b32 v8, 2, v5
    v_lshlrev_b32 v8, 1, v8
    v_and_b32 v9, 1, v6
    v_add_u32 v8, v8, v9
    v_lshrrev_b32 v9, 5, v0
    v_lshl_add_u32 v8, v9, 3, v8
    v_mul_u32_u24 v8, {IS}, v8
    v_lshl_add_u32 v8, v3, 4, v8
    v_add_u32 v8, s39, v8
    v_add_u32 v9, {16*IS}, v8
    s_mul_i32 s38, s32, {IS}
    s_add_u32 s38, s38, s34
    s_add_u32 s38, s38, {MIB}
    v_add_u32 v10, s38, v2
    s_lshl_b32 s38, s32, 10
    s_add_u32 s38, s38, {H3M_}
    s_lshl_b32 s39, s31, 7
    s_add_u32 s39, s39, s38
    v_lshl_add_u32 v11, v6, 2, v3
    v_lshlrev_b32 v11, 3, v11
    v_bfe_u32 v12, v0, 2, 2
    v_lshl_add_u32 v12, v12, 7, v11
    v_add_u32 v12, s38, v12
    v_add_u32 v11, s39, v11
    v_mov_b32 v65, s35
    v_mov_b32 v55, 0
    v_add_u32 v19, {MH2}, v18
    s_movk_i32 s39, 7168
    v_mov_b32 v71, 0
    v_mov_b32 v75, 0''')
    if BAL:
        for r in range(88, 120): a(f'v_mov_b32 v{r}, 0')
    ts(2)
    lds_wait4('M_vi', FW if MTRIG != 7 else FV)
    a('s_mov_b32 s48, 0')
    a('s_setprio 2')
    ml = ['global_load_dwordx4 v[52:55], v13, s[28:29] sc1']
    mil = [f'global_load_dwordx4 v[{68+4*i}:{71+4*i}], v10, s[28:29] offset:{1024*i} sc1' for i in range(2)]
    if HWARM:
        a(f'''s_and_b32 s38, s32, 7
        s_cmp_lg_u32 s38, s31
        s_cbranch_scc1 L_nohw
        s_lshl_b32 s38, s32, 10
        s_add_u32 s38, s38, {H3S_}
        v_add_u32 v128, s38, v2
        v_add_u32 v129, {H3M_-H3S_}, v128
        global_load_dwordx4 v[136:139], v128, s[28:29] sc1
        global_load_dwordx4 v[140:143], v129, s[28:29] sc1
        L_nohw:''')
    a('s_mov_b64 exec, s[60:61]')
    for p in range(8):
        a(f'global_load_dwordx2 v[{20+4*p}:{21+4*p}], v4, s[16:17] nt')
        a(f'global_load_dwordx2 v[{22+4*p}:{23+4*p}], v4, s[16:17] offset:3584 nt')
        if p < 7: a('v_add_u32 v4, s39, v4')
    a('global_load_dwordx4 v[128:131], v18, s[28:29] sc1')
    a('s_mov_b64 exec, -1')
    a(f'''global_load_ushort v56, v59, s[18:19]
    global_load_ushort v57, v15, s[4:5]
    global_load_ushort v58, v15, s[22:23]''')
    def w2loads():
        for cb in range(4):
            for i in range(2):
                r = W2 + 8*cb + 4*i
                a(f'global_load_dwordx4 v[{r}:{r+3}], v14, s[20:21] offset:{256*cb + 4096*i - 4096} nt')
        for x in mil: a(x)
    if BAL:
        a('s_cmp_lt_u32 s32, 28\ns_cselect_b64 exec, -1, 1')
        for cb in range(4):
            for i in range(2):
                r = W2 + 8*cb + 4*i
                a(f'global_load_dwordx4 v[{r}:{r+3}], v14, s[20:21] offset:{256*cb + 4096*i - 4096} nt')
        a('s_mov_b64 exec, -1')
        for x in mil: a(x)
    elif not W2LATE: w2loads()
    for p in range(8):
        a(f's_waitcnt vmcnt({14 - 2*p + 4 + (0 if W2LATE else 10)})')
        ra = 20 + 4*p; rb = ra + 2
        for d in range(2):
            a(f'v_perm_b32 v{60+2*d}, v{rb+d}, v{ra+d}, s40')
            a(f'v_perm_b32 v{61+2*d}, v{rb+d}, v{ra+d}, s41')
        for c in range(4): a(f'v_dot2c_f32_bf16 v{80+c}, s{66+p}, v{60+c}')
    pack(84, 80, 81, 82, 83)
    a(f'''v_bfi_b32 v84, s62, v17, v84
    s_mov_b64 exec, s[60:61]
    global_store_dwordx4 v18, v[84:87], s[28:29]
    global_store_dwordx4 v19, v[84:87], s[28:29] sc1
    s_mov_b64 exec, -1
    s_mov_b32 s60, 0x000f000f
    s_mov_b32 s61, 0x000f000f
    v_mov_b32 v39, s35
    v_mov_b32 v43, s35''')
    ts(3)
    if W2LATE: w2loads()
    if ZW >= 0 and MZ:
        lds_wait1('M_fz', FZ)
        a('s_mov_b32 s48, 0')
    swm = 's_cmp_eq_u32 s48, 64\ns_cbranch_scc1 L_MH_sw'
    tail.append(f'L_MH_sw:\ns_waitcnt vmcnt(0)\nv_add_u32 v13, {MH2}, v13\ns_add_u32 s48, s48, 1\ns_branch L_MH_c')
    npoll('MH', ml, [55], 1, pre=swm, reps=2)
    ts(4)
    a(f'''v_bfe_u32 v60, v52, 8, 3
    v_cmp_ne_u32 s[52:53], s33, v60
    v_mov_b32 v132, v52
    v_mov_b32 v133, v53
    v_mov_b32 v134, v54''')
    unpack_to(135, 52)
    a('v_lshlrev_b32 v56, 16, v56')
    scatter4(132)
    ror('v_add_f32', 132, (8, 4, 2))
    rnd(132, 132)
    a('v_add_f32 v132, v132, v56')
    rnd(132, 132)
    a(f'''s_mov_b32 s38, {hex(f2u(0.044715))}
    s_mov_b32 s39, {hex(f2u(-2.0 * math.sqrt(2.0 / math.pi) * LOG2E))}
    v_mul_f32 v133, v132, v132
    v_fma_f32 v133, v133, s38, 1.0
    v_mul_f32 v133, v133, v132
    v_mul_f32 v133, s39, v133
    v_exp_f32 v133, v133
    v_add_f32 v133, 1.0, v133
    v_rcp_f32 v133, v133
    v_mul_f32 v132, v132, v133
    v_cvt_pk_bf16_f32 v132, v132, v132''')
    for hi in range(2):
        for i in range(2):
            for r in range(4): a(f'v_and_b32_dpp v{20+8*hi+4*i+r}, v132, v{120+4*hi+r} quad_perm:[{i},{i},{i},{i}] row_mask:0xf bank_mask:0xf')
    for hi in range(2):
        for i in range(2):
            for pp in range(2):
                d = 76 + 4*pp; r = W2 + 8*(2*pp+hi) + 4*i; A = 20 + 8*hi + 4*i
                c = '0' if (hi == 0 and i == 0) else f'v[{d}:{d+3}]'
                a(f'v_mfma_f32_16x16x32_bf16 v[{d}:{d+3}], v[{A}:{A+3}], v[{r}:{r+3}], {c}')
    pack(36, 76, 77, 78, 79); pack(40, 80, 81, 82, 83)
    a('s_cmp_lg_u64 s[52:53], 0')
    store_mode('stm', ['global_store_dwordx4 v8, v[36:39], s[28:29]', 'global_store_dwordx4 v9, v[40:43], s[28:29]'])
    ts(5)
    npoll('MI', mil, [71, 75], PSL)
    ts(6)
    sum2(60, 68, 72, 66)
    scatter4(60)
    ror('v_add_f32', 60, (8, 4), dst=64)
    a(f'''s_mov_b64 exec, s[60:61]
    global_store_dwordx2 v11, v[64:65], s[28:29] sc1
    s_mov_b64 exec, -1
    s_and_b32 s38, s32, 7
    s_cmp_lg_u32 s38, s31
    s_cbranch_scc1 L_fin
    v_add_u32 v13, {(H3S_-H3M_) & 0xffffffff}, v12''')
    hm = [f'global_load_dwordx2 v[{20+2*i}:{21+2*i}], v12, s[28:29] offset:{512*i} sc1' for i in range(2)]
    hs = [f'global_load_dwordx2 v[{24+2*i}:{25+2*i}], v13, s[28:29] offset:{512*i} sc1' for i in range(2)]
    a(f'''v_lshlrev_b32 v57, 16, v57
    v_lshlrev_b32 v58, 16, v58
    v_mov_b32 v21, 0
    v_mov_b32 v23, 0
    v_mov_b32 v25, 0
    v_mov_b32 v27, 0
    s_mov_b32 s39, {hex(f2u(-LOG2E))}''')
    if FEARLY:
        for x in hs: a(x)
    a(f'''L_M_fe:
    s_sleep 1
    ds_read_b32 v28, v1 offset:{FE}''')
    spin_guard()
    a(f'''s_waitcnt lgkmcnt(0)
    v_cmp_eq_u32 vcc, 0, v28
    s_cbranch_vccnz L_M_fe
    s_setprio 3''')
    a('s_mov_b64 s[50:51], -1')
    a('L_HM_l:')
    a('s_wqm_b64 exec, s[50:51]')
    for x in hm + hs: a(x)
    a(f'''s_mov_b64 exec, -1
    s_add_u32 s48, s48, 1
    s_cmp_gt_u32 s48, {MAXPOLL}
    s_cbranch_scc1 L_end
    s_sleep 1
    s_waitcnt vmcnt(32)
    v_cmp_ne_u32 s[50:51], s35, v25
    v_cmp_ne_u32 s[52:53], s35, v27
    v_cmp_ne_u32 s[54:55], s35, v21
    v_cmp_ne_u32 s[56:57], s35, v23
    s_or_b64 s[50:51], s[50:51], s[52:53]
    s_or_b64 s[50:51], s[50:51], s[54:55]
    s_or_b64 s[50:51], s[50:51], s[56:57]
    s_or_b64 s[54:55], s[54:55], s[56:57]
    s_cbranch_scc1 L_HM_l''')
    ts(7)
    for x in hs: a(x)
    a('v_add_f32 v30, v20, v22')
    ror('v_add_f32', 30, (8, 4))
    rnd(30, 30)
    a('v_add_f32 v30, v30, v58')
    rnd(30, 30)
    a(f'''v_mul_f32 v31, s39, v30
    v_exp_f32 v31, v31
    v_add_f32 v31, 1.0, v31
    v_rcp_f32 v31, v31
    v_mul_f32 v30, v30, v31''')
    rnd(30, 30)
    a('s_branch L_HS_c')
    npoll('HS', hs, [25, 27], 1, init=False)
    ts(8)
    a('v_add_f32 v32, v24, v26')
    ror('v_add_f32', 32, (8, 4))
    rnd(32, 32)
    a('v_mul_f32 v32, v32, v30')
    rnd(32, 32)
    a(f'''v_add_f32 v32, v32, v57
    v_cvt_pk_bf16_f32 v32, v32, v32
    s_mov_b64 exec, s[60:61]
    global_store_short v15, v32, s[24:25]
    s_cmp_lg_u32 s2, 0
    s_cbranch_scc1 L_fin
    s_mov_b64 exec, 1
    v_mov_b32 v4, s35
    global_store_dword v1, v4, s[28:29] sc1
    s_branch L_fin''')

    att[0] = True
    a('L_A2:')
    for i, e in enumerate(PPOS[:-1]):
        waitfor(('P1', e))
        if i == 0: ts(1)
        a(f'''v_cmp_ne_u32 s[50:51], s35, v{PB+3}
        v_cmp_ne_u32 s[52:53], s35, v{PB+7}
        s_or_b64 s[50:51], s[50:51], s[52:53]
        s_cbranch_scc0 L_P_ok''')
    sw = f'''s_cmp_eq_u32 s48, 16
    s_cselect_b32 s38, {H1S-H1F}, 0
    v_add_u32 v12, s38, v12''' if H1FAST else ''
    poll('P', pl, [PB+3, PB+7], len(issued) - 1 - issued.index(('P1', PPOS[-1])), sw)
    a('L_P_ok:')
    ts(2)
    a(f'''v_bfe_u32 v{T0}, v{PB}, 8, 3
    v_bfe_u32 v{T0+1}, v{PB+4}, 8, 3
    v_cmp_ne_u32 s[50:51], s33, v{T0}
    v_cmp_ne_u32 s[52:53], s33, v{T0+1}''')
    sum2(PR, PB, PB+4, PR+4)
    a('s_or_b64 s[50:51], s[50:51], s[52:53]')
    a('s_cselect_b32 s49, 3, 1')
    a(f'''v_mov_b32 v{T0}, s49
    v_permlane32_swap_b32 v{PR}, v{PR+2}
    v_permlane32_swap_b32 v{PR+1}, v{PR+3}
    v_add_f32 v{PR}, v{PR}, v{PR+2}
    v_add_f32 v{PR+1}, v{PR+1}, v{PR+3}
    v_cvt_pk_bf16_f32 v{PR}, v{PR}, v{PR+1}
    ds_write_b32 v17, v{PR}
    ds_write_b32 v16, v{T0} offset:{FQ}
    L_q_spin:
    ds_read_b128 v[{PR}:{PR+3}], v1 offset:{FQ}
    ds_read_b32 v{PR+4}, v1 offset:{RS}''')
    for t in range(4): a(f'ds_read_b128 v[{QF+4*t}:{QF+4*t+3}], v18 offset:{64*t}')
    spin_guard()
    lgkm(4)
    a(f'''v_and_b32 v{T0}, v{PR}, v{PR+1}
    v_and_b32 v{T0+1}, v{PR+2}, v{PR+3}
    v_and_b32 v{T0}, v{T0}, v{PR+4}
    v_and_b32 v{T0}, v{T0}, v{T0+1}
    v_and_b32 v{T0}, 1, v{T0}
    v_cmp_eq_u32 vcc, 0, v{T0}
    s_cbranch_vccnz L_q_spin''')
    for t in range(4):
        lgkm(3 - t)
        for b in range(2):
            c = '0' if t == 0 else f'v[{DS+4*b}:{DS+4*b+3}]'
            k = KR + 16*b + 4*t
            a(f'v_mfma_f32_16x16x32_bf16 v[{DS+4*b}:{DS+4*b+3}], v[{k}:{k+3}], v[{QF+4*t}:{QF+4*t+3}], {c}')
        if t == 0:
            a(f'''v_or3_b32 v{T0+2}, v{PR}, v{PR+1}, v{PR+2}
            v_or_b32 v{T0+2}, v{T0+2}, v{PR+3}''')
        if t == 1:
            a(f'v_readfirstlane_b32 s49, v{T0+2}')
    a('s_and_b32 s49, s49, 2')
    if WOPOS == 1:
        for n in range(16, 20): issue(('D', n), D[n])
    a(f'''v_max3_f32 v{T0}, v{DS}, v{DS+1}, v{DS+2}
    v_max3_f32 v{T0+1}, v{DS+3}, v{DS+4}, v{DS+5}
    v_max3_f32 v{T0}, v{T0}, v{DS+6}, v{DS+7}
    v_max_f32 v{T0}, v{T0}, v{T0+1}''')
    allrows('v_max_f32', T0, T0+1)
    a(f'v_mul_f32 v{T0}, v{T0}, v{PR+4}')
    for k in range(8): a(f'v_fma_f32 v{DS+k}, v{DS+k}, v{PR+4}, -v{T0}')
    for k in range(8): a(f'v_exp_f32 v{DS+k}, v{DS+k}')
    a(f'''v_add_f32 v{T0+1}, v{DS}, v{DS+1}
    v_add_f32 v{T0+2}, v{DS+2}, v{DS+3}
    v_add_f32 v{T0+3}, v{DS+4}, v{DS+5}
    v_add_f32 v{T0+1}, v{T0+1}, v{T0+2}
    v_add_f32 v{T0+2}, v{DS+6}, v{DS+7}
    v_add_f32 v{T0+1}, v{T0+1}, v{T0+3}
    v_add_f32 v{T0+1}, v{T0+1}, v{T0+2}''')
    allrows('v_add_f32', T0+1, T0+2)
    a(f'ds_write_b64 v19, v[{T0}:{T0+1}] offset:{MLX}')
    for k in range(4): a(f'v_cvt_pk_bf16_f32 v{PR+k}, v{DS+2*k}, v{DS+2*k+1}')
    for j in range(4):
        for k in range(4): a(f'v_cndmask_b32 v{QF+4*j+k}, 0, v{PR+k}, s[{66+2*j}:{67+2*j}]')
    ts(3)
    VT = KR
    def vperm(pr):
        ia = 2*pr; ib = ia + 1
        for d in range(4):
            a(f'v_perm_b32 v{VT + 4*(2*d) + pr}, v{VR+4*ib+d}, v{VR+4*ia+d}, s40')
            a(f'v_perm_b32 v{VT + 4*(2*d+1) + pr}, v{VR+4*ib+d}, v{VR+4*ia+d}, s41')
    FR = T0 + 12
    def mlx_read():
        a(f'''ds_read_b128 v[{T0}:{T0+3}], v24 offset:{MLX}
        ds_read_b128 v[{T0+4}:{T0+7}], v24 offset:{MLX+16}''')
    def mlx_check(nyoung):
        a('s_branch L_ml_chk')
        a('L_ml_spin:')
        mlx_read()
        spin_guard()
        a('s_waitcnt lgkmcnt(0)')
        a('L_ml_chk:')
        lgkm(nyoung)
        a(f'''v_min_u32 v{T0+8}, v{T0+1}, v{T0+3}
        v_min3_u32 v{T0+8}, v{T0+8}, v{T0+5}, v{T0+7}
        v_max3_f32 v{PR+4}, v{T0}, v{T0+2}, v{T0+4}
        v_cmp_eq_u32 vcc, 0, v{T0+8}
        v_max_f32 v{PR+4}, v{PR+4}, v{T0+6}
        s_cbranch_vccnz L_ml_spin''')
    def factors():
        for k in range(4): a(f'v_sub_f32 v{FR+k}, v{T0+2*k}, v{PR+4}')
        for k in range(4): a(f'v_exp_f32 v{FR+k}, v{FR+k}')
        a(f'v_mul_f32 v{PR+5}, v{FR}, v{T0+1}')
        for k in range(1, 4): a(f'v_fmac_f32 v{PR+5}, v{FR+k}, v{T0+2*k+1}')
    def mlstore():
        a('s_cmp_lg_u32 s49, 0')
        a('s_mov_b64 exec, 1')
        store_mode('stml', [f'global_store_dwordx4 v13, v[{PR+4}:{PR+7}], s[28:29]'])
        issued.append('MLst')
        a('s_mov_b64 exec, -1')
        if ZW < 0: a(f'ds_write_b32 v16, v25 offset:{FM}')
    a(f'v_mov_b32 v{PR+7}, s35')
    if MLEARLY:
        mlx_read()
        waitfor(('D', 9))
        vperm(0)
        mlx_check(0)
        factors()
        mlstore()
    if WOPOS == 2:
        for n in range(16, 20): issue(('D', n), D[n])
    if WOPOS == 3:
        a('s_bitcmp1_b32 s32, 0\ns_cbranch_scc1 L_wo_skip')
        for n in range(16, 20): issue(('D', n), D[n])
        a('L_wo_back:')
        tail.append('L_wo_skip:\ns_mov_b64 exec, 1\n' + '\n'.join(['global_load_dword v26, v12, s[28:29] sc1'] * 4) + '\ns_mov_b64 exec, -1\ns_branch L_wo_back')
    for pr in range(1, 3):
        waitfor(('D', 8 + 2*pr + 1))
        vperm(pr)
    a(f'v_mov_b32 v{PR+3}, s35')
    waitfor(('D', 15))
    ts(4)
    def p3(j): a(f'v_perm_b32 v{VT + 4*j + 3}, v{VR+28+(j>>1)}, v{VR+24+(j>>1)}, s{40+(j&1)}')
    def pv(j):
        h = j >> 2
        c = '0' if (j & 3) == 0 else f'v[{DS+4*h}:{DS+4*h+3}]'
        a(f'v_mfma_f32_16x16x32_bf16 v[{DS+4*h}:{DS+4*h+3}], v[{QF+4*(j&3)}:{QF+4*(j&3)+3}], v[{VT+4*j}:{VT+4*j+3}], {c}')
    p3(0); p3(1); p3(2); pv(0); p3(3); pv(1); p3(4); pv(2); p3(5); pv(3); p3(6); pv(4); p3(7); pv(5); pv(6); pv(7)
    a(f'''ds_write_b128 v21, v[{DS}:{DS+3}]
    ds_write_b128 v21, v[{DS+4}:{DS+7}] offset:{OH}
    ds_write_b32 v16, v25 offset:{FO}
    L_o_spin:
    ds_read_b128 v[{T0+8}:{T0+11}], v1 offset:{FO}''')
    for wp_ in range(4): a(f'ds_read_b128 v[{VR+4*wp_}:{VR+4*wp_+3}], v22 offset:{OW*wp_}')
    spin_guard()
    lgkm(4)
    a(f'''v_and_b32 v{T0+8}, v{T0+8}, v{T0+9}
    v_and_b32 v{T0+10}, v{T0+10}, v{T0+11}
    v_and_b32 v{T0+8}, v{T0+8}, v{T0+10}
    v_cmp_eq_u32 vcc, 0, v{T0+8}
    s_cbranch_vccnz L_o_spin''')
    lgkm(3)
    for k in range(4): a(f'v_mul_f32 v{VR+k}, v{VR+k}, v{FR}')
    for wp_ in range(1, 4):
        lgkm(3 - wp_)
        for k in range(4): a(f'v_fmac_f32 v{VR+k}, v{VR+4*wp_+k}, v{FR+wp_}')
    a('s_cmp_lg_u32 s49, 0')
    a('s_mov_b32 exec_hi, 0')
    pack(PR, VR, VR+1, VR+2, VR+3)
    store_mode('st2', [f'global_store_dwordx4 v10, v[{PR}:{PR+3}], s[28:29]'])
    a('s_mov_b64 exec, -1')
    ts(5)
    if WOPOS == 3:
        a('s_bitcmp1_b32 s32, 0\ns_cbranch_scc0 L_wo_have')
        for n in range(16, 20): a(D[n])
        a('L_wo_have:')
    if ZW >= 0:
        a(f's_waitcnt vmcnt({4 - ZW})')
        a(f'ds_write_b32 v1, v25 offset:{FZ}')
    a(f'''v_lshlrev_b32 v15, 4, v6
    s_waitcnt vmcnt({ {2: 1, 3: 0}.get(WOPOS, 2)})''')
    ts(6)
    a(f'''L_t_spin:
    ds_read_b32 v{T0+4}, v1 offset:{FT}
    ds_read_b128 v[{T0}:{T0+3}], v15 offset:{O16}''')
    spin_guard()
    a(f'''s_waitcnt lgkmcnt(0)
    v_cmp_eq_u32 vcc, 0, v{T0+4}''')
    AT = QF; DO = DS
    for r in range(4): a(f'v_and_b32 v{AT+r}, v{T0}, v{28+r}')
    a('s_cbranch_vccnz L_t_spin')
    ts(7)
    for i in range(1, 5):
        if i < 4:
            for r in range(4): a(f'v_and_b32 v{AT+4*i+r}, v{T0+i}, v{28+r}')
        c = '0' if i == 1 else f'v[{DO}:{DO+3}]'
        a(f'v_mfma_f32_16x16x32_bf16 v[{DO}:{DO+3}], v[{AT+4*(i-1)}:{AT+4*(i-1)+3}], v[{WOR+4*(i-1)}:{WOR+4*(i-1)+3}], {c}')
    a('s_cmp_lg_u32 s49, 0')
    a('s_mov_b32 exec_hi, 0')
    pack(PR, DO, DO+1, DO+2, DO+3)
    store_mode('st3', [f'global_store_dwordx4 v11, v[{PR}:{PR+3}], s[28:29]'])
    ts(8)
    a('L_fin:')
    if DIAG:
        if DIAGG >= 0: a(f's_cmp_lg_u32 s31, {DIAGG}\ns_cbranch_scc1 L_end')
        a(f'''L_dg:
        s_memrealtime s[78:79]
        s_waitcnt lgkmcnt(0)
        s_sub_u32 s78, s78, s76
        s_cmp_lt_u32 s78, {DIAG}
        s_cbranch_scc1 L_dg''')
    if DBG:
        a('''s_memrealtime s[100:101]
        s_mov_b64 exec, 1
        v_mov_b32 v1, 0
        s_waitcnt lgkmcnt(0)
        s_not_b32 s38, s76
        v_mov_b32 v2, s38
        global_atomic_umax v1, v2, s[26:27] offset:60
        v_mov_b32 v2, s76
        global_atomic_umax v1, v2, s[26:27] offset:56
        v_mov_b32 v2, s100
        global_atomic_umax v1, v2, s[26:27] offset:52
        s_cmp_lt_u32 s30, 2
        s_cbranch_scc1 L_dbg0''')
        for k in range(1, 9):
            a(f'v_mov_b32 v2, s{76+2*k}')
            a(f'global_atomic_umax v1, v2, s[26:27] offset:{4*(k-1)}')
        a('s_endpgm')
        a('L_dbg0:')
        a('s_cmp_eq_u32 s30, 1\ns_cbranch_scc1 L_end')
        for i, k in enumerate((1, 2, 3, 5)):
            a(f'v_mov_b32 v2, s{76+2*k}')
            a(f'global_atomic_umax v1, v2, s[26:27] offset:{4*(8+i)}')
    elif TS:
        att[0] = False
        if not TS2: ts(12)
        a(f'''s_mul_i32 s38, s2, 6
        s_add_u32 s38, s38, s30
        s_lshl_b32 s38, s38, 7
        s_add_u32 s38, s38, {TSB}
        s_mov_b64 exec, 1
        v_mov_b32 v1, s38
        s_waitcnt lgkmcnt(0)''')
        for k in range(13):
            a(f'v_mov_b32 v2, s{76+2*k}')
            a(f'global_store_dword v1, v2, s[28:29] offset:{4*k}')
        a('v_mov_b32 v2, s48')
        a(f'global_store_dword v1, v2, s[28:29] offset:64')
    a('s_endpgm')
    for t in tail: a(t)
    a('L_end:')
    a('s_endpgm')
    a.raw(f'''.section .rodata,"a"
.p2align 6
.amdhsa_kernel {KN}_kernel
  .amdhsa_next_free_vgpr 168
  .amdhsa_next_free_sgpr 102
  .amdhsa_accum_offset 168
  .amdhsa_group_segment_fixed_size 0
  .amdhsa_kernarg_size 104
  .amdhsa_user_sgpr_count 2
  .amdhsa_user_sgpr_kernarg_segment_ptr 1
  .amdhsa_system_sgpr_workgroup_id_x 1
.end_amdhsa_kernel''')
    return a.text()

if __name__ == '__main__':
    for spec in sys.argv[1:]:
        name, kw = spec.split('=', 1)
        kw = eval('dict(' + kw + ')')
        open(f'exp/{name}.s', 'w').write(gen(**kw))
```

```python
import sys, struct, math
sys.path.insert(0, 'gen')
from asmlib import Asm
KN = 'recurrent_scan__sliding_block_cached__mixer_channel_mlp__decode'
def f2u(f): return struct.unpack('<I', struct.pack('<f', f))[0]
GB0 = 0x10000; GA = 0x4C000
H1F = 0; H1S = 0x2000; MLB = 0x4000; MHB = 0x5000; MHS = 896; MH2 = 0x45000 - 0x5000
OIB = 0x10000; SIB = 0x22000; MIB = 0x34000; IS = 2176
H3S_ = 0x280000; H3M_ = 0x288000
TSB = 0x800000
QL = 0; QS = 320; FQ = 1280; RS = 1296; FV = 1312; FO = 1328; MLX = 1344; FT = 1472; FE = 1476; FZ = 1480; FM = 1488; FW = 1504; O16 = 1536; OL = 2048; OH = 1152; OW = 2304; KL = 16384; LDSZ = 16384 + 32768
LOG2E = 1.4426950408889634
MAXPOLL = 400000
DOC = """;
; Workgroups hand data over through d_ws in 16-byte {3 data words, tag} granules; tag = f(epoch word found in d_ws).
; hand-offs between groups are always write-through; all polls are sc1 loads."""

def gen(TS=False, TS2=False, WIN=6, PA=4, H1FAST=True, PF=True, SPREAD=True, WNT=False, MLEARLY=True, DBG=False, SLP=2, LATEF=True, PE=1, BURST=True, STREAM=0, NOP=False, ROT='g', NST=15, PSL=1, MWAIT=True, PPOS=(1, 4, 7), SNT=False, TOUCH=0, DIAG=0, DIAGG=-1, WOPOS=2, FUSE=True, TIGHT=True, FEARLY=False, QMAP=0, ELATE=True, QROW=0, XPOS=15, SPF=False, MTRIG=7, W2LATE=False, QREP=2, ZW=0, MZ=True, HWARM=False, BAL=False, FDLY=0, WB=0, OSC=False):
    a = Asm()
    hdr = open('cdna_kernels/' + KN + '.s.ref').read().split('\n')
    for l in hdr:
        if l.startswith('; @launch'): break
        a.raw(l)
    a.raw(f'; @launch grid=(256,1,1) block=(384,1,1) lds={LDSZ}')
    a.raw(DOC)
    a.raw('.amdgcn_target "amdgcn-amd-amdhsa--gfx950"\n.text')
    a.raw(f'.globl {KN}_kernel\n.p2align 8\n.type {KN}_kernel,@function\n{KN}_kernel:')
    att = [False]
    def ts2(k):
        if TS2 and k <= 12: a(f's_memrealtime s[{76+2*k}:{77+2*k}]')
    def ts(k):
        if TS2 and att[0]: return
        if TS: a(f's_memrealtime s[{76+2*k}:{77+2*k}]')
    def lgkm(n): a(f's_waitcnt lgkmcnt({0 if TS else n})')
    def wave_sum(vs):
        for sh in (1, 2, 4, 8):
            for x in vs: a(f'v_add_f32_dpp v{x}, v{x}, v{x} row_shr:{sh} row_mask:0xf bank_mask:0xf bound_ctrl:0')
        for x in vs: a(f'v_add_f32_dpp v{x}, v{x}, v{x} row_bcast:15 row_mask:0xa bank_mask:0xf')
        for x in vs: a(f'v_add_f32_dpp v{x}, v{x}, v{x} row_bcast:31 row_mask:0xc bank_mask:0xf')
    def ror(op, x, shs, dst=None):
        for i, sh in enumerate(shs):
            d = dst if (dst is not None and i == len(shs) - 1) else x
            a(f'{op}_dpp v{d}, v{x}, v{x} row_ror:{sh} row_mask:0xf bank_mask:0xf')
    def scatter4(r):
        a(f'''v_permlane32_swap_b32 v{r}, v{r+2}
        v_permlane32_swap_b32 v{r+1}, v{r+3}
        v_add_f32 v{r}, v{r}, v{r+2}
        v_add_f32 v{r+1}, v{r+1}, v{r+3}
        v_permlane16_swap_b32 v{r}, v{r+1}
        v_add_f32 v{r}, v{r}, v{r+1}''')
    def allrows(op, x, t):
        a(f'''v_mov_b32 v{t}, v{x}
        v_permlane32_swap_b32 v{x}, v{t}
        {op} v{x}, v{x}, v{t}
        v_mov_b32 v{t}, v{x}
        v_permlane16_swap_b32 v{x}, v{t}
        {op} v{x}, v{x}, v{t}''')
    def rnd(dst, src):
        a(f'v_cvt_pk_bf16_f32 v{dst}, v{src}, v{src}')
        a(f'v_and_b32 v{dst}, 0xffff0000, v{dst}')
    def mktag(ve):
        a(f'''v_readfirstlane_b32 s35, v{ve}
        s_add_u32 s35, s35, 0x9E3779B9
        s_or_b32 s35, s35, 1''')
    def pack(d, v0, v1, v2, v3):
        a(f'v_perm_b32 v{d}, v{v0}, v{v3}, s42')
        a(f'v_perm_b32 v{d+1}, v{v1}, v{v3}, s43')
        a(f'v_perm_b32 v{d+2}, v{v2}, v{v3}, s44')
    def unpack3(d):
        a(f'v_perm_b32 v{d+3}, v{d+1}, v{d}, s45')
        a(f'v_perm_b32 v{d+3}, v{d+2}, v{d+3}, s46')
    def poll(name, loads, tagregs, first_wait, pre='', slp=0):
        a(f's_waitcnt vmcnt({first_wait})')
        a(f's_branch L_{name}_chk')
        a(f'L_{name}_retry:')
        if slp: a(f's_sleep {slp}')
        a(f'''s_add_u32 s48, s48, 1
        {pre}
        s_wqm_b64 exec, s[50:51]''')
        for x in loads: a(x)
        a(f'''s_mov_b64 exec, -1
        s_cmp_gt_u32 s48, {MAXPOLL}
        s_cbranch_scc1 L_end
        s_waitcnt vmcnt(0)
        L_{name}_chk:''')
        for i, r in enumerate(tagregs):
            a(f'v_cmp_ne_u32 s[{50+2*i}:{51+2*i}], s35, v{r}')
        if len(tagregs) == 1: a('s_cmp_lg_u64 s[50:51], 0')
        else:
            for i in range(1, len(tagregs)): a(f's_or_b64 s[50:51], s[50:51], s[{50+2*i}:{51+2*i}]')
        a(f's_cbranch_scc1 L_{name}_retry')
    def npoll(name, loads, tagregs, slp, init=True, pre='', reps=1, masktags=()):
        if init: a('s_mov_b64 s[50:51], -1')
        a(f'L_{name}_l:')
        if pre: a(pre)
        a('s_wqm_b64 exec, s[50:51]')
        for x in loads: a(x)
        a(f'''s_mov_b64 exec, -1
        s_add_u32 s48, s48, 1
        s_cmp_gt_u32 s48, {MAXPOLL}
        s_cbranch_scc1 L_end
        s_waitcnt vmcnt(56)''')
        for rp in range(reps):
            if slp: a(f's_sleep {slp}')
            if rp == reps - 1:
                a(f'L_{name}_c:')
                for i, r in enumerate(masktags):
                    a(f'v_cmp_ne_u32 s[{54+2*i}:{55+2*i}], s35, v{r}')
            for i, r in enumerate(tagregs):
                a(f'v_cmp_ne_u32 s[{50+2*i}:{51+2*i}], s35, v{r}')
            for i in range(1, len(tagregs)): a(f's_or_b64 s[50:51], s[50:51], s[{50+2*i}:{51+2*i}]')
            if len(tagregs) == 1: a('s_cmp_lg_u64 s[50:51], 0')
            if rp < reps - 1 or masktags: a(f's_cbranch_scc0 L_{name}_x')
            else: a(f's_cbranch_scc1 L_{name}_l')
        if masktags:
            for i in range(len(masktags)): a(f's_or_b64 s[50:51], s[50:51], s[{54+2*i}:{55+2*i}]')
            a(f's_branch L_{name}_l')
        a(f'L_{name}_x:')
    def unpack_to(t, d):
        a(f'v_perm_b32 v{t}, v{d+1}, v{d}, s45')
        a(f'v_perm_b32 v{t}, v{d+2}, v{t}, s46')
    def sum2(dst, r0, r1, t):
        unpack_to(dst+3, r0); unpack_to(t, r1)
        for k in range(3): a(f'v_add_f32 v{dst+k}, v{r0+k}, v{r1+k}')
        a(f'v_add_f32 v{dst+3}, v{dst+3}, v{t}')
    tail = []
    def store_mode(name, ins):
        a(f's_cbranch_scc1 L_{name}_slow')
        for x in ins: a(x)
        a(f'L_{name}_done:')
        tail.append(f'L_{name}_slow:\n' + '\n'.join(x + ' sc1' for x in ins) + f'\ns_branch L_{name}_done')
    consts = '''s_mov_b32 s40, 0x05040100
        s_mov_b32 s41, 0x07060302
        s_mov_b32 s42, 0x07060501
        s_mov_b32 s43, 0x07060502
        s_mov_b32 s44, 0x07060503
        s_mov_b32 s45, 0x0c04000c
        s_mov_b32 s46, 0x04020100
        s_getreg_b32 s33, hwreg(HW_REG_XCC_ID)
        s_and_b32 s33, s33, 7'''
    spin = [0]
    def spin_guard():
        a(f'''s_add_u32 s48, s48, 1
        s_cmp_gt_u32 s48, {MAXPOLL}
        s_cbranch_scc1 L_end''')

    ts(0)
    if DIAG: a('s_memrealtime s[76:77]')
    a(f'''s_load_dwordx16 s[4:19], s[0:1], 0
    s_load_dwordx8 s[20:27], s[0:1], 64
    s_load_dwordx2 s[28:29], s[0:1], 96
    s_cmp_ge_u32 s2, 256
    s_cbranch_scc1 L_end
    v_lshrrev_b32 v1, 6, v0
    v_and_b32 v0, 63, v0
    s_getpc_b64 s[36:37]
    L_pc:
    v_readfirstlane_b32 s30, v1
    s_and_b32 s31, s2, 7
    s_lshr_b32 s32, s2, 3
    s_mul_i32 s38, s32, 6
    s_add_u32 s38, s38, s30
    s_lshl_b32 s38, s38, 7
    v_mov_b32 v1, s38
    s_cmp_gt_u32 s38, L_end-L_pc
    s_cbranch_scc1 L_nopf
    s_mov_b64 exec, 1
    {'global_load_dword v26, v1, s[36:37]' if PF and not SPF else 's_nop 0'}
    s_mov_b64 exec, -1
    L_nopf:
    s_mul_i32 s34, s31, {GA}
    s_add_u32 s34, s34, {GB0}
    s_mov_b32 s48, 0
    v_mov_b32 v1, 0
    v_lshlrev_b32 v2, 4, v0
    v_and_b32 v5, 15, v0
    v_lshrrev_b32 v6, 4, v0
    s_cmp_eq_u32 s30, 1
    s_cbranch_scc1 L_M
    s_cmp_gt_u32 s30, 1
    s_cbranch_scc1 L_A''')
    qm = {0: 's_mov_b32 s74, s32', 1: 's_and_b32 s74, s32, 7\ns_lshl_b32 s74, s74, 2\ns_lshr_b32 s38, s32, 3\ns_add_u32 s74, s74, s38', 2: 's_and_b32 s38, s32, 12\ns_cmp_eq_u32 s38, 12\ns_cselect_b32 s38, 16, 0\ns_xor_b32 s74, s32, s38'}[2 if BAL else QMAP]
    a(f'''s_setprio 3
    {qm}
    v_and_b32 v4, 1, v0
    v_lshl_add_u32 v3, v6, 1, v4
    v_lshlrev_b32 v3, {7 if QROW else 5}, v3
    s_and_b32 s38, s74, 3
    s_lshl_b32 s39, s38, {5 if QROW else 8}
    v_add_u32 v3, s39, v3
    v_lshrrev_b32 v4, 3, v0
    v_lshlrev_b32 v4, {19 if QROW else 17}, v4
    v_and_b32 v7, 7, v0
    v_lshl_add_u32 v4, v7, 4, v4
    s_lshl_b32 s39, s38, {17 if QROW else 20}
    s_lshl_b32 s38, s31, 10
    s_add_u32 s39, s39, s38
    s_lshr_b32 s38, s74, 2
    s_lshl_b32 s38, s38, 7
    s_add_u32 s39, s39, s38
    v_add_u32 v4, s39, v4
    s_mov_b32 s38, 0x3f803f80
    s_movk_i32 s39, 0x2000''')
    for r in range(8, 16): a(f'v_mov_b32 v{r}, s38')
    a(f'''s_mov_b32 s60, 0x00030003
    s_mov_b32 s61, 0x00030003
    s_waitcnt lgkmcnt(0)''')
    for i in range(16):
        a(f'global_load_dwordx4 v[{20+4*i}:{23+4*i}], v4, s[10:11] nt')
        if i < 15: a('v_add_u32 v4, s39, v4')
        if i == XPOS:
            a('''s_mov_b64 exec, s[60:61]
            global_load_dwordx4 v[8:11], v3, s[4:5]
            global_load_dwordx4 v[12:15], v3, s[4:5] offset:16
            s_mov_b64 exec, -1
            global_load_dwordx4 v[148:151], v2, s[4:5]
            s_mov_b64 exec, 1
            global_load_dword v16, v1, s[28:29] sc1
            s_mov_b64 exec, -1''')
    a('s_barrier')
    a('s_branch L_Q2')
    a(f'''L_M:
    s_mul_i32 s38, s32, {16*3584}
    s_mul_i32 s39, s31, 448
    s_add_u32 s38, s38, s39
    v_lshl_add_u32 v4, v0, 3, s38
    s_movk_i32 s39, 7168
    s_mov_b32 s60, -1
    s_mov_b32 s61, 0x00ffffff
    v_lshlrev_b32 v3, 2, v0
    ds_write_b32 v3, v1 offset:{FQ}
    s_waitcnt lgkmcnt(0)
    {'' if ELATE else 'global_load_dwordx4 v[8:11], v2, s[4:5]'}
    s_mov_b64 exec, 1
    {'' if ELATE else 'global_load_dword v16, v1, s[28:29] sc1'}
    s_barrier
    {'global_load_dword v16, v1, s[28:29] sc1' if ELATE else ''}
    s_mov_b64 exec, -1
    {'global_load_dwordx4 v[8:11], v2, s[4:5]' if ELATE else ''}
    s_branch L_M2''')
    KR = 32; VR = 64; PR = 96; WOR = 104; QF = 120; DS = 136; T0 = 144; KS = 50; PB = 160
    rot = {'s2w': 's_lshl_b32 s3, s47, 1\ns_add_u32 s3, s3, s32', 'g': 's_mov_b32 s3, s31', 'g2w': 's_lshl_b32 s3, s47, 1\ns_add_u32 s3, s3, s31',
           '0': 's_mov_b32 s3, 0', '2w': 's_lshl_b32 s3, s47, 1', 's': 's_mov_b32 s3, s32', 'sh': 's_lshr_b32 s3, s32, 2\ns_add_u32 s3, s3, s31'}[ROT]
    a(f'''L_A:
    s_sub_u32 s47, s30, 2
    s_lshl_b32 s38, s31, 24
    s_lshl_b32 s39, s32, 15
    s_add_u32 s38, s38, s39
    s_lshl_b32 s39, s47, 10
    s_add_u32 s38, s38, s39
    s_add_u32 s38, s38, {0xF00000}
    s_lshl_b32 s39, s47, 13
    s_add_u32 s39, s39, {KL}
    s_mov_b32 m0, s39
    {rot}
    v_xor_b32 v7, v5, v6
    v_lshlrev_b32 v7, 4, v7
    v_lshl_add_u32 v{T0}, v6, 8, v7
    v_add_u32 v{T0}, s38, v{T0}
    v_xor_b32 v{T0+1}, 64, v{T0}
    v_xor_b32 v{T0+2}, 0x80, v{T0}
    v_xor_b32 v{T0+3}, 0xc0, v{T0}
    v_lshl_add_u32 v{T0+4}, v5, 8, v7
    v_add_u32 v{T0+4}, s39, v{T0+4}
    v_add_u32 v4, s3, v6
    v_and_b32 v4, 7, v4
    v_lshlrev_b32 v4, 12, v4
    v_lshl_add_u32 v4, v5, 4, v4
    v_add_u32 v4, s38, v4
    v_xor_b32 v27, 0x4000, v4
    s_waitcnt lgkmcnt(0)
    s_mov_b64 exec, 1
    {'' if ELATE else 'global_load_dword v23, v1, s[28:29] sc1'}
    s_mov_b64 exec, -1''')
    if TOUCH:
        a(f'''s_mov_b64 exec, 1
        s_cmp_eq_u32 s47, 1
        s_cbranch_scc1 L_tch1
        s_cmp_eq_u32 s47, 2
        s_cbranch_scc1 L_tch2
        s_cmp_eq_u32 s47, 3
        s_cbranch_scc1 L_tch3
        s_lshl_b32 s39, s31, 5
        s_add_u32 s39, s39, s32
        s_lshl_b32 s39, s39, 14
        v_mov_b32 v8, s39
        global_load_dword v26, v4, s[8:9] nt
        global_load_dword v26, v8, s[12:13] nt
        global_load_dword v26, v{T0}, s[6:7] nt
        s_branch L_tchd
        L_tch1:
        s_mul_i32 s39, s31, {224*1024}
        v_mov_b32 v8, s39
        global_load_dword v26, v8, s[20:21] nt
        global_load_dword v26, v1, s[18:19]
        global_load_dword v26, v1, s[22:23]
        s_branch L_tchd
        L_tch2:
        v_mov_b32 v8, {H3S_}
        v_mov_b32 v9, s34
        global_load_dword v26, v1, s[24:25]
        global_load_dword v26, v8, s[28:29] offset:-128
        global_load_dword v26, v9, s[28:29] offset:-128
        s_branch L_tchd
        L_tch3:
        s_add_u32 s39, s34, {SIB}
        v_mov_b32 v8, s39
        s_add_u32 s39, s34, {MIB}
        v_mov_b32 v9, s39
        s_add_u32 s39, s34, {OIB}
        v_mov_b32 v10, s39
        global_load_dword v26, v8, s[28:29] offset:-128
        global_load_dword v26, v9, s[28:29] offset:-128
        global_load_dword v26, v10, s[28:29] offset:-128
        L_tchd:
        s_mov_b64 exec, -1''')
    for i in range(8):
        a(f'''s_add_u32 s39, s3, {i}
        s_and_b32 s39, s39, 7
        s_lshl_b32 s39, s39, 12
        s_add_u32 s{KS+2*i}, s6, s39
        s_addc_u32 s{KS+2*i+1}, s7, 0''')
    a('s_barrier')
    if ELATE: a('s_mov_b64 exec, 1\nglobal_load_dword v23, v1, s[28:29] sc1\ns_mov_b64 exec, -1')
    D = []
    for i in range(8):
        pre = 's_add_u32 m0, m0, 1024\ns_nop 0\n' if i > 0 else ''
        D.append(pre + f'global_load_lds_dwordx4 v{T0+(i&3)}, s[{KS+2*i}:{KS+2*i+1}] nt')
    for e in range(8):
        r = VR + 4*e
        D.append(f'global_load_dwordx4 v[{r}:{r+3}], v{4 if e < 4 else 27}, s[8:9] offset:{256*(e&3)} nt')
    for i in range(4):
        D.append(f'global_load_dwordx4 v[{WOR+4*i}:{WOR+4*i+3}], v{9 if i < 2 else 14}, s[12:13] offset:{4096*(i&1)-4096} nt')
    pl = [f'global_load_dwordx4 v[{PR}:{PR+3}], v12, s[28:29] sc1', f'global_load_dwordx4 v[{PR+4}:{PR+7}], v12, s[28:29] offset:256 sc1']
    setup = f'''s_lshl_b32 s39, s47, 11
    s_add_u32 s38, s34, s39
    s_add_u32 s38, s38, {H1F if H1FAST else H1S}
    v_and_b32 v8, 1, v6
    v_lshlrev_b32 v12, 10, v8
    v_lshrrev_b32 v9, 5, v0
    v_lshl_add_u32 v12, v9, 9, v12
    v_lshl_add_u32 v12, v5, 4, v12
    v_add_u32 v12, s38, v12
    s_mul_i32 s38, s47, {QS}
    v_lshlrev_b32 v17, 7, v8
    v_lshl_add_u32 v17, v9, 2, v17
    v_and_b32 v7, 7, v0
    v_lshl_add_u32 v17, v7, 4, v17
    v_bfe_u32 v7, v0, 3, 1
    v_lshl_add_u32 v17, v7, 3, v17
    v_add_u32 v17, s38, v17
    s_mul_i32 s38, s47, {8*IS}
    s_lshl_b32 s39, s32, 6
    s_add_u32 s38, s38, s39
    s_add_u32 s38, s38, s34
    s_add_u32 s39, s38, {SIB}
    v_lshrrev_b32 v7, 2, v5
    v_lshl_add_u32 v11, v7, 1, v8
    v_mul_u32_u24 v11, {IS}, v11
    v_and_b32 v3, 3, v0
    v_lshl_add_u32 v11, v3, 4, v11
    v_add_u32 v11, s39, v11
    s_add_u32 s39, s38, {OIB}
    v_bfe_u32 v10, v0, 2, 3
    v_mul_u32_u24 v10, {IS}, v10
    v_lshl_add_u32 v10, v3, 4, v10
    v_add_u32 v10, s39, v10
    v_mul_u32_u24 v18, {QS}, v7
    v_lshl_add_u32 v18, v6, 4, v18
    s_lshl_b32 s38, s47, 3
    v_lshl_add_u32 v19, v7, 5, s38
    s_mul_i32 s38, s47, {OW}
    s_add_u32 s38, s38, {OL}
    v_add_u32 v21, s38, v2
    s_lshl_b32 s38, s47, 8
    s_add_u32 s38, s38, {OL}
    v_and_b32 v7, 1, v0
    v_mul_u32_u24 v22, {OH}, v7
    v_bfe_u32 v20, v0, 1, 4
    v_lshl_add_u32 v22, v20, 4, v22
    v_add_u32 v22, s38, v22
    s_lshl_b32 s38, s31, 5
    s_add_u32 s38, s38, s32
    s_lshl_b32 s38, s38, 14
    s_lshl_b32 s39, s47, 8
    s_add_u32 s38, s38, s39
    s_add_u32 s38, s38, 4096
    v_lshlrev_b32 v14, 10, v6
    v_lshl_add_u32 v14, v5, 4, v14
    v_add_u32 v9, s38, v14
    v_add_u32 v14, 0x2000, v9
    s_lshl_b32 s39, s47, 9
    s_lshl_b32 s38, s32, 4
    s_add_u32 s39, s39, s38
    s_add_u32 s39, s39, s34
    s_add_u32 s39, s39, {MLB}
    v_mov_b32 v13, s39
    s_lshl_b32 s38, s47, 2
    v_mov_b32 v16, s38
    s_lshl_b32 s38, s47, 5
    v_mov_b32 v24, s38
    v_mov_b32 v25, 1
    {consts}
    v_cmp_eq_u32 vcc, 1, v7
    v_mov_b32 v{DS}, 0x0000ffff
    v_mov_b32 v{DS+1}, 0xffff0000
    v_cndmask_b32 v{DS}, v{DS}, v{DS+1}, vcc
    v_bfe_u32 v{DS+2}, v0, 1, 3'''.split('\n')
    for r in range(4):
        setup += [f'v_cmp_eq_u32 vcc, {r}, v{DS+2}', f'v_cndmask_b32 v{28+r}, 0, v{DS}, vcc']
    for j in range(4):
        setup += [f's_mov_b32 s{66+2*j}, {hex(0x11111111 << j)}', f's_mov_b32 s{67+2*j}, {hex(0x11111111 << j)}']
    setup += [f'v_xor_b32 v{T0+5}, 64, v{T0+4}', f'v_xor_b32 v{T0+6}, 0x80, v{T0+4}', f'v_xor_b32 v{T0+7}, 0xc0, v{T0+4}']
    issued = []
    def issue(tag, ins): a(ins); issued.append(tag)
    def waitfor(tag): a(f's_waitcnt vmcnt({len(issued) - 1 - issued.index(tag)})')
    chunk = (len(setup) + WIN - 1) // WIN if SPREAD else 0
    for n in range(WIN):
        issue(('D', n), D[n])
        if SPREAD: a('\n'.join(setup[n*chunk:(n+1)*chunk]))
    if not SPREAD: a('\n'.join(setup))
    nstop = NST if BURST else 19
    a(f'v_mov_b32 v{PB+3}, 0\nv_mov_b32 v{PB+7}, 0')
    pl = [x.replace(f'v[{PR}:{PR+3}]', f'v[{PB}:{PB+3}]').replace(f'v[{PR+4}:{PR+7}]', f'v[{PB+4}:{PB+7}]') for x in pl]
    for n in range(WIN, len(D) if WOPOS == 0 else 16):
        if n <= nstop:
            waitfor(('D', n - WIN))
            if not STREAM: ts2(n - WIN)
            elif n - WIN >= 7: ts2(n - WIN - 7)
        if n == WIN: mktag(23)
        issue(('D', n), D[n])
        if n - 8 in PPOS and not NOP:
            issue(('P0', n - 8), pl[0]); issue(('P1', n - 8), pl[1])
        if n == 15: a(f'ds_write_b32 v16, v25 offset:{FV}')
        if n == 8 + MTRIG and MTRIG != 7: a(f'ds_write_b32 v16, v25 offset:{FW}')
        if n - WIN == 7:
            for b in range(2):
                for t in range(4):
                    r = KR + 16*b + 4*t
                    a(f'ds_read_b128 v[{r}:{r+3}], v{T0+4+t} offset:{4096*b}')
    if STREAM:
        for n in range(min(nstop, 19) - WIN + 1, 20):
            waitfor(('D', n))
            ts2(n - 7)
        a('s_branch L_fin')
        issued += [('P1', e) for e in PPOS]
    a('s_branch L_A2')

    a('L_Q2:')
    a(consts)
    a(f'''s_lshl_b32 s3, s33, 8
    v_mov_b32 v17, s3
    s_movk_i32 s62, 0x700
    s_lshl_b32 s39, s74, 8
    s_add_u32 s39, s39, s34
    v_add_u32 v18, s39, v2
    v_add_u32 v3, {H1S-H1F}, v18
    v_mov_b32 v19, 0''')
    def qmean():
        ts(1)
        for r in range(148, 152): a(f'v_dot2c_f32_bf16 v19, s38, v{r}')
        mktag(16)
        wave_sum([19])
        a(f'''v_readlane_b32 s63, v19, 63
        v_mov_b32 v19, {hex(f2u(1.0/512))}
        v_mul_f32 v19, s63, v19''')
        rnd(19, 19)
    T = 84; DQ = 116
    def qperm(h, TT):
        for pr in range(4):
            ia = 8*h + 2*pr; ib = ia + 1
            a(f's_waitcnt vmcnt({15 - ib + (4 if ib <= XPOS else 0)})')
            for d in range(4):
                a(f'v_perm_b32 v{TT + 4*(2*d) + pr}, v{20+4*ib+d}, v{20+4*ia+d}, s40')
                a(f'v_perm_b32 v{TT + 4*(2*d+1) + pr}, v{20+4*ib+d}, v{20+4*ia+d}, s41')
    def qmfma(h, TT):
        for j in range(8):
            c = '0' if h == 0 else f'v[{DQ+4*j}:{DQ+4*j+3}]'
            a(f'v_mfma_f32_16x16x32_bf16 v[{DQ+4*j}:{DQ+4*j+3}], v[{8+4*h}:{11+4*h}], v[{TT+4*j}:{TT+4*j+3}], {c}')
    if XPOS == 3:
        a('s_waitcnt vmcnt(12)')
        qmean()
        qperm(0, T); qmfma(0, T); qperm(1, T); ts(2); qmfma(1, T)
    else:
        qperm(0, T); qperm(1, 20); ts(2)
        a('s_waitcnt vmcnt(2)')
        qmfma(0, T); qmfma(1, 20)
        a('s_waitcnt vmcnt(0)')
        qmean()
    a('v_mov_b32 v23, s35\nv_mov_b32 v27, s35')
    for j in range(8):
        d = DQ + 4*j
        a(f'v_add_f32_dpp v{d}, v{d+1}, v{d} row_ror:8 row_mask:0xf bank_mask:0xf')
        a(f'v_add_f32_dpp v{d+2}, v{d+2}, v{d+2} row_ror:8 row_mask:0xf bank_mask:0xf')
        a(f'v_fma_f32 v{d}, -v19, v{d+2}, v{d}')
    for hq in range(2):
        o = 20 + 4*hq
        pack(o, DQ + 16*hq, DQ + 16*hq + 4, DQ + 16*hq + 8, DQ + 16*hq + 12)
        a(f'v_bfi_b32 v{o}, s62, v17, v{o}')
    a('s_mov_b64 exec, 0xff')
    if H1FAST:
        a(f'''global_store_dwordx4 v18, v[20:23], s[28:29]
        global_store_dwordx4 v18, v[24:27], s[28:29] offset:128''')
    a(f'''global_store_dwordx4 v3, v[20:23], s[28:29] sc1
    global_store_dwordx4 v3, v[24:27], s[28:29] offset:128 sc1
    s_mov_b64 exec, -1''')
    ts(3)
    def lds_wait1(name, off):
        a(f'''L_{name}:
        ds_read_b32 v28, v1 offset:{off}''')
        spin_guard()
        a(f'''s_waitcnt lgkmcnt(0)
        v_cmp_eq_u32 vcc, 0, v28
        s_cbranch_vccnz L_{name}''')
    def lds_wait4(name, off):
        a(f'''L_{name}:
        s_sleep 1
        ds_read_b128 v[28:31], v1 offset:{off}''')
        spin_guard()
        a(f'''s_waitcnt lgkmcnt(0)
        v_and_b32 v28, v28, v29
        v_and_b32 v30, v30, v31
        v_and_b32 v28, v28, v30
        v_cmp_eq_u32 vcc, 0, v28
        s_cbranch_vccnz L_{name}''')
    a(f'''s_mul_i32 s38, s32, {IS}
    s_add_u32 s38, s38, s34
    s_add_u32 s39, s38, {OIB}
    v_add_u32 v8, s39, v2
    s_add_u32 s39, s38, {SIB}
    v_add_u32 v9, s39, v2
    s_lshr_b32 s39, s32, 3
    s_lshl_b32 s39, s39, 9
    s_add_u32 s39, s39, s34
    s_add_u32 s39, s39, {MLB}
    v_lshrrev_b32 v10, 2, v0
    v_lshl_add_u32 v10, v10, 4, s39
    s_lshl_b32 s38, s32, 10
    s_lshl_b32 s39, s31, 7
    s_add_u32 s38, s38, s39
    s_add_u32 s38, s38, {H3S_}
    v_and_b32 v11, 3, v0
    v_lshl_add_u32 v11, v6, 2, v11
    v_lshlrev_b32 v14, 2, v11
    v_lshl_add_u32 v11, v11, 3, s38
    v_mov_b32 v13, s35
    v_mov_b32 v15, 1
    v_mov_b32 v35, 0
    v_mov_b32 v39, 0
    v_mov_b32 v43, 0
    v_mov_b32 v47, 0
    v_mov_b32 v51, 0
    v_mov_b32 v55, 0
    s_mov_b32 s60, 0x000f000f
    s_mov_b32 s61, 0x000f000f''')
    if STREAM and not STREAM & 8: a('s_branch L_fin')
    lds_wait4('Q_vi', FV)
    ts(4)
    wp = 'sc1 nt' if WNT else 'sc1'
    LR = 48; HR = 32
    sl = [f'global_load_dwordx4 v[{40+4*i}:{43+4*i}], v9, s[28:29] offset:{1024*i} sc1' for i in range(2)]
    mll = [f'global_load_dwordx4 v[{LR+4*i}:{LR+4*i+3}], v10, s[28:29] offset:{256*i} sc1' for i in range(2)]
    ol = [f'global_load_dwordx4 v[{HR+4*i}:{HR+4*i+3}], v8, s[28:29] offset:{1024*i} sc1' for i in range(2)]
    for x in mll + ol + sl: a(x.replace('sc1', wp))
    if STREAM: a('s_waitcnt vmcnt(0)\ns_branch L_fin')
    if ZW >= 0: lds_wait1('Q_fz', FZ)
    else: lds_wait4('Q_fm', FM)
    npoll('ML', mll + ol, [LR+3, LR+7], 1, reps=QREP, masktags=(HR+3, HR+7))
    ts(7)
    for x in ol: a(x)
    a(f'v_max_f32 v56, v{LR}, v{LR+4}')
    ror('v_max_f32', 56, (8, 4))
    allrows('v_max_f32', 56, 57)
    a(f'''v_sub_f32 v58, v{LR}, v56
    v_sub_f32 v59, v{LR+4}, v56
    v_cmp_ne_u32 s[50:51], s35, v{HR+3}
    v_exp_f32 v58, v58
    v_cmp_ne_u32 s[52:53], s35, v{HR+7}
    v_exp_f32 v59, v59
    s_or_b64 s[50:51], s[50:51], s[52:53]
    s_cbranch_scc0 L_O_ok''')
    npoll('O', ol, [HR+3, HR+7], PSL, init=False)
    a('L_O_ok:')
    ts(8)
    R = 'row_mask:0xf bank_mask:0xf'
    a(f'''v_mul_f32 v56, v58, v{LR+1}
    v_perm_b32 v63, v{HR+1}, v{HR}, s45
    v_fmac_f32 v56, v59, v{LR+5}
    v_perm_b32 v64, v{HR+5}, v{HR+4}, s45
    v_perm_b32 v63, v{HR+2}, v63, s46
    v_add_f32_dpp v56, v56, v56 row_ror:8 {R}
    v_perm_b32 v64, v{HR+6}, v64, s46
    v_mul_f32 v60, v{HR}, v58
    v_add_f32_dpp v56, v56, v56 row_ror:4 {R}
    v_mul_f32 v62, v{HR+2}, v58
    v_mov_b32 v57, v56
    v_mul_f32 v61, v{HR+1}, v58
    v_mul_f32 v63, v63, v58
    v_permlane32_swap_b32 v56, v57
    v_fmac_f32 v60, v{HR+4}, v59
    v_fmac_f32 v62, v{HR+6}, v59
    v_add_f32 v56, v56, v57
    v_fmac_f32 v61, v{HR+5}, v59
    v_fmac_f32 v63, v64, v59
    v_mov_b32 v57, v56
    v_permlane32_swap_b32 v60, v62
    v_permlane32_swap_b32 v61, v63
    v_permlane16_swap_b32 v56, v57
    v_add_f32 v60, v60, v62
    v_add_f32 v61, v61, v63
    v_add_f32 v56, v56, v57
    v_rcp_f32 v56, v56
    v_permlane16_swap_b32 v60, v61
    v_add_f32 v60, v60, v61''')
    ror('v_add_f32', 60, (8, 4))
    a(f'''v_mul_f32 v60, v60, v56
    v_cvt_pk_bf16_f32 v60, v60, v60
    ds_write_b32 v14, v60 offset:{O16}
    ds_write_b32 v1, v15 offset:{FT}''')
    ts(9)
    npoll('S', sl, [43, 47], PSL)
    ts(5)
    sum2(60, 40, 44, 64)
    scatter4(60)
    ror('v_add_f32', 60, (8, 4), dst=12)
    a(f'''s_mov_b64 exec, s[60:61]
    global_store_dwordx2 v11, v[12:13], s[28:29] sc1
    ds_write_b32 v1, v15 offset:{FE}
    s_waitcnt lgkmcnt(0)''')
    ts(6)
    a('s_branch L_fin')

    a('L_M2:')
    a(consts)
    a(f'''s_mul_i32 s39, s32, {MHS}
    s_add_u32 s39, s39, s34
    s_add_u32 s39, s39, {MHB}
    v_add_u32 v18, s39, v2
    s_lshl_b32 s62, s32, 1
    s_add_u32 s63, s62, 1
    s_lshl_b32 s3, s33, 8
    v_mov_b32 v17, s3
    s_waitcnt vmcnt(0)''')
    ts(1)
    mktag(16)
    def layernorm(first):
        for d in range(4):
            a(f'v_lshlrev_b32 v{60+2*d}, 16, v{8+d}')
            a(f'v_and_b32 v{61+2*d}, 0xffff0000, v{8+d}')
        a('v_readfirstlane_b32 s38, v60')
        for k in range(8): a(f'v_subrev_f32 v{70+k}, s38, v{60+k}')
        a('v_add_f32 v68, v70, v71')
        a('v_mul_f32 v69, v70, v70')
        for k in range(1, 8):
            if k >= 2: a(f'v_add_f32 v68, v68, v{70+k}')
            a(f'v_fmac_f32 v69, v{70+k}, v{70+k}')
        wave_sum([68, 69])
        a(f'''v_readlane_b32 s39, v68, 63
        v_readlane_b32 s64, v69, 63
        v_mov_b32 v70, {hex(f2u(1.0/512))}
        v_mul_f32 v68, s39, v70
        v_mul_f32 v69, s64, v70
        v_fma_f32 v69, -v68, v68, v69
        v_max_f32 v69, 0, v69
        v_add_f32 v68, s38, v68''')
        rnd(68, 68); rnd(69, 69)
        a(f'v_add_f32 v69, {hex(f2u(1e-5))}, v69')
        rnd(69, 69)
        a('v_sqrt_f32 v69, v69')
        rnd(69, 69)
        a('v_rcp_f32 v69, v69')
        if first:
            a(f'v_mul_f32 v70, {hex(f2u(LOG2E / math.sqrt(128.0)))}, v69')
            a(f'v_or_b32 v70, 1, v70')
            a(f'ds_write_b32 v1, v70 offset:{RS}')
        for k in range(8): a(f'v_sub_f32 v{60+k}, v{60+k}, v68')
        for d in range(4): a(f'v_cvt_pk_bf16_f32 v{8+d}, v{60+2*d}, v{61+2*d}')
        for d in range(4):
            a(f'v_lshlrev_b32 v{60+2*d}, 16, v{8+d}')
            a(f'v_and_b32 v{61+2*d}, 0xffff0000, v{8+d}')
        for k in range(8): a(f'v_mul_f32 v{60+k}, v{60+k}, v69')
        for d in range(4): a(f'v_cvt_pk_bf16_f32 v{8+d}, v{60+2*d}, v{61+2*d}')
    layernorm(True)
    layernorm(False)
    for d in range(4):
        a(f'v_readlane_b32 s{66+d}, v{8+d}, s62')
        a(f'v_readlane_b32 s{70+d}, v{8+d}, s63')
    for c in range(4): a(f'v_mov_b32 v{80+c}, 0')
    a('v_mov_b32 v87, s35')
    a(f'''s_movk_i32 s62, 0x700
    s_min_u32 s3, s32, 27
    s_lshl_b32 s39, s3, 5
    s_add_u32 s38, s34, s39
    s_add_u32 s38, s38, {MHB}
    v_and_b32 v7, 1, v0
    v_lshrrev_b32 v13, 1, v0
    v_mul_u32_u24 v13, {MHS}, v13
    v_lshl_add_u32 v13, v7, 4, v13
    v_add_u32 v13, s38, v13
    s_mul_i32 s38, s31, 224
    s_lshl_b32 s39, s3, 3
    s_add_u32 s38, s38, s39
    v_lshl_add_u32 v12, v7, 2, v6
    v_add_lshl_u32 v12, v12, s38, 1
    s_lshl_b32 s38, s38, 10
    s_add_u32 s38, s38, 4096
    v_lshlrev_b32 v14, 10, v6
    v_lshl_add_u32 v14, v5, 4, v14
    v_add_u32 v14, s38, v14
    s_lshr_b32 s38, s32, 1
    s_lshl_b32 s38, s38, 5
    s_and_b32 s39, s32, 1
    s_lshl_b32 s39, s39, 2
    s_add_u32 s38, s38, s39
    v_and_b32 v3, 3, v0
    v_lshl_add_u32 v15, v3, 3, v6
    v_add_lshl_u32 v15, v15, s38, 1''')
    W2 = 88
    a('v_mov_b32 v59, v12')
    a(f'''v_cmp_eq_u32 vcc, 1, v7
    v_mov_b32 v60, 0x0000ffff
    v_mov_b32 v61, 0xffff0000
    v_cndmask_b32 v60, v60, v61, vcc
    s_cmp_lt_u32 s32, 28
    s_cselect_b32 s38, -1, 0
    v_and_b32 v60, s38, v60
    v_bfe_u32 v61, v0, 1, 3''')
    for r in range(8):
        a(f'v_cmp_eq_u32 vcc, {r}, v61')
        a(f'v_cndmask_b32 v{120+r}, 0, v60, vcc')
    a(f'''s_lshl_b32 s39, s32, 6
    s_add_u32 s39, s39, s34
    s_add_u32 s39, s39, {MIB}
    v_lshrrev_b32 v8, 2, v5
    v_lshlrev_b32 v8, 1, v8
    v_and_b32 v9, 1, v6
    v_add_u32 v8, v8, v9
    v_lshrrev_b32 v9, 5, v0
    v_lshl_add_u32 v8, v9, 3, v8
    v_mul_u32_u24 v8, {IS}, v8
    v_lshl_add_u32 v8, v3, 4, v8
    v_add_u32 v8, s39, v8
    v_add_u32 v9, {16*IS}, v8
    s_mul_i32 s38, s32, {IS}
    s_add_u32 s38, s38, s34
    s_add_u32 s38, s38, {MIB}
    v_add_u32 v10, s38, v2
    s_lshl_b32 s38, s32, 10
    s_add_u32 s38, s38, {H3M_}
    s_lshl_b32 s39, s31, 7
    s_add_u32 s39, s39, s38
    v_lshl_add_u32 v11, v6, 2, v3
    v_lshlrev_b32 v11, 3, v11
    v_bfe_u32 v12, v0, 2, 2
    v_lshl_add_u32 v12, v12, 7, v11
    v_add_u32 v12, s38, v12
    v_add_u32 v11, s39, v11
    v_mov_b32 v65, s35
    v_mov_b32 v55, 0
    v_add_u32 v19, {MH2}, v18
    s_movk_i32 s39, 7168
    v_mov_b32 v71, 0
    v_mov_b32 v75, 0''')
    if BAL:
        for r in range(88, 120): a(f'v_mov_b32 v{r}, 0')
    ts(2)
    lds_wait4('M_vi', FW if MTRIG != 7 else FV)
    a('s_mov_b32 s48, 0')
    a('s_setprio 2')
    ml = ['global_load_dwordx4 v[52:55], v13, s[28:29] sc1']
    mil = [f'global_load_dwordx4 v[{68+4*i}:{71+4*i}], v10, s[28:29] offset:{1024*i} sc1' for i in range(2)]
    if HWARM:
        a(f'''s_and_b32 s38, s32, 7
        s_cmp_lg_u32 s38, s31
        s_cbranch_scc1 L_nohw
        s_lshl_b32 s38, s32, 10
        s_add_u32 s38, s38, {H3S_}
        v_add_u32 v128, s38, v2
        v_add_u32 v129, {H3M_-H3S_}, v128
        global_load_dwordx4 v[136:139], v128, s[28:29] sc1
        global_load_dwordx4 v[140:143], v129, s[28:29] sc1
        L_nohw:''')
    a('s_mov_b64 exec, s[60:61]')
    for p in range(8):
        a(f'global_load_dwordx2 v[{20+4*p}:{21+4*p}], v4, s[16:17] nt')
        a(f'global_load_dwordx2 v[{22+4*p}:{23+4*p}], v4, s[16:17] offset:3584 nt')
        if p < 7: a('v_add_u32 v4, s39, v4')
    a('global_load_dwordx4 v[128:131], v18, s[28:29] sc1')
    a('s_mov_b64 exec, -1')
    a(f'''global_load_ushort v56, v59, s[18:19]
    global_load_ushort v57, v15, s[4:5]
    global_load_ushort v58, v15, s[22:23]''')
    def w2loads():
        for cb in range(4):
            for i in range(2):
                r = W2 + 8*cb + 4*i
                a(f'global_load_dwordx4 v[{r}:{r+3}], v14, s[20:21] offset:{256*cb + 4096*i - 4096} nt')
        for x in mil: a(x)
    if BAL:
        a('s_cmp_lt_u32 s32, 28\ns_cselect_b64 exec, -1, 1')
        for cb in range(4):
            for i in range(2):
                r = W2 + 8*cb + 4*i
                a(f'global_load_dwordx4 v[{r}:{r+3}], v14, s[20:21] offset:{256*cb + 4096*i - 4096} nt')
        a('s_mov_b64 exec, -1')
        for x in mil: a(x)
    elif not W2LATE: w2loads()
    for p in range(8):
        a(f's_waitcnt vmcnt({14 - 2*p + 4 + (0 if W2LATE else 10)})')
        ra = 20 + 4*p; rb = ra + 2
        for d in range(2):
            a(f'v_perm_b32 v{60+2*d}, v{rb+d}, v{ra+d}, s40')
            a(f'v_perm_b32 v{61+2*d}, v{rb+d}, v{ra+d}, s41')
        for c in range(4): a(f'v_dot2c_f32_bf16 v{80+c}, s{66+p}, v{60+c}')
    pack(84, 80, 81, 82, 83)
    a(f'''v_bfi_b32 v84, s62, v17, v84
    s_mov_b64 exec, s[60:61]
    global_store_dwordx4 v18, v[84:87], s[28:29]
    global_store_dwordx4 v19, v[84:87], s[28:29] sc1
    s_mov_b64 exec, -1
    s_mov_b32 s60, 0x000f000f
    s_mov_b32 s61, 0x000f000f
    v_mov_b32 v39, s35
    v_mov_b32 v43, s35''')
    ts(3)
    if W2LATE: w2loads()
    if ZW >= 0 and MZ:
        lds_wait1('M_fz', FZ)
        a('s_mov_b32 s48, 0')
    swm = 's_cmp_eq_u32 s48, 64\ns_cbranch_scc1 L_MH_sw'
    tail.append(f'L_MH_sw:\ns_waitcnt vmcnt(0)\nv_add_u32 v13, {MH2}, v13\ns_add_u32 s48, s48, 1\ns_branch L_MH_c')
    npoll('MH', ml, [55], 1, pre=swm, reps=2)
    ts(4)
    a(f'''v_bfe_u32 v60, v52, 8, 3
    v_cmp_ne_u32 s[52:53], s33, v60
    v_mov_b32 v132, v52
    v_mov_b32 v133, v53
    v_mov_b32 v134, v54''')
    unpack_to(135, 52)
    a('v_lshlrev_b32 v56, 16, v56')
    scatter4(132)
    ror('v_add_f32', 132, (8, 4, 2))
    rnd(132, 132)
    a('v_add_f32 v132, v132, v56')
    rnd(132, 132)
    a(f'''s_mov_b32 s38, {hex(f2u(0.044715))}
    s_mov_b32 s39, {hex(f2u(-2.0 * math.sqrt(2.0 / math.pi) * LOG2E))}
    v_mul_f32 v133, v132, v132
    v_fma_f32 v133, v133, s38, 1.0
    v_mul_f32 v133, v133, v132
    v_mul_f32 v133, s39, v133
    v_exp_f32 v133, v133
    v_add_f32 v133, 1.0, v133
    v_rcp_f32 v133, v133
    v_mul_f32 v132, v132, v133
    v_cvt_pk_bf16_f32 v132, v132, v132''')
    for hi in range(2):
        for i in range(2):
            for r in range(4): a(f'v_and_b32_dpp v{20+8*hi+4*i+r}, v132, v{120+4*hi+r} quad_perm:[{i},{i},{i},{i}] row_mask:0xf bank_mask:0xf')
    for hi in range(2):
        for i in range(2):
            for pp in range(2):
                d = 76 + 4*pp; r = W2 + 8*(2*pp+hi) + 4*i; A = 20 + 8*hi + 4*i
                c = '0' if (hi == 0 and i == 0) else f'v[{d}:{d+3}]'
                a(f'v_mfma_f32_16x16x32_bf16 v[{d}:{d+3}], v[{A}:{A+3}], v[{r}:{r+3}], {c}')
    pack(36, 76, 77, 78, 79); pack(40, 80, 81, 82, 83)
    a('s_cmp_lg_u64 s[52:53], 0')
    store_mode('stm', ['global_store_dwordx4 v8, v[36:39], s[28:29]', 'global_store_dwordx4 v9, v[40:43], s[28:29]'])
    ts(5)
    npoll('MI', mil, [71, 75], PSL)
    ts(6)
    sum2(60, 68, 72, 66)
    scatter4(60)
    ror('v_add_f32', 60, (8, 4), dst=64)
    a(f'''s_mov_b64 exec, s[60:61]
    global_store_dwordx2 v11, v[64:65], s[28:29] sc1
    s_mov_b64 exec, -1
    s_and_b32 s38, s32, 7
    s_cmp_lg_u32 s38, s31
    s_cbranch_scc1 {'L_wb' if WB else 'L_fin'}
    v_add_u32 v13, {(H3S_-H3M_) & 0xffffffff}, v12''')
    if WB:
        sel = 's_add_u32 s38, s31, 1\ns_and_b32 s38, s38, 7\ns_cmp_lg_u32 s38, s32\ns_cbranch_scc1 L_fin\n' if WB == 1 else ''
        tail.append(f'''L_wb:
        {sel}
        L_wb2:
        s_sleep 1
        ds_read_b32 v28, v1 offset:{FE}
        s_add_u32 s48, s48, 1
        s_cmp_gt_u32 s48, {MAXPOLL}
        s_cbranch_scc1 L_end
        s_waitcnt lgkmcnt(0)
        v_cmp_eq_u32 vcc, 0, v28
        s_cbranch_vccnz L_wb2
        buffer_wbl2 sc1
        s_waitcnt vmcnt(0)
        s_branch L_fin''')
    hm = [f'global_load_dwordx2 v[{20+2*i}:{21+2*i}], v12, s[28:29] offset:{512*i} sc1' for i in range(2)]
    hs = [f'global_load_dwordx2 v[{24+2*i}:{25+2*i}], v13, s[28:29] offset:{512*i} sc1' for i in range(2)]
    a(f'''v_lshlrev_b32 v57, 16, v57
    v_lshlrev_b32 v58, 16, v58
    v_mov_b32 v21, 0
    v_mov_b32 v23, 0
    v_mov_b32 v25, 0
    v_mov_b32 v27, 0
    s_mov_b32 s39, {hex(f2u(-LOG2E))}''')
    if FEARLY:
        for x in hs: a(x)
    a(f'''L_M_fe:
    s_sleep 1
    ds_read_b32 v28, v1 offset:{FE}''')
    spin_guard()
    a(f'''s_waitcnt lgkmcnt(0)
    v_cmp_eq_u32 vcc, 0, v28
    s_cbranch_vccnz L_M_fe
    s_setprio 3''')
    if FDLY: a(f's_sleep {FDLY}')
    a('s_mov_b64 s[50:51], -1')
    a('L_HM_l:')
    a('s_wqm_b64 exec, s[50:51]')
    for x in hm + hs: a(x)
    a(f'''s_mov_b64 exec, -1
    s_add_u32 s48, s48, 1
    s_cmp_gt_u32 s48, {MAXPOLL}
    s_cbranch_scc1 L_end
    s_sleep 1
    s_waitcnt vmcnt(32)
    v_cmp_ne_u32 s[50:51], s35, v25
    v_cmp_ne_u32 s[52:53], s35, v27
    v_cmp_ne_u32 s[54:55], s35, v21
    v_cmp_ne_u32 s[56:57], s35, v23
    s_or_b64 s[50:51], s[50:51], s[52:53]
    s_or_b64 s[50:51], s[50:51], s[54:55]
    s_or_b64 s[50:51], s[50:51], s[56:57]
    s_or_b64 s[54:55], s[54:55], s[56:57]
    s_cbranch_scc1 L_HM_l''')
    ts(7)
    for x in hs: a(x)
    a('v_add_f32 v30, v20, v22')
    ror('v_add_f32', 30, (8, 4))
    rnd(30, 30)
    a('v_add_f32 v30, v30, v58')
    rnd(30, 30)
    a(f'''v_mul_f32 v31, s39, v30
    v_exp_f32 v31, v31
    v_add_f32 v31, 1.0, v31
    v_rcp_f32 v31, v31
    v_mul_f32 v30, v30, v31''')
    rnd(30, 30)
    a('s_branch L_HS_c')
    npoll('HS', hs, [25, 27], 1, init=False)
    ts(8)
    a('v_add_f32 v32, v24, v26')
    ror('v_add_f32', 32, (8, 4))
    rnd(32, 32)
    a('v_mul_f32 v32, v32, v30')
    rnd(32, 32)
    a(f'''v_add_f32 v32, v32, v57
    v_cvt_pk_bf16_f32 v32, v32, v32
    s_mov_b64 exec, s[60:61]
    global_store_short v15, v32, s[24:25]{' sc1' if OSC else ''}
    s_cmp_lg_u32 s2, 0
    s_cbranch_scc1 L_fin
    s_mov_b64 exec, 1
    v_mov_b32 v4, s35
    global_store_dword v1, v4, s[28:29] sc1
    s_branch L_fin''')

    att[0] = True
    a('L_A2:')
    for i, e in enumerate(PPOS[:-1]):
        waitfor(('P1', e))
        if i == 0: ts(1)
        a(f'''v_cmp_ne_u32 s[50:51], s35, v{PB+3}
        v_cmp_ne_u32 s[52:53], s35, v{PB+7}
        s_or_b64 s[50:51], s[50:51], s[52:53]
        s_cbranch_scc0 L_P_ok''')
    sw = f'''s_cmp_eq_u32 s48, 16
    s_cselect_b32 s38, {H1S-H1F}, 0
    v_add_u32 v12, s38, v12''' if H1FAST else ''
    poll('P', pl, [PB+3, PB+7], len(issued) - 1 - issued.index(('P1', PPOS[-1])), sw)
    a('L_P_ok:')
    ts(2)
    a(f'''v_bfe_u32 v{T0}, v{PB}, 8, 3
    v_bfe_u32 v{T0+1}, v{PB+4}, 8, 3
    v_cmp_ne_u32 s[50:51], s33, v{T0}
    v_cmp_ne_u32 s[52:53], s33, v{T0+1}''')
    sum2(PR, PB, PB+4, PR+4)
    a('s_or_b64 s[50:51], s[50:51], s[52:53]')
    a('s_cselect_b32 s49, 3, 1')
    a(f'''v_mov_b32 v{T0}, s49
    v_permlane32_swap_b32 v{PR}, v{PR+2}
    v_permlane32_swap_b32 v{PR+1}, v{PR+3}
    v_add_f32 v{PR}, v{PR}, v{PR+2}
    v_add_f32 v{PR+1}, v{PR+1}, v{PR+3}
    v_cvt_pk_bf16_f32 v{PR}, v{PR}, v{PR+1}
    ds_write_b32 v17, v{PR}
    ds_write_b32 v16, v{T0} offset:{FQ}
    L_q_spin:
    ds_read_b128 v[{PR}:{PR+3}], v1 offset:{FQ}
    ds_read_b32 v{PR+4}, v1 offset:{RS}''')
    for t in range(4): a(f'ds_read_b128 v[{QF+4*t}:{QF+4*t+3}], v18 offset:{64*t}')
    spin_guard()
    lgkm(4)
    a(f'''v_and_b32 v{T0}, v{PR}, v{PR+1}
    v_and_b32 v{T0+1}, v{PR+2}, v{PR+3}
    v_and_b32 v{T0}, v{T0}, v{PR+4}
    v_and_b32 v{T0}, v{T0}, v{T0+1}
    v_and_b32 v{T0}, 1, v{T0}
    v_cmp_eq_u32 vcc, 0, v{T0}
    s_cbranch_vccnz L_q_spin''')
    for t in range(4):
        lgkm(3 - t)
        for b in range(2):
            c = '0' if t == 0 else f'v[{DS+4*b}:{DS+4*b+3}]'
            k = KR + 16*b + 4*t
            a(f'v_mfma_f32_16x16x32_bf16 v[{DS+4*b}:{DS+4*b+3}], v[{k}:{k+3}], v[{QF+4*t}:{QF+4*t+3}], {c}')
        if t == 0:
            a(f'''v_or3_b32 v{T0+2}, v{PR}, v{PR+1}, v{PR+2}
            v_or_b32 v{T0+2}, v{T0+2}, v{PR+3}''')
        if t == 1:
            a(f'v_readfirstlane_b32 s49, v{T0+2}')
    a('s_and_b32 s49, s49, 2')
    if WOPOS == 1:
        for n in range(16, 20): issue(('D', n), D[n])
    a(f'''v_max3_f32 v{T0}, v{DS}, v{DS+1}, v{DS+2}
    v_max3_f32 v{T0+1}, v{DS+3}, v{DS+4}, v{DS+5}
    v_max3_f32 v{T0}, v{T0}, v{DS+6}, v{DS+7}
    v_max_f32 v{T0}, v{T0}, v{T0+1}''')
    allrows('v_max_f32', T0, T0+1)
    a(f'v_mul_f32 v{T0}, v{T0}, v{PR+4}')
    for k in range(8): a(f'v_fma_f32 v{DS+k}, v{DS+k}, v{PR+4}, -v{T0}')
    for k in range(8): a(f'v_exp_f32 v{DS+k}, v{DS+k}')
    a(f'''v_add_f32 v{T0+1}, v{DS}, v{DS+1}
    v_add_f32 v{T0+2}, v{DS+2}, v{DS+3}
    v_add_f32 v{T0+3}, v{DS+4}, v{DS+5}
    v_add_f32 v{T0+1}, v{T0+1}, v{T0+2}
    v_add_f32 v{T0+2}, v{DS+6}, v{DS+7}
    v_add_f32 v{T0+1}, v{T0+1}, v{T0+3}
    v_add_f32 v{T0+1}, v{T0+1}, v{T0+2}''')
    allrows('v_add_f32', T0+1, T0+2)
    a(f'ds_write_b64 v19, v[{T0}:{T0+1}] offset:{MLX}')
    for k in range(4): a(f'v_cvt_pk_bf16_f32 v{PR+k}, v{DS+2*k}, v{DS+2*k+1}')
    for j in range(4):
        for k in range(4): a(f'v_cndmask_b32 v{QF+4*j+k}, 0, v{PR+k}, s[{66+2*j}:{67+2*j}]')
    ts(3)
    VT = KR
    def vperm(pr):
        ia = 2*pr; ib = ia + 1
        for d in range(4):
            a(f'v_perm_b32 v{VT + 4*(2*d) + pr}, v{VR+4*ib+d}, v{VR+4*ia+d}, s40')
            a(f'v_perm_b32 v{VT + 4*(2*d+1) + pr}, v{VR+4*ib+d}, v{VR+4*ia+d}, s41')
    FR = T0 + 12
    def mlx_read():
        a(f'''ds_read_b128 v[{T0}:{T0+3}], v24 offset:{MLX}
        ds_read_b128 v[{T0+4}:{T0+7}], v24 offset:{MLX+16}''')
    def mlx_check(nyoung):
        a('s_branch L_ml_chk')
        a('L_ml_spin:')
        mlx_read()
        spin_guard()
        a('s_waitcnt lgkmcnt(0)')
        a('L_ml_chk:')
        lgkm(nyoung)
        a(f'''v_min_u32 v{T0+8}, v{T0+1}, v{T0+3}
        v_min3_u32 v{T0+8}, v{T0+8}, v{T0+5}, v{T0+7}
        v_max3_f32 v{PR+4}, v{T0}, v{T0+2}, v{T0+4}
        v_cmp_eq_u32 vcc, 0, v{T0+8}
        v_max_f32 v{PR+4}, v{PR+4}, v{T0+6}
        s_cbranch_vccnz L_ml_spin''')
    def factors():
        for k in range(4): a(f'v_sub_f32 v{FR+k}, v{T0+2*k}, v{PR+4}')
        for k in range(4): a(f'v_exp_f32 v{FR+k}, v{FR+k}')
        a(f'v_mul_f32 v{PR+5}, v{FR}, v{T0+1}')
        for k in range(1, 4): a(f'v_fmac_f32 v{PR+5}, v{FR+k}, v{T0+2*k+1}')
    def mlstore():
        a('s_cmp_lg_u32 s49, 0')
        a('s_mov_b64 exec, 1')
        store_mode('stml', [f'global_store_dwordx4 v13, v[{PR+4}:{PR+7}], s[28:29]'])
        issued.append('MLst')
        a('s_mov_b64 exec, -1')
        if ZW < 0: a(f'ds_write_b32 v16, v25 offset:{FM}')
    a(f'v_mov_b32 v{PR+7}, s35')
    if MLEARLY:
        mlx_read()
        waitfor(('D', 9))
        vperm(0)
        mlx_check(0)
        factors()
        mlstore()
    if WOPOS == 2:
        for n in range(16, 20): issue(('D', n), D[n])
    if WOPOS == 3:
        a('s_bitcmp1_b32 s32, 0\ns_cbranch_scc1 L_wo_skip')
        for n in range(16, 20): issue(('D', n), D[n])
        a('L_wo_back:')
        tail.append('L_wo_skip:\ns_mov_b64 exec, 1\n' + '\n'.join(['global_load_dword v26, v12, s[28:29] sc1'] * 4) + '\ns_mov_b64 exec, -1\ns_branch L_wo_back')
    for pr in range(1, 3):
        waitfor(('D', 8 + 2*pr + 1))
        vperm(pr)
    a(f'v_mov_b32 v{PR+3}, s35')
    waitfor(('D', 15))
    ts(4)
    def p3(j): a(f'v_perm_b32 v{VT + 4*j + 3}, v{VR+28+(j>>1)}, v{VR+24+(j>>1)}, s{40+(j&1)}')
    def pv(j):
        h = j >> 2
        c = '0' if (j & 3) == 0 else f'v[{DS+4*h}:{DS+4*h+3}]'
        a(f'v_mfma_f32_16x16x32_bf16 v[{DS+4*h}:{DS+4*h+3}], v[{QF+4*(j&3)}:{QF+4*(j&3)+3}], v[{VT+4*j}:{VT+4*j+3}], {c}')
    p3(0); p3(1); p3(2); pv(0); p3(3); pv(1); p3(4); pv(2); p3(5); pv(3); p3(6); pv(4); p3(7); pv(5); pv(6); pv(7)
    a(f'''ds_write_b128 v21, v[{DS}:{DS+3}]
    ds_write_b128 v21, v[{DS+4}:{DS+7}] offset:{OH}
    ds_write_b32 v16, v25 offset:{FO}
    L_o_spin:
    ds_read_b128 v[{T0+8}:{T0+11}], v1 offset:{FO}''')
    for wp_ in range(4): a(f'ds_read_b128 v[{VR+4*wp_}:{VR+4*wp_+3}], v22 offset:{OW*wp_}')
    spin_guard()
    lgkm(4)
    a(f'''v_and_b32 v{T0+8}, v{T0+8}, v{T0+9}
    v_and_b32 v{T0+10}, v{T0+10}, v{T0+11}
    v_and_b32 v{T0+8}, v{T0+8}, v{T0+10}
    v_cmp_eq_u32 vcc, 0, v{T0+8}
    s_cbranch_vccnz L_o_spin''')
    lgkm(3)
    for k in range(4): a(f'v_mul_f32 v{VR+k}, v{VR+k}, v{FR}')
    for wp_ in range(1, 4):
        lgkm(3 - wp_)
        for k in range(4): a(f'v_fmac_f32 v{VR+k}, v{VR+4*wp_+k}, v{FR+wp_}')
    a('s_cmp_lg_u32 s49, 0')
    a('s_mov_b32 exec_hi, 0')
    pack(PR, VR, VR+1, VR+2, VR+3)
    store_mode('st2', [f'global_store_dwordx4 v10, v[{PR}:{PR+3}], s[28:29]'])
    a('s_mov_b64 exec, -1')
    ts(5)
    if WOPOS == 3:
        a('s_bitcmp1_b32 s32, 0\ns_cbranch_scc0 L_wo_have')
        for n in range(16, 20): a(D[n])
        a('L_wo_have:')
    if ZW >= 0:
        a(f's_waitcnt vmcnt({(4 if WOPOS == 2 else 5) - ZW})')
        a(f'ds_write_b32 v1, v25 offset:{FZ}')
    a(f'''v_lshlrev_b32 v15, 4, v6
    s_waitcnt vmcnt({ {2: 1, 3: 0}.get(WOPOS, 2)})''')
    ts(6)
    a(f'''L_t_spin:
    ds_read_b32 v{T0+4}, v1 offset:{FT}
    ds_read_b128 v[{T0}:{T0+3}], v15 offset:{O16}''')
    spin_guard()
    a(f'''s_waitcnt lgkmcnt(0)
    v_cmp_eq_u32 vcc, 0, v{T0+4}''')
    AT = QF; DO = DS
    for r in range(4): a(f'v_and_b32 v{AT+r}, v{T0}, v{28+r}')
    a('s_cbranch_vccnz L_t_spin')
    ts(7)
    for i in range(1, 5):
        if i < 4:
            for r in range(4): a(f'v_and_b32 v{AT+4*i+r}, v{T0+i}, v{28+r}')
        c = '0' if i == 1 else f'v[{DO}:{DO+3}]'
        a(f'v_mfma_f32_16x16x32_bf16 v[{DO}:{DO+3}], v[{AT+4*(i-1)}:{AT+4*(i-1)+3}], v[{WOR+4*(i-1)}:{WOR+4*(i-1)+3}], {c}')
    a('s_cmp_lg_u32 s49, 0')
    a('s_mov_b32 exec_hi, 0')
    pack(PR, DO, DO+1, DO+2, DO+3)
    store_mode('st3', [f'global_store_dwordx4 v11, v[{PR}:{PR+3}], s[28:29]'])
    ts(8)
    a('L_fin:')
    if DIAG:
        if DIAGG >= 0: a(f's_cmp_lg_u32 s31, {DIAGG}\ns_cbranch_scc1 L_end')
        a(f'''L_dg:
        s_memrealtime s[78:79]
        s_waitcnt lgkmcnt(0)
        s_sub_u32 s78, s78, s76
        s_cmp_lt_u32 s78, {DIAG}
        s_cbranch_scc1 L_dg''')
    if DBG:
        a('''s_memrealtime s[100:101]
        s_mov_b64 exec, 1
        v_mov_b32 v1, 0
        s_waitcnt lgkmcnt(0)
        s_not_b32 s38, s76
        v_mov_b32 v2, s38
        global_atomic_umax v1, v2, s[26:27] offset:60
        v_mov_b32 v2, s76
        global_atomic_umax v1, v2, s[26:27] offset:56
        v_mov_b32 v2, s100
        global_atomic_umax v1, v2, s[26:27] offset:52
        s_cmp_lt_u32 s30, 2
        s_cbranch_scc1 L_dbg0''')
        for k in range(1, 9):
            a(f'v_mov_b32 v2, s{76+2*k}')
            a(f'global_atomic_umax v1, v2, s[26:27] offset:{4*(k-1)}')
        a('s_endpgm')
        a('L_dbg0:')
        a('s_cmp_eq_u32 s30, 1\ns_cbranch_scc1 L_end')
        for i, k in enumerate((1, 2, 3, 5)):
            a(f'v_mov_b32 v2, s{76+2*k}')
            a(f'global_atomic_umax v1, v2, s[26:27] offset:{4*(8+i)}')
    elif TS:
        att[0] = False
        if not TS2: ts(12)
        a(f'''s_mul_i32 s38, s2, 6
        s_add_u32 s38, s38, s30
        s_lshl_b32 s38, s38, 7
        s_add_u32 s38, s38, {TSB}
        s_mov_b64 exec, 1
        v_mov_b32 v1, s38
        s_waitcnt lgkmcnt(0)''')
        for k in range(13):
            a(f'v_mov_b32 v2, s{76+2*k}')
            a(f'global_store_dword v1, v2, s[28:29] offset:{4*k}')
        a('v_mov_b32 v2, s48')
        a(f'global_store_dword v1, v2, s[28:29] offset:64')
    a('s_endpgm')
    for t in tail: a(t)
    a('L_end:')
    a('s_endpgm')
    a.raw(f'''.section .rodata,"a"
.p2align 6
.amdhsa_kernel {KN}_kernel
  .amdhsa_next_free_vgpr 168
  .amdhsa_next_free_sgpr 102
  .amdhsa_accum_offset 168
  .amdhsa_group_segment_fixed_size 0
  .amdhsa_kernarg_size 104
  .amdhsa_user_sgpr_count 2
  .amdhsa_user_sgpr_kernarg_segment_ptr 1
  .amdhsa_system_sgpr_workgroup_id_x 1
.end_amdhsa_kernel''')
    return a.text()

if __name__ == '__main__':
    for spec in sys.argv[1:]:
        name, kw = spec.split('=', 1)
        kw = eval('dict(' + kw + ')')
        open(f'exp/{name}.s', 'w').write(gen(**kw))
```

```python
import sys, struct, math
sys.path.insert(0, 'gen')
from asmlib import Asm
KN = 'recurrent_scan__sliding_block_cached__mixer_channel_mlp__decode'
def f2u(f): return struct.unpack('<I', struct.pack('<f', f))[0]
GB0 = 0x10000; GA = 0x4C000
H1F = 0; H1S = 0x2000; MLB = 0x4000; MHB = 0x5000; MHS = 896; MH2 = 0x45000 - 0x5000
OIB = 0x10000; SIB = 0x22000; MIB = 0x34000; IS = 2176
H3S_ = 0x280000; H3M_ = 0x288000
TSB = 0x800000
QL = 0; QS = 320; FQ = 1280; RS = 1296; FV = 1312; FO = 1328; MLX = 1344; FT = 1472; FE = 1476; FZ = 1480; FM = 1488; FW = 1504; O16 = 1536; OL = 2048; OH = 1152; OW = 2304; KL = 16384; LDSZ = 16384 + 32768
LOG2E = 1.4426950408889634
MAXPOLL = 400000
DOC = """;
; Workgroups hand data over through d_ws in 16-byte {3 data words, tag} granules; tag = f(epoch word found in d_ws).
; One wave per group writes the L2 back once the group's hand-offs are consumed, so little is left dirty at kernel end."""

def gen(TS=False, TS2=False, WIN=6, PA=4, H1FAST=True, PF=True, SPREAD=True, WNT=False, MLEARLY=True, DBG=False, SLP=2, LATEF=True, PE=1, BURST=True, STREAM=0, NOP=False, ROT='g', NST=15, PSL=1, MWAIT=True, PPOS=(1, 4, 7), SNT=False, TOUCH=0, DIAG=0, DIAGG=-1, WOPOS=2, FUSE=True, TIGHT=True, FEARLY=False, QMAP=0, ELATE=True, QROW=0, XPOS=15, SPF=False, MTRIG=7, W2LATE=False, QREP=2, ZW=0, MZ=True, HWARM=False, BAL=False, FDLY=0, WB=1, OSC=True, CLEAN=0, WBD=0, WBE=0, SWAIT=False):
    a = Asm()
    hdr = open('cdna_kernels/' + KN + '.s.ref').read().split('\n')
    for l in hdr:
        if l.startswith('; @launch'): break
        a.raw(l)
    a.raw(f'; @launch grid=(256,1,1) block=(384,1,1) lds={LDSZ}')
    a.raw(DOC)
    a.raw('.amdgcn_target "amdgcn-amd-amdhsa--gfx950"\n.text')
    a.raw(f'.globl {KN}_kernel\n.p2align 8\n.type {KN}_kernel,@function\n{KN}_kernel:')
    att = [False]
    def ts2(k):
        if TS2 and k <= 12: a(f's_memrealtime s[{76+2*k}:{77+2*k}]')
    def ts(k):
        if TS2 and att[0]: return
        if TS: a(f's_memrealtime s[{76+2*k}:{77+2*k}]')
    def lgkm(n): a(f's_waitcnt lgkmcnt({0 if TS else n})')
    def wave_sum(vs):
        for sh in (1, 2, 4, 8):
            for x in vs: a(f'v_add_f32_dpp v{x}, v{x}, v{x} row_shr:{sh} row_mask:0xf bank_mask:0xf bound_ctrl:0')
        for x in vs: a(f'v_add_f32_dpp v{x}, v{x}, v{x} row_bcast:15 row_mask:0xa bank_mask:0xf')
        for x in vs: a(f'v_add_f32_dpp v{x}, v{x}, v{x} row_bcast:31 row_mask:0xc bank_mask:0xf')
    def ror(op, x, shs, dst=None):
        for i, sh in enumerate(shs):
            d = dst if (dst is not None and i == len(shs) - 1) else x
            a(f'{op}_dpp v{d}, v{x}, v{x} row_ror:{sh} row_mask:0xf bank_mask:0xf')
    def scatter4(r):
        a(f'''v_permlane32_swap_b32 v{r}, v{r+2}
        v_permlane32_swap_b32 v{r+1}, v{r+3}
        v_add_f32 v{r}, v{r}, v{r+2}
        v_add_f32 v{r+1}, v{r+1}, v{r+3}
        v_permlane16_swap_b32 v{r}, v{r+1}
        v_add_f32 v{r}, v{r}, v{r+1}''')
    def allrows(op, x, t):
        a(f'''v_mov_b32 v{t}, v{x}
        v_permlane32_swap_b32 v{x}, v{t}
        {op} v{x}, v{x}, v{t}
        v_mov_b32 v{t}, v{x}
        v_permlane16_swap_b32 v{x}, v{t}
        {op} v{x}, v{x}, v{t}''')
    def rnd(dst, src):
        a(f'v_cvt_pk_bf16_f32 v{dst}, v{src}, v{src}')
        a(f'v_and_b32 v{dst}, 0xffff0000, v{dst}')
    def mktag(ve):
        a(f'''v_readfirstlane_b32 s35, v{ve}
        s_add_u32 s35, s35, 0x9E3779B9
        s_or_b32 s35, s35, 1''')
    def pack(d, v0, v1, v2, v3):
        a(f'v_perm_b32 v{d}, v{v0}, v{v3}, s42')
        a(f'v_perm_b32 v{d+1}, v{v1}, v{v3}, s43')
        a(f'v_perm_b32 v{d+2}, v{v2}, v{v3}, s44')
    def unpack3(d):
        a(f'v_perm_b32 v{d+3}, v{d+1}, v{d}, s45')
        a(f'v_perm_b32 v{d+3}, v{d+2}, v{d+3}, s46')
    def poll(name, loads, tagregs, first_wait, pre='', slp=0):
        a(f's_waitcnt vmcnt({first_wait})')
        a(f's_branch L_{name}_chk')
        a(f'L_{name}_retry:')
        if slp: a(f's_sleep {slp}')
        a(f'''s_add_u32 s48, s48, 1
        {pre}
        s_wqm_b64 exec, s[50:51]''')
        for x in loads: a(x)
        a(f'''s_mov_b64 exec, -1
        s_cmp_gt_u32 s48, {MAXPOLL}
        s_cbranch_scc1 L_end
        s_waitcnt vmcnt(0)
        L_{name}_chk:''')
        for i, r in enumerate(tagregs):
            a(f'v_cmp_ne_u32 s[{50+2*i}:{51+2*i}], s35, v{r}')
        if len(tagregs) == 1: a('s_cmp_lg_u64 s[50:51], 0')
        else:
            for i in range(1, len(tagregs)): a(f's_or_b64 s[50:51], s[50:51], s[{50+2*i}:{51+2*i}]')
        a(f's_cbranch_scc1 L_{name}_retry')
    def npoll(name, loads, tagregs, slp, init=True, pre='', reps=1, masktags=()):
        if init: a('s_mov_b64 s[50:51], -1')
        a(f'L_{name}_l:')
        if pre: a(pre)
        a('s_wqm_b64 exec, s[50:51]')
        for x in loads: a(x)
        a(f'''s_mov_b64 exec, -1
        s_add_u32 s48, s48, 1
        s_cmp_gt_u32 s48, {MAXPOLL}
        s_cbranch_scc1 L_end
        s_waitcnt vmcnt(56)''')
        for rp in range(reps):
            if slp: a(f's_sleep {slp}')
            if rp == reps - 1:
                a(f'L_{name}_c:')
                for i, r in enumerate(masktags):
                    a(f'v_cmp_ne_u32 s[{54+2*i}:{55+2*i}], s35, v{r}')
            for i, r in enumerate(tagregs):
                a(f'v_cmp_ne_u32 s[{50+2*i}:{51+2*i}], s35, v{r}')
            for i in range(1, len(tagregs)): a(f's_or_b64 s[50:51], s[50:51], s[{50+2*i}:{51+2*i}]')
            if len(tagregs) == 1: a('s_cmp_lg_u64 s[50:51], 0')
            if rp < reps - 1 or masktags: a(f's_cbranch_scc0 L_{name}_x')
            else: a(f's_cbranch_scc1 L_{name}_l')
        if masktags:
            for i in range(len(masktags)): a(f's_or_b64 s[50:51], s[50:51], s[{54+2*i}:{55+2*i}]')
            a(f's_branch L_{name}_l')
        a(f'L_{name}_x:')
    def unpack_to(t, d):
        a(f'v_perm_b32 v{t}, v{d+1}, v{d}, s45')
        a(f'v_perm_b32 v{t}, v{d+2}, v{t}, s46')
    def sum2(dst, r0, r1, t):
        unpack_to(dst+3, r0); unpack_to(t, r1)
        for k in range(3): a(f'v_add_f32 v{dst+k}, v{r0+k}, v{r1+k}')
        a(f'v_add_f32 v{dst+3}, v{dst+3}, v{t}')
    tail = []
    def store_mode(name, ins):
        a(f's_cbranch_scc1 L_{name}_slow')
        for x in ins: a(x)
        a(f'L_{name}_done:')
        tail.append(f'L_{name}_slow:\n' + '\n'.join(x + ' sc1' for x in ins) + f'\ns_branch L_{name}_done')
    consts = '''s_mov_b32 s40, 0x05040100
        s_mov_b32 s41, 0x07060302
        s_mov_b32 s42, 0x07060501
        s_mov_b32 s43, 0x07060502
        s_mov_b32 s44, 0x07060503
        s_mov_b32 s45, 0x0c04000c
        s_mov_b32 s46, 0x04020100
        s_getreg_b32 s33, hwreg(HW_REG_XCC_ID)
        s_and_b32 s33, s33, 7'''
    spin = [0]
    def spin_guard():
        a(f'''s_add_u32 s48, s48, 1
        s_cmp_gt_u32 s48, {MAXPOLL}
        s_cbranch_scc1 L_end''')

    ts(0)
    if DIAG: a('s_memrealtime s[76:77]')
    a(f'''s_load_dwordx16 s[4:19], s[0:1], 0
    s_load_dwordx8 s[20:27], s[0:1], 64
    s_load_dwordx2 s[28:29], s[0:1], 96
    s_cmp_ge_u32 s2, 256
    s_cbranch_scc1 L_end
    v_lshrrev_b32 v1, 6, v0
    v_and_b32 v0, 63, v0
    s_getpc_b64 s[36:37]
    L_pc:
    v_readfirstlane_b32 s30, v1
    s_and_b32 s31, s2, 7
    s_lshr_b32 s32, s2, 3
    s_mul_i32 s38, s32, 6
    s_add_u32 s38, s38, s30
    s_lshl_b32 s38, s38, 7
    v_mov_b32 v1, s38
    s_cmp_gt_u32 s38, L_end-L_pc
    s_cbranch_scc1 L_nopf
    s_mov_b64 exec, 1
    {'global_load_dword v26, v1, s[36:37]' if PF and not SPF else 's_nop 0'}
    s_mov_b64 exec, -1
    L_nopf:
    s_mul_i32 s34, s31, {GA}
    s_add_u32 s34, s34, {GB0}
    s_mov_b32 s48, 0
    v_mov_b32 v1, 0
    v_lshlrev_b32 v2, 4, v0
    v_and_b32 v5, 15, v0
    v_lshrrev_b32 v6, 4, v0
    s_cmp_eq_u32 s30, 1
    s_cbranch_scc1 L_M
    s_cmp_gt_u32 s30, 1
    s_cbranch_scc1 L_A''')
    qm = {0: 's_mov_b32 s74, s32', 1: 's_and_b32 s74, s32, 7\ns_lshl_b32 s74, s74, 2\ns_lshr_b32 s38, s32, 3\ns_add_u32 s74, s74, s38', 2: 's_and_b32 s38, s32, 12\ns_cmp_eq_u32 s38, 12\ns_cselect_b32 s38, 16, 0\ns_xor_b32 s74, s32, s38'}[2 if BAL else QMAP]
    a(f'''s_setprio 3
    {qm}
    v_and_b32 v4, 1, v0
    v_lshl_add_u32 v3, v6, 1, v4
    v_lshlrev_b32 v3, {7 if QROW else 5}, v3
    s_and_b32 s38, s74, 3
    s_lshl_b32 s39, s38, {5 if QROW else 8}
    v_add_u32 v3, s39, v3
    v_lshrrev_b32 v4, 3, v0
    v_lshlrev_b32 v4, {19 if QROW else 17}, v4
    v_and_b32 v7, 7, v0
    v_lshl_add_u32 v4, v7, 4, v4
    s_lshl_b32 s39, s38, {17 if QROW else 20}
    s_lshl_b32 s38, s31, 10
    s_add_u32 s39, s39, s38
    s_lshr_b32 s38, s74, 2
    s_lshl_b32 s38, s38, 7
    s_add_u32 s39, s39, s38
    v_add_u32 v4, s39, v4
    s_mov_b32 s38, 0x3f803f80
    s_movk_i32 s39, 0x2000''')
    for r in range(8, 16): a(f'v_mov_b32 v{r}, s38')
    a(f'''s_mov_b32 s60, 0x00030003
    s_mov_b32 s61, 0x00030003
    s_waitcnt lgkmcnt(0)''')
    for i in range(16):
        a(f'global_load_dwordx4 v[{20+4*i}:{23+4*i}], v4, s[10:11] nt')
        if i < 15: a('v_add_u32 v4, s39, v4')
        if i == XPOS:
            a('''s_mov_b64 exec, s[60:61]
            global_load_dwordx4 v[8:11], v3, s[4:5]
            global_load_dwordx4 v[12:15], v3, s[4:5] offset:16
            s_mov_b64 exec, -1
            global_load_dwordx4 v[148:151], v2, s[4:5]
            s_mov_b64 exec, 1
            global_load_dword v16, v1, s[28:29] sc1
            s_mov_b64 exec, -1''')
    a('s_barrier')
    a('s_branch L_Q2')
    a(f'''L_M:
    s_mul_i32 s38, s32, {16*3584}
    s_mul_i32 s39, s31, 448
    s_add_u32 s38, s38, s39
    v_lshl_add_u32 v4, v0, 3, s38
    s_movk_i32 s39, 7168
    s_mov_b32 s60, -1
    s_mov_b32 s61, 0x00ffffff
    v_lshlrev_b32 v3, 2, v0
    ds_write_b32 v3, v1 offset:{FQ}
    s_waitcnt lgkmcnt(0)
    {'' if ELATE else 'global_load_dwordx4 v[8:11], v2, s[4:5]'}
    s_mov_b64 exec, 1
    {'' if ELATE else 'global_load_dword v16, v1, s[28:29] sc1'}
    s_barrier
    {'global_load_dword v16, v1, s[28:29] sc1' if ELATE else ''}
    s_mov_b64 exec, -1
    {'global_load_dwordx4 v[8:11], v2, s[4:5]' if ELATE else ''}
    s_branch L_M2''')
    KR = 32; VR = 64; PR = 96; WOR = 104; QF = 120; DS = 136; T0 = 144; KS = 50; PB = 160
    rot = {'s2w': 's_lshl_b32 s3, s47, 1\ns_add_u32 s3, s3, s32', 'g': 's_mov_b32 s3, s31', 'g2w': 's_lshl_b32 s3, s47, 1\ns_add_u32 s3, s3, s31',
           '0': 's_mov_b32 s3, 0', '2w': 's_lshl_b32 s3, s47, 1', 's': 's_mov_b32 s3, s32', 'sh': 's_lshr_b32 s3, s32, 2\ns_add_u32 s3, s3, s31'}[ROT]
    a(f'''L_A:
    s_sub_u32 s47, s30, 2
    s_lshl_b32 s38, s31, 24
    s_lshl_b32 s39, s32, 15
    s_add_u32 s38, s38, s39
    s_lshl_b32 s39, s47, 10
    s_add_u32 s38, s38, s39
    s_add_u32 s38, s38, {0xF00000}
    s_lshl_b32 s39, s47, 13
    s_add_u32 s39, s39, {KL}
    s_mov_b32 m0, s39
    {rot}
    v_xor_b32 v7, v5, v6
    v_lshlrev_b32 v7, 4, v7
    v_lshl_add_u32 v{T0}, v6, 8, v7
    v_add_u32 v{T0}, s38, v{T0}
    v_xor_b32 v{T0+1}, 64, v{T0}
    v_xor_b32 v{T0+2}, 0x80, v{T0}
    v_xor_b32 v{T0+3}, 0xc0, v{T0}
    v_lshl_add_u32 v{T0+4}, v5, 8, v7
    v_add_u32 v{T0+4}, s39, v{T0+4}
    v_add_u32 v4, s3, v6
    v_and_b32 v4, 7, v4
    v_lshlrev_b32 v4, 12, v4
    v_lshl_add_u32 v4, v5, 4, v4
    v_add_u32 v4, s38, v4
    v_xor_b32 v27, 0x4000, v4
    s_waitcnt lgkmcnt(0)
    s_mov_b64 exec, 1
    {'' if ELATE else 'global_load_dword v23, v1, s[28:29] sc1'}
    s_mov_b64 exec, -1''')
    if TOUCH:
        a(f'''s_mov_b64 exec, 1
        s_cmp_eq_u32 s47, 1
        s_cbranch_scc1 L_tch1
        s_cmp_eq_u32 s47, 2
        s_cbranch_scc1 L_tch2
        s_cmp_eq_u32 s47, 3
        s_cbranch_scc1 L_tch3
        s_lshl_b32 s39, s31, 5
        s_add_u32 s39, s39, s32
        s_lshl_b32 s39, s39, 14
        v_mov_b32 v8, s39
        global_load_dword v26, v4, s[8:9] nt
        global_load_dword v26, v8, s[12:13] nt
        global_load_dword v26, v{T0}, s[6:7] nt
        s_branch L_tchd
        L_tch1:
        s_mul_i32 s39, s31, {224*1024}
        v_mov_b32 v8, s39
        global_load_dword v26, v8, s[20:21] nt
        global_load_dword v26, v1, s[18:19]
        global_load_dword v26, v1, s[22:23]
        s_branch L_tchd
        L_tch2:
        v_mov_b32 v8, {H3S_}
        v_mov_b32 v9, s34
        global_load_dword v26, v1, s[24:25]
        global_load_dword v26, v8, s[28:29] offset:-128
        global_load_dword v26, v9, s[28:29] offset:-128
        s_branch L_tchd
        L_tch3:
        s_add_u32 s39, s34, {SIB}
        v_mov_b32 v8, s39
        s_add_u32 s39, s34, {MIB}
        v_mov_b32 v9, s39
        s_add_u32 s39, s34, {OIB}
        v_mov_b32 v10, s39
        global_load_dword v26, v8, s[28:29] offset:-128
        global_load_dword v26, v9, s[28:29] offset:-128
        global_load_dword v26, v10, s[28:29] offset:-128
        L_tchd:
        s_mov_b64 exec, -1''')
    for i in range(8):
        a(f'''s_add_u32 s39, s3, {i}
        s_and_b32 s39, s39, 7
        s_lshl_b32 s39, s39, 12
        s_add_u32 s{KS+2*i}, s6, s39
        s_addc_u32 s{KS+2*i+1}, s7, 0''')
    a('s_barrier')
    if ELATE: a('s_mov_b64 exec, 1\nglobal_load_dword v23, v1, s[28:29] sc1\ns_mov_b64 exec, -1')
    D = []
    for i in range(8):
        pre = 's_add_u32 m0, m0, 1024\ns_nop 0\n' if i > 0 else ''
        D.append(pre + f'global_load_lds_dwordx4 v{T0+(i&3)}, s[{KS+2*i}:{KS+2*i+1}] nt')
    for e in range(8):
        r = VR + 4*e
        D.append(f'global_load_dwordx4 v[{r}:{r+3}], v{4 if e < 4 else 27}, s[8:9] offset:{256*(e&3)} nt')
    for i in range(4):
        D.append(f'global_load_dwordx4 v[{WOR+4*i}:{WOR+4*i+3}], v{9 if i < 2 else 14}, s[12:13] offset:{4096*(i&1)-4096} nt')
    pl = [f'global_load_dwordx4 v[{PR}:{PR+3}], v12, s[28:29] sc1', f'global_load_dwordx4 v[{PR+4}:{PR+7}], v12, s[28:29] offset:256 sc1']
    setup = f'''s_lshl_b32 s39, s47, 11
    s_add_u32 s38, s34, s39
    s_add_u32 s38, s38, {H1F if H1FAST else H1S}
    v_and_b32 v8, 1, v6
    v_lshlrev_b32 v12, 10, v8
    v_lshrrev_b32 v9, 5, v0
    v_lshl_add_u32 v12, v9, 9, v12
    v_lshl_add_u32 v12, v5, 4, v12
    v_add_u32 v12, s38, v12
    s_mul_i32 s38, s47, {QS}
    v_lshlrev_b32 v17, 7, v8
    v_lshl_add_u32 v17, v9, 2, v17
    v_and_b32 v7, 7, v0
    v_lshl_add_u32 v17, v7, 4, v17
    v_bfe_u32 v7, v0, 3, 1
    v_lshl_add_u32 v17, v7, 3, v17
    v_add_u32 v17, s38, v17
    s_mul_i32 s38, s47, {8*IS}
    s_lshl_b32 s39, s32, 6
    s_add_u32 s38, s38, s39
    s_add_u32 s38, s38, s34
    s_mul_i32 s39, s32, {IS}
    s_add_u32 s39, s39, s34
    s_add_u32 s39, s39, {OIB}
    v_lshrrev_b32 v7, 2, v5
    v_lshl_add_u32 v11, v7, 1, v8
    v_lshlrev_b32 v11, 6, v11
    v_and_b32 v3, 3, v0
    v_lshl_add_u32 v11, v3, 4, v11
    v_add_u32 v11, s39, v11
    s_lshl_b32 s39, s47, 9
    v_add_u32 v11, s39, v11
    s_add_u32 s39, s38, {OIB}
    v_bfe_u32 v10, v0, 2, 3
    v_mul_u32_u24 v10, {IS}, v10
    v_lshl_add_u32 v10, v3, 4, v10
    v_add_u32 v10, s39, v10
    v_mul_u32_u24 v18, {QS}, v7
    v_lshl_add_u32 v18, v6, 4, v18
    s_lshl_b32 s38, s47, 3
    v_lshl_add_u32 v19, v7, 5, s38
    s_mul_i32 s38, s47, {OW}
    s_add_u32 s38, s38, {OL}
    v_add_u32 v21, s38, v2
    s_lshl_b32 s38, s47, 8
    s_add_u32 s38, s38, {OL}
    v_and_b32 v7, 1, v0
    v_mul_u32_u24 v22, {OH}, v7
    v_bfe_u32 v20, v0, 1, 4
    v_lshl_add_u32 v22, v20, 4, v22
    v_add_u32 v22, s38, v22
    s_lshl_b32 s38, s31, 5
    s_add_u32 s38, s38, s32
    s_lshl_b32 s38, s38, 14
    s_lshl_b32 s39, s47, 8
    s_add_u32 s38, s38, s39
    s_add_u32 s38, s38, 4096
    v_lshlrev_b32 v14, 10, v6
    v_lshl_add_u32 v14, v5, 4, v14
    v_add_u32 v9, s38, v14
    v_add_u32 v14, 0x2000, v9
    s_lshl_b32 s39, s47, 9
    s_lshl_b32 s38, s32, 4
    s_add_u32 s39, s39, s38
    s_add_u32 s39, s39, s34
    s_add_u32 s39, s39, {MLB}
    v_mov_b32 v13, s39
    s_lshl_b32 s38, s47, 2
    v_mov_b32 v16, s38
    s_lshl_b32 s38, s47, 5
    v_mov_b32 v24, s38
    v_mov_b32 v25, 1
    {consts}
    v_cmp_eq_u32 vcc, 1, v7
    v_mov_b32 v{DS}, 0x0000ffff
    v_mov_b32 v{DS+1}, 0xffff0000
    v_cndmask_b32 v{DS}, v{DS}, v{DS+1}, vcc
    v_bfe_u32 v{DS+2}, v0, 1, 3'''.split('\n')
    for r in range(4):
        setup += [f'v_cmp_eq_u32 vcc, {r}, v{DS+2}', f'v_cndmask_b32 v{28+r}, 0, v{DS}, vcc']
    for j in range(4):
        setup += [f's_mov_b32 s{66+2*j}, {hex(0x11111111 << j)}', f's_mov_b32 s{67+2*j}, {hex(0x11111111 << j)}']
    setup += [f'v_xor_b32 v{T0+5}, 64, v{T0+4}', f'v_xor_b32 v{T0+6}, 0x80, v{T0+4}', f'v_xor_b32 v{T0+7}, 0xc0, v{T0+4}']
    issued = []
    def issue(tag, ins): a(ins); issued.append(tag)
    def waitfor(tag): a(f's_waitcnt vmcnt({len(issued) - 1 - issued.index(tag)})')
    chunk = (len(setup) + WIN - 1) // WIN if SPREAD else 0
    for n in range(WIN):
        issue(('D', n), D[n])
        if SPREAD: a('\n'.join(setup[n*chunk:(n+1)*chunk]))
    if not SPREAD: a('\n'.join(setup))
    nstop = NST if BURST else 19
    a(f'v_mov_b32 v{PB+3}, 0\nv_mov_b32 v{PB+7}, 0')
    pl = [x.replace(f'v[{PR}:{PR+3}]', f'v[{PB}:{PB+3}]').replace(f'v[{PR+4}:{PR+7}]', f'v[{PB+4}:{PB+7}]') for x in pl]
    for n in range(WIN, len(D) if WOPOS == 0 else 16):
        if n <= nstop:
            waitfor(('D', n - WIN))
            if not STREAM: ts2(n - WIN)
            elif n - WIN >= 7: ts2(n - WIN - 7)
        if n == WIN: mktag(23)
        issue(('D', n), D[n])
        if n - 8 in PPOS and not NOP:
            issue(('P0', n - 8), pl[0]); issue(('P1', n - 8), pl[1])
        if n == 15: a(f'ds_write_b32 v16, v25 offset:{FV}')
        if n == 8 + MTRIG and MTRIG != 7: a(f'ds_write_b32 v16, v25 offset:{FW}')
        if n - WIN == 7:
            for b in range(2):
                for t in range(4):
                    r = KR + 16*b + 4*t
                    a(f'ds_read_b128 v[{r}:{r+3}], v{T0+4+t} offset:{4096*b}')
    if STREAM:
        for n in range(min(nstop, 19) - WIN + 1, 20):
            waitfor(('D', n))
            ts2(n - 7)
        a('s_branch L_fin')
        issued += [('P1', e) for e in PPOS]
    a('s_branch L_A2')

    a('L_Q2:')
    a(consts)
    a(f'''s_lshl_b32 s3, s33, 8
    v_mov_b32 v17, s3
    s_movk_i32 s62, 0x700
    s_lshl_b32 s39, s74, 8
    s_add_u32 s39, s39, s34
    v_add_u32 v18, s39, v2
    v_add_u32 v3, {H1S-H1F}, v18
    v_mov_b32 v19, 0''')
    def qmean():
        ts(1)
        for r in range(148, 152): a(f'v_dot2c_f32_bf16 v19, s38, v{r}')
        mktag(16)
        wave_sum([19])
        a(f'''v_readlane_b32 s63, v19, 63
        v_mov_b32 v19, {hex(f2u(1.0/512))}
        v_mul_f32 v19, s63, v19''')
        rnd(19, 19)
    T = 84; DQ = 116
    def qperm(h, TT):
        for pr in range(4):
            ia = 8*h + 2*pr; ib = ia + 1
            a(f's_waitcnt vmcnt({15 - ib + (4 if ib <= XPOS else 0)})')
            for d in range(4):
                a(f'v_perm_b32 v{TT + 4*(2*d) + pr}, v{20+4*ib+d}, v{20+4*ia+d}, s40')
                a(f'v_perm_b32 v{TT + 4*(2*d+1) + pr}, v{20+4*ib+d}, v{20+4*ia+d}, s41')
    def qmfma(h, TT):
        for j in range(8):
            c = '0' if h == 0 else f'v[{DQ+4*j}:{DQ+4*j+3}]'
            a(f'v_mfma_f32_16x16x32_bf16 v[{DQ+4*j}:{DQ+4*j+3}], v[{8+4*h}:{11+4*h}], v[{TT+4*j}:{TT+4*j+3}], {c}')
    if XPOS == 3:
        a('s_waitcnt vmcnt(12)')
        qmean()
        qperm(0, T); qmfma(0, T); qperm(1, T); ts(2); qmfma(1, T)
    else:
        qperm(0, T); qperm(1, 20); ts(2)
        a('s_waitcnt vmcnt(2)')
        qmfma(0, T); qmfma(1, 20)
        a('s_waitcnt vmcnt(0)')
        qmean()
    a('v_mov_b32 v23, s35\nv_mov_b32 v27, s35')
    for j in range(8):
        d = DQ + 4*j
        a(f'v_add_f32_dpp v{d}, v{d+1}, v{d} row_ror:8 row_mask:0xf bank_mask:0xf')
        a(f'v_add_f32_dpp v{d+2}, v{d+2}, v{d+2} row_ror:8 row_mask:0xf bank_mask:0xf')
        a(f'v_fma_f32 v{d}, -v19, v{d+2}, v{d}')
    for hq in range(2):
        o = 20 + 4*hq
        pack(o, DQ + 16*hq, DQ + 16*hq + 4, DQ + 16*hq + 8, DQ + 16*hq + 12)
        a(f'v_bfi_b32 v{o}, s62, v17, v{o}')
    a('s_mov_b64 exec, 0xff')
    if H1FAST:
        a(f'''global_store_dwordx4 v18, v[20:23], s[28:29]
        global_store_dwordx4 v18, v[24:27], s[28:29] offset:128''')
    a(f'''global_store_dwordx4 v3, v[20:23], s[28:29] sc1
    global_store_dwordx4 v3, v[24:27], s[28:29] offset:128 sc1
    s_mov_b64 exec, -1''')
    ts(3)
    def lds_wait1(name, off):
        a(f'''L_{name}:
        ds_read_b32 v28, v1 offset:{off}''')
        spin_guard()
        a(f'''s_waitcnt lgkmcnt(0)
        v_cmp_eq_u32 vcc, 0, v28
        s_cbranch_vccnz L_{name}''')
    def lds_wait4(name, off):
        a(f'''L_{name}:
        s_sleep 1
        ds_read_b128 v[28:31], v1 offset:{off}''')
        spin_guard()
        a(f'''s_waitcnt lgkmcnt(0)
        v_and_b32 v28, v28, v29
        v_and_b32 v30, v30, v31
        v_and_b32 v28, v28, v30
        v_cmp_eq_u32 vcc, 0, v28
        s_cbranch_vccnz L_{name}''')
    a(f'''s_mul_i32 s38, s32, {IS}
    s_add_u32 s38, s38, s34
    s_add_u32 s39, s38, {OIB}
    v_add_u32 v8, s39, v2
    s_lshl_b32 s39, s32, 6
    s_add_u32 s39, s39, s34
    s_add_u32 s39, s39, {OIB}
    v_lshrrev_b32 v9, 2, v0
    v_mul_u32_u24 v9, {IS}, v9
    v_and_b32 v16, 3, v0
    v_lshl_add_u32 v9, v16, 4, v9
    v_add_u32 v9, s39, v9
    v_add_u32 v16, {16*IS}, v9
    s_lshr_b32 s39, s32, 3
    s_lshl_b32 s39, s39, 9
    s_add_u32 s39, s39, s34
    s_add_u32 s39, s39, {MLB}
    v_lshrrev_b32 v10, 2, v0
    v_lshl_add_u32 v10, v10, 4, s39
    s_lshl_b32 s38, s32, 10
    s_lshl_b32 s39, s31, 7
    s_add_u32 s38, s38, s39
    s_add_u32 s38, s38, {H3S_}
    v_and_b32 v11, 3, v0
    v_lshl_add_u32 v11, v6, 2, v11
    v_lshlrev_b32 v14, 2, v11
    v_lshl_add_u32 v11, v11, 3, s38
    v_mov_b32 v13, s35
    v_mov_b32 v15, 1
    v_mov_b32 v35, 0
    v_mov_b32 v39, 0
    v_mov_b32 v43, 0
    v_mov_b32 v47, 0
    v_mov_b32 v51, 0
    v_mov_b32 v55, 0
    s_mov_b32 s60, 0x000f000f
    s_mov_b32 s61, 0x000f000f''')
    if STREAM and not STREAM & 8: a('s_branch L_fin')
    lds_wait4('Q_vi', FV)
    ts(4)
    wp = 'sc1 nt' if WNT else 'sc1'
    LR = 48; HR = 32
    sl = [f'global_load_dwordx4 v[{40+4*i}:{43+4*i}], v{(9, 16)[i]}, s[28:29] sc1' for i in range(2)]
    mll = [f'global_load_dwordx4 v[{LR+4*i}:{LR+4*i+3}], v10, s[28:29] offset:{256*i} sc1' for i in range(2)]
    ol = [f'global_load_dwordx4 v[{HR+4*i}:{HR+4*i+3}], v8, s[28:29] offset:{1024*i} sc1' for i in range(2)]
    for x in mll + ol: a(x)
    if STREAM: a('s_waitcnt vmcnt(0)\ns_branch L_fin')
    if ZW >= 0: lds_wait1('Q_fz', FZ)
    else: lds_wait4('Q_fm', FM)
    npoll('ML', mll + ol, [LR+3, LR+7], 1, reps=QREP, masktags=(HR+3, HR+7))
    ts(7)
    for x in ol: a(x)
    a(f'v_max_f32 v56, v{LR}, v{LR+4}')
    ror('v_max_f32', 56, (8, 4))
    allrows('v_max_f32', 56, 57)
    a(f'''v_sub_f32 v58, v{LR}, v56
    v_sub_f32 v59, v{LR+4}, v56
    v_cmp_ne_u32 s[50:51], s35, v{HR+3}
    v_exp_f32 v58, v58
    v_cmp_ne_u32 s[52:53], s35, v{HR+7}
    v_exp_f32 v59, v59
    s_or_b64 s[50:51], s[50:51], s[52:53]
    s_cbranch_scc0 L_O_ok''')
    npoll('O', ol, [HR+3, HR+7], PSL, init=False)
    a('L_O_ok:')
    ts(8)
    R = 'row_mask:0xf bank_mask:0xf'
    a(f'''v_mul_f32 v56, v58, v{LR+1}
    v_perm_b32 v63, v{HR+1}, v{HR}, s45
    v_fmac_f32 v56, v59, v{LR+5}
    v_perm_b32 v64, v{HR+5}, v{HR+4}, s45
    v_perm_b32 v63, v{HR+2}, v63, s46
    v_add_f32_dpp v56, v56, v56 row_ror:8 {R}
    v_perm_b32 v64, v{HR+6}, v64, s46
    v_mul_f32 v60, v{HR}, v58
    v_add_f32_dpp v56, v56, v56 row_ror:4 {R}
    v_mul_f32 v62, v{HR+2}, v58
    v_mov_b32 v57, v56
    v_mul_f32 v61, v{HR+1}, v58
    v_mul_f32 v63, v63, v58
    v_permlane32_swap_b32 v56, v57
    v_fmac_f32 v60, v{HR+4}, v59
    v_fmac_f32 v62, v{HR+6}, v59
    v_add_f32 v56, v56, v57
    v_fmac_f32 v61, v{HR+5}, v59
    v_fmac_f32 v63, v64, v59
    v_mov_b32 v57, v56
    v_permlane32_swap_b32 v60, v62
    v_permlane32_swap_b32 v61, v63
    v_permlane16_swap_b32 v56, v57
    v_add_f32 v60, v60, v62
    v_add_f32 v61, v61, v63
    v_add_f32 v56, v56, v57
    v_rcp_f32 v56, v56
    v_permlane16_swap_b32 v60, v61
    v_add_f32 v60, v60, v61''')
    ror('v_add_f32', 60, (8, 4))
    a(f'''v_mul_f32 v60, v60, v56
    v_cvt_pk_bf16_f32 v60, v60, v60
    ds_write_b32 v14, v60 offset:{O16}
    ds_write_b32 v1, v15 offset:{FT}''')
    ts(9)
    a('s_xor_b32 s35, s35, 2')
    if SWAIT: lds_wait1('Q_fs', FW)
    npoll('S', sl, [43, 47], PSL)
    ts(5)
    sum2(60, 40, 44, 64)
    scatter4(60)
    ror('v_add_f32', 60, (8, 4), dst=12)
    a(f'''s_mov_b64 exec, s[60:61]
    global_store_dwordx2 v11, v[12:13], s[28:29] sc1
    ds_write_b32 v1, v15 offset:{FE}
    s_waitcnt lgkmcnt(0)''')
    ts(6)
    if WB == 3:
        a(f's_waitcnt vmcnt(0)\nds_write_b32 v1, v15 offset:{FM}\ns_waitcnt lgkmcnt(0)')
    if CLEAN:
        a(f'''s_mov_b64 exec, -1
        global_store_dwordx4 v9, v[60:63], s[28:29] sc1
        global_store_dwordx4 v9, v[60:63], s[28:29] offset:1024 sc1
        s_and_b32 s38, s32, 7
        s_cmp_lg_u32 s38, 0
        s_cbranch_scc1 L_fin
        s_mov_b32 s60, 0x11111111
        s_mov_b32 s61, 0x11111111
        s_mov_b64 exec, s[60:61]
        global_store_dwordx4 v10, v[60:63], s[28:29] sc1
        global_store_dwordx4 v10, v[60:63], s[28:29] offset:256 sc1''')
    a('s_branch L_fin')

    a('L_M2:')
    a(consts)
    a(f'''s_lshl_b32 s62, s32, 1
    s_add_u32 s63, s62, 1
    s_waitcnt vmcnt(0)''')
    ts(1)
    mktag(16)
    def layernorm(first):
        for d in range(4):
            a(f'v_lshlrev_b32 v{60+2*d}, 16, v{8+d}')
            a(f'v_and_b32 v{61+2*d}, 0xffff0000, v{8+d}')
        a('v_readfirstlane_b32 s38, v60')
        for k in range(8): a(f'v_subrev_f32 v{70+k}, s38, v{60+k}')
        a('v_add_f32 v68, v70, v71')
        a('v_mul_f32 v69, v70, v70')
        for k in range(1, 8):
            if k >= 2: a(f'v_add_f32 v68, v68, v{70+k}')
            a(f'v_fmac_f32 v69, v{70+k}, v{70+k}')
        wave_sum([68, 69])
        a(f'''v_readlane_b32 s39, v68, 63
        v_readlane_b32 s64, v69, 63
        v_mov_b32 v70, {hex(f2u(1.0/512))}
        v_mul_f32 v68, s39, v70
        v_mul_f32 v69, s64, v70
        v_fma_f32 v69, -v68, v68, v69
        v_max_f32 v69, 0, v69
        v_add_f32 v68, s38, v68''')
        rnd(68, 68); rnd(69, 69)
        a(f'v_add_f32 v69, {hex(f2u(1e-5))}, v69')
        rnd(69, 69)
        a('v_sqrt_f32 v69, v69')
        rnd(69, 69)
        a('v_rcp_f32 v69, v69')
        if first:
            a(f'v_mul_f32 v70, {hex(f2u(LOG2E / math.sqrt(128.0)))}, v69')
            a(f'v_or_b32 v70, 1, v70')
            a(f'ds_write_b32 v1, v70 offset:{RS}')
        for k in range(8): a(f'v_sub_f32 v{60+k}, v{60+k}, v68')
        for d in range(4): a(f'v_cvt_pk_bf16_f32 v{8+d}, v{60+2*d}, v{61+2*d}')
        for d in range(4):
            a(f'v_lshlrev_b32 v{60+2*d}, 16, v{8+d}')
            a(f'v_and_b32 v{61+2*d}, 0xffff0000, v{8+d}')
        for k in range(8): a(f'v_mul_f32 v{60+k}, v{60+k}, v69')
        for d in range(4): a(f'v_cvt_pk_bf16_f32 v{8+d}, v{60+2*d}, v{61+2*d}')
    layernorm(True)
    layernorm(False)
    for d in range(4):
        a(f'v_readlane_b32 s{66+d}, v{8+d}, s62')
        a(f'v_readlane_b32 s{70+d}, v{8+d}, s63')
    for c in range(4): a(f'v_mov_b32 v{80+c}, 0')
    a('v_mov_b32 v87, s35')
    a(f'''s_min_u32 s3, s32, 27
    s_mul_i32 s38, s3, {IS}
    s_add_u32 s38, s38, s34
    s_add_u32 s38, s38, {MIB}
    v_and_b32 v7, 1, v0
    v_lshrrev_b32 v18, 1, v0
    v_lshlrev_b32 v13, 6, v18
    v_lshl_add_u32 v13, v7, 4, v13
    v_add_u32 v13, s38, v13
    s_lshl_b32 s38, s32, 6
    s_add_u32 s38, s38, s34
    s_add_u32 s38, s38, {MIB}
    v_mul_u32_u24 v18, {IS}, v18
    v_lshl_add_u32 v18, v7, 4, v18
    v_add_u32 v18, s38, v18
    s_mul_i32 s38, s31, 224
    s_lshl_b32 s39, s3, 3
    s_add_u32 s38, s38, s39
    v_lshl_add_u32 v12, v7, 2, v6
    v_add_lshl_u32 v12, v12, s38, 1
    s_lshl_b32 s38, s38, 10
    s_add_u32 s38, s38, 4096
    v_lshlrev_b32 v14, 10, v6
    v_lshl_add_u32 v14, v5, 4, v14
    v_add_u32 v14, s38, v14
    s_lshr_b32 s38, s32, 1
    s_lshl_b32 s38, s38, 5
    s_and_b32 s39, s32, 1
    s_lshl_b32 s39, s39, 2
    s_add_u32 s38, s38, s39
    v_and_b32 v3, 3, v0
    v_lshl_add_u32 v15, v3, 3, v6
    v_add_lshl_u32 v15, v15, s38, 1''')
    W2 = 88
    a('v_mov_b32 v59, v12')
    a(f'''v_cmp_eq_u32 vcc, 1, v7
    v_mov_b32 v60, 0x0000ffff
    v_mov_b32 v61, 0xffff0000
    v_cndmask_b32 v60, v60, v61, vcc
    v_bfe_u32 v61, v0, 1, 3''')
    for r in range(8):
        a(f'v_cmp_eq_u32 vcc, {r}, v61')
        a(f'v_cndmask_b32 v{120+r}, 0, v60, vcc')
    a(f'''s_mul_i32 s39, s32, {IS}
    s_add_u32 s39, s39, s34
    s_add_u32 s39, s39, {MIB}
    v_lshrrev_b32 v8, 2, v5
    v_lshlrev_b32 v8, 1, v8
    v_and_b32 v9, 1, v6
    v_add_u32 v8, v8, v9
    v_lshrrev_b32 v9, 5, v0
    v_lshl_add_u32 v8, v9, 3, v8
    v_lshlrev_b32 v8, 6, v8
    v_lshl_add_u32 v8, v3, 4, v8
    v_add_u32 v8, s39, v8
    s_lshl_b32 s38, s32, 6
    s_add_u32 s38, s38, s34
    s_add_u32 s38, s38, {MIB}
    v_lshrrev_b32 v10, 2, v0
    v_mul_u32_u24 v10, {IS}, v10
    v_lshl_add_u32 v10, v3, 4, v10
    v_add_u32 v10, s38, v10
    v_add_u32 v9, {16*IS}, v10
    s_lshl_b32 s38, s32, 10
    s_add_u32 s38, s38, {H3M_}
    s_lshl_b32 s39, s31, 7
    s_add_u32 s39, s39, s38
    v_lshl_add_u32 v11, v6, 2, v3
    v_lshlrev_b32 v11, 3, v11
    v_bfe_u32 v12, v0, 2, 2
    v_lshl_add_u32 v12, v12, 7, v11
    v_add_u32 v12, s38, v12
    v_add_u32 v11, s39, v11
    v_mov_b32 v65, s35
    v_mov_b32 v55, 0
    s_movk_i32 s39, 7168
    s_xor_b32 s38, s35, 2
    v_mov_b32 v71, 0
    v_mov_b32 v72, 0
    v_mov_b32 v73, 0
    v_mov_b32 v74, 0
    v_mov_b32 v75, s38
    s_mov_b32 s64, -1
    s_mov_b32 s65, 0x0000ffff
    s_mov_b64 exec, s[64:65]
    v_mov_b32 v75, 0
    s_mov_b64 exec, -1''')
    ts(2)
    lds_wait4('M_vi', FW if MTRIG != 7 else FV)
    a('s_setprio 2')
    ml = ['global_load_dwordx4 v[52:55], v13, s[28:29] sc1']
    mil = ['global_load_dwordx4 v[68:71], v10, s[28:29] sc1', 's_and_b64 exec, exec, s[64:65]', 's_cbranch_execz L_MI_sk', 'global_load_dwordx4 v[72:75], v9, s[28:29] sc1', 'L_MI_sk:']
    a('s_mov_b64 exec, s[60:61]')
    for p in range(8):
        a(f'global_load_dwordx2 v[{20+4*p}:{21+4*p}], v4, s[16:17] nt')
        a(f'global_load_dwordx2 v[{22+4*p}:{23+4*p}], v4, s[16:17] offset:3584 nt')
        if p < 7: a('v_add_u32 v4, s39, v4')
    a(f'''s_mov_b64 exec, -1
    global_load_ushort v57, v15, s[4:5]
    global_load_ushort v58, v15, s[22:23]
    s_cmp_lt_u32 s32, 28
    s_cselect_b64 exec, -1, 1
    global_load_dword v128, v13, s[28:29] sc1
    global_load_ushort v56, v59, s[18:19]''')
    for cb in range(4):
        for i in range(2):
            r = W2 + 8*cb + 4*i
            a(f'global_load_dwordx4 v[{r}:{r+3}], v14, s[20:21] offset:{256*cb + 4096*i - 4096} nt')
    a('s_mov_b64 exec, -1')
    a(f'''L_M_fq:
    s_sleep 1
    ds_read_b128 v[132:135], v1 offset:{FQ}''')
    spin_guard()
    a(f'''s_waitcnt lgkmcnt(0)
    v_and_b32 v136, v132, v133
    v_and_b32 v137, v134, v135
    v_and_b32 v136, v136, v137
    v_cmp_eq_u32 vcc, 0, v136
    s_cbranch_vccnz L_M_fq
    v_or3_b32 v132, v132, v133, v134
    v_or_b32 v132, v132, v135
    v_readfirstlane_b32 s49, v132
    s_and_b32 s49, s49, 2''')
    for p in range(8):
        a(f's_waitcnt vmcnt({14 - 2*p + 12})')
        ra = 20 + 4*p; rb = ra + 2
        for d in range(2):
            a(f'v_perm_b32 v{60+2*d}, v{rb+d}, v{ra+d}, s40')
            a(f'v_perm_b32 v{61+2*d}, v{rb+d}, v{ra+d}, s41')
        for c in range(4): a(f'v_dot2c_f32_bf16 v{80+c}, s{66+p}, v{60+c}')
    pack(84, 80, 81, 82, 83)
    a('s_cmp_lg_u32 s49, 0\ns_mov_b64 exec, s[60:61]')
    store_mode('stmh', ['global_store_dwordx4 v18, v[84:87], s[28:29]'])
    a(f'''s_mov_b64 exec, -1
    s_mov_b32 s60, 0x000f000f
    s_mov_b32 s61, 0x000f000f
    s_xor_b32 s38, s35, 2
    v_mov_b32 v39, s38
    v_mov_b32 v43, s38''')
    ts(3)
    lds_wait1('M_fz', FZ)
    a('s_cmp_lt_u32 s32, 28\ns_cbranch_scc0 L_stm_done')
    npoll('MH', ml, [55], 1, reps=2)
    ts(4)
    a(f'''v_mov_b32 v132, v52
    v_mov_b32 v133, v53
    v_mov_b32 v134, v54''')
    unpack_to(135, 52)
    a('v_lshlrev_b32 v56, 16, v56')
    scatter4(132)
    ror('v_add_f32', 132, (8, 4, 2))
    rnd(132, 132)
    a('v_add_f32 v132, v132, v56')
    rnd(132, 132)
    a(f'''s_mov_b32 s38, {hex(f2u(0.044715))}
    s_mov_b32 s39, {hex(f2u(-2.0 * math.sqrt(2.0 / math.pi) * LOG2E))}
    v_mul_f32 v133, v132, v132
    v_fma_f32 v133, v133, s38, 1.0
    v_mul_f32 v133, v133, v132
    v_mul_f32 v133, s39, v133
    v_exp_f32 v133, v133
    v_add_f32 v133, 1.0, v133
    v_rcp_f32 v133, v133
    v_mul_f32 v132, v132, v133
    v_cvt_pk_bf16_f32 v132, v132, v132''')
    for k in range(5):
        if k < 4:
            hi, i = k >> 1, k & 1
            for r in range(4): a(f'v_and_b32_dpp v{20+8*hi+4*i+r}, v132, v{120+4*hi+r} quad_perm:[{i},{i},{i},{i}] row_mask:0xf bank_mask:0xf')
        if k >= 1:
            hi, i = (k-1) >> 1, (k-1) & 1
            for pp in range(2):
                d = 76 + 4*pp; r = W2 + 8*(2*pp+hi) + 4*i; A = 20 + 8*hi + 4*i
                c = '0' if k == 1 else f'v[{d}:{d+3}]'
                a(f'v_mfma_f32_16x16x32_bf16 v[{d}:{d+3}], v[{A}:{A+3}], v[{r}:{r+3}], {c}')
    pack(36, 76, 77, 78, 79); pack(40, 80, 81, 82, 83)
    a('s_cmp_lg_u32 s49, 0')
    store_mode('stm', ['global_store_dwordx4 v8, v[36:39], s[28:29]', 'global_store_dwordx4 v8, v[40:43], s[28:29] offset:1024'])
    ts(5)
    mclean = '''global_store_dwordx4 v10, v[60:63], s[28:29] sc1
    global_store_dwordx4 v10, v[60:63], s[28:29] offset:1024 sc1
    s_mov_b32 exec_hi, 0x00ffffff
    global_store_dwordx4 v18, v[60:63], s[28:29] sc1
    s_mov_b64 exec, -1''' if CLEAN else ''
    a('s_xor_b32 s35, s35, 2')
    npoll('MI', mil, [71, 75], PSL)
    a('s_xor_b32 s35, s35, 2')
    ts(6)
    sum2(60, 68, 72, 66)
    scatter4(60)
    ror('v_add_f32', 60, (8, 4), dst=64)
    a(f'''s_mov_b64 exec, s[60:61]
    global_store_dwordx2 v11, v[64:65], s[28:29] sc1
    s_mov_b64 exec, -1
    {mclean}
    s_and_b32 s38, s32, 7
    s_cmp_lg_u32 s38, s31
    s_cbranch_scc1 {'L_wb' if WB else 'L_fin'}
    v_add_u32 v13, {(H3S_-H3M_) & 0xffffffff}, v12''')
    if WB:
        sel = 's_add_u32 s38, s31, 1\ns_and_b32 s38, s38, 7\ns_cmp_lg_u32 s38, s32\ns_cbranch_scc1 L_fin\n' if WB in (1, 3) else ''
        tail.append(f'''L_wb:
        {sel}
        L_wb2:
        s_sleep 1
        ds_read_b32 v28, v1 offset:{FM if WB == 3 else FE}
        s_add_u32 s48, s48, 1
        s_cmp_gt_u32 s48, {MAXPOLL}
        s_cbranch_scc1 L_end
        s_waitcnt lgkmcnt(0)
        v_cmp_eq_u32 vcc, 0, v28
        s_cbranch_vccnz L_wb2
        {f's_sleep {WBD}' if WBD else ''}
        buffer_wbl2 sc1
        s_waitcnt vmcnt(0)
        s_branch L_fin''')
    hm = [f'global_load_dwordx2 v[{20+2*i}:{21+2*i}], v12, s[28:29] offset:{512*i} sc1' for i in range(2)]
    hs = [f'global_load_dwordx2 v[{24+2*i}:{25+2*i}], v13, s[28:29] offset:{512*i} sc1' for i in range(2)]
    a(f'''v_lshlrev_b32 v57, 16, v57
    v_lshlrev_b32 v58, 16, v58
    v_mov_b32 v21, 0
    v_mov_b32 v23, 0
    v_mov_b32 v25, 0
    v_mov_b32 v27, 0
    s_mov_b32 s39, {hex(f2u(-LOG2E))}''')
    if FEARLY:
        for x in hs: a(x)
    a(f'''L_M_fe:
    s_sleep 1
    ds_read_b32 v28, v1 offset:{FE}''')
    spin_guard()
    a(f'''s_waitcnt lgkmcnt(0)
    v_cmp_eq_u32 vcc, 0, v28
    s_cbranch_vccnz L_M_fe
    s_setprio 3''')
    if FDLY: a(f's_sleep {FDLY}')
    a('s_mov_b64 s[50:51], -1')
    a('L_HM_l:')
    a('s_wqm_b64 exec, s[50:51]')
    for x in hm + hs: a(x)
    a(f'''s_mov_b64 exec, -1
    s_add_u32 s48, s48, 1
    s_cmp_gt_u32 s48, {MAXPOLL}
    s_cbranch_scc1 L_end
    s_sleep 1
    s_waitcnt vmcnt(32)
    v_cmp_ne_u32 s[50:51], s35, v25
    v_cmp_ne_u32 s[52:53], s35, v27
    v_cmp_ne_u32 s[54:55], s35, v21
    v_cmp_ne_u32 s[56:57], s35, v23
    s_or_b64 s[50:51], s[50:51], s[52:53]
    s_or_b64 s[50:51], s[50:51], s[54:55]
    s_or_b64 s[50:51], s[50:51], s[56:57]
    s_or_b64 s[54:55], s[54:55], s[56:57]
    s_cbranch_scc1 L_HM_l''')
    ts(7)
    for x in hs: a(x)
    a('v_add_f32 v30, v20, v22')
    ror('v_add_f32', 30, (8, 4))
    rnd(30, 30)
    a('v_add_f32 v30, v30, v58')
    rnd(30, 30)
    a(f'''v_mul_f32 v31, s39, v30
    v_exp_f32 v31, v31
    v_add_f32 v31, 1.0, v31
    v_rcp_f32 v31, v31
    v_mul_f32 v30, v30, v31''')
    rnd(30, 30)
    a('s_branch L_HS_c')
    npoll('HS', hs, [25, 27], 1, init=False)
    ts(8)
    a('v_add_f32 v32, v24, v26')
    ror('v_add_f32', 32, (8, 4))
    rnd(32, 32)
    a('v_mul_f32 v32, v32, v30')
    rnd(32, 32)
    a(f'''v_add_f32 v32, v32, v57
    v_cvt_pk_bf16_f32 v32, v32, v32
    s_mov_b64 exec, s[60:61]
    global_store_short v15, v32, s[24:25]{' sc1' if OSC else ''}
    s_cmp_lg_u32 s2, 0
    s_cbranch_scc1 L_fin
    s_mov_b64 exec, 1
    v_mov_b32 v4, s35
    global_store_dword v1, v4, s[28:29] sc1
    s_branch L_fin''')

    att[0] = True
    a('L_A2:')
    for i, e in enumerate(PPOS[:-1]):
        waitfor(('P1', e))
        if i == 0: ts(1)
        a(f'''v_cmp_ne_u32 s[50:51], s35, v{PB+3}
        v_cmp_ne_u32 s[52:53], s35, v{PB+7}
        s_or_b64 s[50:51], s[50:51], s[52:53]
        s_cbranch_scc0 L_P_ok''')
    sw = f'''s_cmp_eq_u32 s48, 16
    s_cselect_b32 s38, {H1S-H1F}, 0
    v_add_u32 v12, s38, v12''' if H1FAST else ''
    poll('P', pl, [PB+3, PB+7], len(issued) - 1 - issued.index(('P1', PPOS[-1])), sw)
    a('L_P_ok:')
    ts(2)
    a(f'''v_bfe_u32 v{T0}, v{PB}, 8, 3
    v_bfe_u32 v{T0+1}, v{PB+4}, 8, 3
    v_cmp_ne_u32 s[50:51], s33, v{T0}
    v_cmp_ne_u32 s[52:53], s33, v{T0+1}''')
    sum2(PR, PB, PB+4, PR+4)
    a('s_or_b64 s[50:51], s[50:51], s[52:53]')
    a('s_cselect_b32 s49, 3, 1')
    a(f'''v_mov_b32 v{T0}, s49
    v_permlane32_swap_b32 v{PR}, v{PR+2}
    v_permlane32_swap_b32 v{PR+1}, v{PR+3}
    v_add_f32 v{PR}, v{PR}, v{PR+2}
    v_add_f32 v{PR+1}, v{PR+1}, v{PR+3}
    v_cvt_pk_bf16_f32 v{PR}, v{PR}, v{PR+1}
    ds_write_b32 v17, v{PR}
    ds_write_b32 v16, v{T0} offset:{FQ}
    L_q_spin:
    ds_read_b128 v[{PR}:{PR+3}], v1 offset:{FQ}
    ds_read_b32 v{PR+4}, v1 offset:{RS}''')
    for t in range(4): a(f'ds_read_b128 v[{QF+4*t}:{QF+4*t+3}], v18 offset:{64*t}')
    spin_guard()
    lgkm(4)
    a(f'''v_and_b32 v{T0}, v{PR}, v{PR+1}
    v_and_b32 v{T0+1}, v{PR+2}, v{PR+3}
    v_and_b32 v{T0}, v{T0}, v{PR+4}
    v_and_b32 v{T0}, v{T0}, v{T0+1}
    v_and_b32 v{T0}, 1, v{T0}
    v_cmp_eq_u32 vcc, 0, v{T0}
    s_cbranch_vccnz L_q_spin''')
    for t in range(4):
        lgkm(3 - t)
        for b in range(2):
            c = '0' if t == 0 else f'v[{DS+4*b}:{DS+4*b+3}]'
            k = KR + 16*b + 4*t
            a(f'v_mfma_f32_16x16x32_bf16 v[{DS+4*b}:{DS+4*b+3}], v[{k}:{k+3}], v[{QF+4*t}:{QF+4*t+3}], {c}')
        if t == 0:
            a(f'''v_or3_b32 v{T0+2}, v{PR}, v{PR+1}, v{PR+2}
            v_or_b32 v{T0+2}, v{T0+2}, v{PR+3}''')
        if t == 1:
            a(f'v_readfirstlane_b32 s49, v{T0+2}')
    a('s_and_b32 s49, s49, 2')
    if WOPOS == 1:
        for n in range(16, 20): issue(('D', n), D[n])
    a(f'''v_max3_f32 v{T0}, v{DS}, v{DS+1}, v{DS+2}
    v_max3_f32 v{T0+1}, v{DS+3}, v{DS+4}, v{DS+5}
    v_max3_f32 v{T0}, v{T0}, v{DS+6}, v{DS+7}
    v_max_f32 v{T0}, v{T0}, v{T0+1}''')
    allrows('v_max_f32', T0, T0+1)
    a(f'v_mul_f32 v{T0}, v{T0}, v{PR+4}')
    for k in range(8): a(f'v_fma_f32 v{DS+k}, v{DS+k}, v{PR+4}, -v{T0}')
    for k in range(8): a(f'v_exp_f32 v{DS+k}, v{DS+k}')
    a(f'''v_add_f32 v{T0+1}, v{DS}, v{DS+1}
    v_add_f32 v{T0+2}, v{DS+2}, v{DS+3}
    v_add_f32 v{T0+3}, v{DS+4}, v{DS+5}
    v_add_f32 v{T0+1}, v{T0+1}, v{T0+2}
    v_add_f32 v{T0+2}, v{DS+6}, v{DS+7}
    v_add_f32 v{T0+1}, v{T0+1}, v{T0+3}
    v_add_f32 v{T0+1}, v{T0+1}, v{T0+2}''')
    allrows('v_add_f32', T0+1, T0+2)
    a(f'ds_write_b64 v19, v[{T0}:{T0+1}] offset:{MLX}')
    for k in range(4): a(f'v_cvt_pk_bf16_f32 v{PR+k}, v{DS+2*k}, v{DS+2*k+1}')
    for j in range(4):
        for k in range(4): a(f'v_cndmask_b32 v{QF+4*j+k}, 0, v{PR+k}, s[{66+2*j}:{67+2*j}]')
    ts(3)
    VT = KR
    def vperm(pr):
        ia = 2*pr; ib = ia + 1
        for d in range(4):
            a(f'v_perm_b32 v{VT + 4*(2*d) + pr}, v{VR+4*ib+d}, v{VR+4*ia+d}, s40')
            a(f'v_perm_b32 v{VT + 4*(2*d+1) + pr}, v{VR+4*ib+d}, v{VR+4*ia+d}, s41')
    FR = T0 + 12
    def mlx_read():
        a(f'''ds_read_b128 v[{T0}:{T0+3}], v24 offset:{MLX}
        ds_read_b128 v[{T0+4}:{T0+7}], v24 offset:{MLX+16}''')
    def mlx_check(nyoung):
        a('s_branch L_ml_chk')
        a('L_ml_spin:')
        mlx_read()
        spin_guard()
        a('s_waitcnt lgkmcnt(0)')
        a('L_ml_chk:')
        lgkm(nyoung)
        a(f'''v_min_u32 v{T0+8}, v{T0+1}, v{T0+3}
        v_min3_u32 v{T0+8}, v{T0+8}, v{T0+5}, v{T0+7}
        v_max3_f32 v{PR+4}, v{T0}, v{T0+2}, v{T0+4}
        v_cmp_eq_u32 vcc, 0, v{T0+8}
        v_max_f32 v{PR+4}, v{PR+4}, v{T0+6}
        s_cbranch_vccnz L_ml_spin''')
    def factors():
        for k in range(4): a(f'v_sub_f32 v{FR+k}, v{T0+2*k}, v{PR+4}')
        for k in range(4): a(f'v_exp_f32 v{FR+k}, v{FR+k}')
        a(f'v_mul_f32 v{PR+5}, v{FR}, v{T0+1}')
        for k in range(1, 4): a(f'v_fmac_f32 v{PR+5}, v{FR+k}, v{T0+2*k+1}')
    def mlstore():
        a('s_cmp_lg_u32 s49, 0')
        a('s_mov_b64 exec, 1')
        store_mode('stml', [f'global_store_dwordx4 v13, v[{PR+4}:{PR+7}], s[28:29]'])
        issued.append('MLst')
        a('s_mov_b64 exec, -1')
        if ZW < 0: a(f'ds_write_b32 v16, v25 offset:{FM}')
    a(f'v_mov_b32 v{PR+7}, s35')
    if MLEARLY:
        mlx_read()
        waitfor(('D', 9))
        vperm(0)
        mlx_check(0)
        factors()
        mlstore()
    if WOPOS == 2:
        for n in range(16, 20): issue(('D', n), D[n])
    if WOPOS == 3:
        a('s_bitcmp1_b32 s32, 0\ns_cbranch_scc1 L_wo_skip')
        for n in range(16, 20): issue(('D', n), D[n])
        a('L_wo_back:')
        tail.append('L_wo_skip:\ns_mov_b64 exec, 1\n' + '\n'.join(['global_load_dword v26, v12, s[28:29] sc1'] * 4) + '\ns_mov_b64 exec, -1\ns_branch L_wo_back')
    for pr in range(1, 3):
        waitfor(('D', 8 + 2*pr + 1))
        vperm(pr)
    a(f'v_mov_b32 v{PR+3}, s35')
    waitfor(('D', 15))
    ts(4)
    def p3(j): a(f'v_perm_b32 v{VT + 4*j + 3}, v{VR+28+(j>>1)}, v{VR+24+(j>>1)}, s{40+(j&1)}')
    def pv(j):
        h = j >> 2
        c = '0' if (j & 3) == 0 else f'v[{DS+4*h}:{DS+4*h+3}]'
        a(f'v_mfma_f32_16x16x32_bf16 v[{DS+4*h}:{DS+4*h+3}], v[{QF+4*(j&3)}:{QF+4*(j&3)+3}], v[{VT+4*j}:{VT+4*j+3}], {c}')
    p3(0); p3(1); p3(2); pv(0); p3(3); pv(1); p3(4); pv(2); p3(5); pv(3); p3(6); pv(4); p3(7); pv(5); pv(6); pv(7)
    a(f'''ds_write_b128 v21, v[{DS}:{DS+3}]
    ds_write_b128 v21, v[{DS+4}:{DS+7}] offset:{OH}
    ds_write_b32 v16, v25 offset:{FO}
    L_o_spin:
    ds_read_b128 v[{T0+8}:{T0+11}], v1 offset:{FO}''')
    for wp_ in range(4): a(f'ds_read_b128 v[{VR+4*wp_}:{VR+4*wp_+3}], v22 offset:{OW*wp_}')
    spin_guard()
    lgkm(4)
    a(f'''v_and_b32 v{T0+8}, v{T0+8}, v{T0+9}
    v_and_b32 v{T0+10}, v{T0+10}, v{T0+11}
    v_and_b32 v{T0+8}, v{T0+8}, v{T0+10}
    v_cmp_eq_u32 vcc, 0, v{T0+8}
    s_cbranch_vccnz L_o_spin''')
    lgkm(3)
    for k in range(4): a(f'v_mul_f32 v{VR+k}, v{VR+k}, v{FR}')
    for wp_ in range(1, 4):
        lgkm(3 - wp_)
        for k in range(4): a(f'v_fmac_f32 v{VR+k}, v{VR+4*wp_+k}, v{FR+wp_}')
    a('s_cmp_lg_u32 s49, 0')
    a('s_mov_b32 exec_hi, 0')
    pack(PR, VR, VR+1, VR+2, VR+3)
    store_mode('st2', [f'global_store_dwordx4 v10, v[{PR}:{PR+3}], s[28:29]'])
    a('s_mov_b64 exec, -1')
    ts(5)
    if WOPOS == 3:
        a('s_bitcmp1_b32 s32, 0\ns_cbranch_scc0 L_wo_have')
        for n in range(16, 20): a(D[n])
        a('L_wo_have:')
    ewb = '''s_add_u32 s38, s31, 2
    s_and_b32 s38, s38, 7
    s_lshl_b32 s38, s38, 2
    s_add_u32 s38, s38, 3
    s_lshl_b32 s39, s32, 2
    s_add_u32 s39, s39, s47
    s_cmp_lg_u32 s38, s39
    s_cbranch_scc1 L_newb
    buffer_wbl2 sc1
    L_newb:'''
    if ZW >= 0:
        a(f's_waitcnt vmcnt({(4 if WOPOS == 2 else 5) - ZW})')
        a(f'ds_write_b32 v1, v25 offset:{FZ}')
    a(f'''v_lshlrev_b32 v15, 4, v6
    v_xor_b32 v{PR+3}, 2, v{PR+3}
    s_waitcnt vmcnt({ {2: 1, 3: 0}.get(WOPOS, 2)})''')
    if WBE == 1: a(ewb)
    ts(6)
    a(f'''L_t_spin:
    ds_read_b32 v{T0+4}, v1 offset:{FT}
    ds_read_b128 v[{T0}:{T0+3}], v15 offset:{O16}''')
    spin_guard()
    a(f'''s_waitcnt lgkmcnt(0)
    v_cmp_eq_u32 vcc, 0, v{T0+4}''')
    AT = QF; DO = DS
    for r in range(4): a(f'v_and_b32 v{AT+r}, v{T0}, v{28+r}')
    a('s_cbranch_vccnz L_t_spin')
    ts(7)
    for i in range(1, 5):
        if i < 4:
            for r in range(4): a(f'v_and_b32 v{AT+4*i+r}, v{T0+i}, v{28+r}')
        c = '0' if i == 1 else f'v[{DO}:{DO+3}]'
        a(f'v_mfma_f32_16x16x32_bf16 v[{DO}:{DO+3}], v[{AT+4*(i-1)}:{AT+4*(i-1)+3}], v[{WOR+4*(i-1)}:{WOR+4*(i-1)+3}], {c}')
    if SWAIT: a(f'ds_write_b32 v1, v25 offset:{FW}')
    a('s_cmp_lg_u32 s49, 0')
    a('s_mov_b32 exec_hi, 0')
    pack(PR, DO, DO+1, DO+2, DO+3)
    store_mode('st3', [f'global_store_dwordx4 v11, v[{PR}:{PR+3}], s[28:29]'])
    ts(8)
    if CLEAN:
        a(f'''s_mul_i32 s38, s32, {IS}
        s_add_u32 s38, s38, s34
        s_lshl_b32 s39, s47, 9
        s_add_u32 s38, s38, s39
        s_add_u32 s38, s38, {OIB}
        v_add_u32 v15, s38, v2
        {'s_sleep 6' if CLEAN == 2 else ''}
        global_store_dwordx4 v15, v[{DS}:{DS+3}], s[28:29] sc1''')
    a('L_fin:')
    if DIAG:
        if DIAGG >= 0: a(f's_cmp_lg_u32 s31, {DIAGG}\ns_cbranch_scc1 L_end')
        a(f'''L_dg:
        s_memrealtime s[78:79]
        s_waitcnt lgkmcnt(0)
        s_sub_u32 s78, s78, s76
        s_cmp_lt_u32 s78, {DIAG}
        s_cbranch_scc1 L_dg''')
    if DBG:
        a('''s_memrealtime s[100:101]
        s_mov_b64 exec, 1
        v_mov_b32 v1, 0
        s_waitcnt lgkmcnt(0)
        s_not_b32 s38, s76
        v_mov_b32 v2, s38
        global_atomic_umax v1, v2, s[26:27] offset:60
        v_mov_b32 v2, s76
        global_atomic_umax v1, v2, s[26:27] offset:56
        v_mov_b32 v2, s100
        global_atomic_umax v1, v2, s[26:27] offset:52
        s_cmp_lt_u32 s30, 2
        s_cbranch_scc1 L_dbg0''')
        for k in range(1, 9):
            a(f'v_mov_b32 v2, s{76+2*k}')
            a(f'global_atomic_umax v1, v2, s[26:27] offset:{4*(k-1)}')
        a('s_endpgm')
        a('L_dbg0:')
        a('s_cmp_eq_u32 s30, 1\ns_cbranch_scc1 L_end')
        for i, k in enumerate((1, 2, 3, 5)):
            a(f'v_mov_b32 v2, s{76+2*k}')
            a(f'global_atomic_umax v1, v2, s[26:27] offset:{4*(8+i)}')
    elif TS:
        att[0] = False
        if not TS2: ts(12)
        a(f'''s_mul_i32 s38, s2, 6
        s_add_u32 s38, s38, s30
        s_lshl_b32 s38, s38, 7
        s_add_u32 s38, s38, {TSB}
        s_mov_b64 exec, 1
        v_mov_b32 v1, s38
        s_waitcnt lgkmcnt(0)''')
        for k in range(13):
            a(f'v_mov_b32 v2, s{76+2*k}')
            a(f'global_store_dword v1, v2, s[28:29] offset:{4*k}')
        a('v_mov_b32 v2, s48')
        a(f'global_store_dword v1, v2, s[28:29] offset:64')
    a('s_endpgm')
    for t in tail: a(t)
    a('L_end:')
    a('s_endpgm')
    a.raw(f'''.section .rodata,"a"
.p2align 6
.amdhsa_kernel {KN}_kernel
  .amdhsa_next_free_vgpr 168
  .amdhsa_next_free_sgpr 102
  .amdhsa_accum_offset 168
  .amdhsa_group_segment_fixed_size 0
  .amdhsa_kernarg_size 104
  .amdhsa_user_sgpr_count 2
  .amdhsa_user_sgpr_kernarg_segment_ptr 1
  .amdhsa_system_sgpr_workgroup_id_x 1
.end_amdhsa_kernel''')
    return a.text()

if __name__ == '__main__':
    for spec in sys.argv[1:]:
        name, kw = spec.split('=', 1)
        kw = eval('dict(' + kw + ')')
        open(f'exp/{name}.s', 'w').write(gen(**kw))
```

```python
import sys, struct, math
sys.path.insert(0, 'gen')
from asmlib import Asm
KN = 'recurrent_scan__sliding_block_cached__mixer_channel_mlp__decode'
def f2u(f): return struct.unpack('<I', struct.pack('<f', f))[0]
GB0 = 0x10000; GA = 0x4C000
H1F = 0; H1S = 0x2000; MLB = 0x4000; MHB = 0x5000; MHS = 896; MH2 = 0x45000 - 0x5000
OIB = 0x10000; SIB = 0x22000; MIB = 0x34000; IS = 2176
H3S_ = 0x280000; H3M_ = 0x288000
TSB = 0x800000
QL = 0; QS = 320; FQ = 1280; RS = 1296; FV = 1312; FO = 1328; MLX = 1344; FT = 1472; FE = 1476; FZ = 1480; FM = 1488; FW = 1504; O16 = 1536; OL = 2048; OH = 1152; OW = 2304; KL = 16384; LDSZ = 16384 + 32768
LOG2E = 1.4426950408889634
MAXPOLL = 400000
DOC = """;
; Workgroups hand data over through d_ws in 16-byte {3 data words, tag} granules; tag = f(epoch word found in d_ws).
; hand-offs between groups are always write-through; all polls are sc1 loads.
; One wave per group writes the L2 back once the group's hand-offs are consumed, so little is left dirty at kernel end."""

def gen(TS=False, TS2=False, WIN=6, PA=4, H1FAST=True, PF=True, SPREAD=True, WNT=False, MLEARLY=True, DBG=False, SLP=2, LATEF=True, PE=1, BURST=True, STREAM=0, NOP=False, ROT='g', NST=15, PSL=1, MWAIT=True, PPOS=(1, 4, 7), SNT=False, TOUCH=0, DIAG=0, DIAGG=-1, WOPOS=2, FUSE=True, TIGHT=True, FEARLY=False, QMAP=0, ELATE=True, QROW=0, XPOS=15, SPF=False, MTRIG=7, W2LATE=False, QREP=2, ZW=0, MZ=True, HWARM=False, BAL=False, FDLY=0, WB=1, OSC=True, CLEAN=0, WBD=0, WBE=0):
    a = Asm()
    hdr = open('cdna_kernels/' + KN + '.s.ref').read().split('\n')
    for l in hdr:
        if l.startswith('; @launch'): break
        a.raw(l)
    a.raw(f'; @launch grid=(256,1,1) block=(384,1,1) lds={LDSZ}')
    a.raw(DOC)
    a.raw('.amdgcn_target "amdgcn-amd-amdhsa--gfx950"\n.text')
    a.raw(f'.globl {KN}_kernel\n.p2align 8\n.type {KN}_kernel,@function\n{KN}_kernel:')
    att = [False]
    def ts2(k):
        if TS2 and k <= 12: a(f's_memrealtime s[{76+2*k}:{77+2*k}]')
    def ts(k):
        if TS2 and att[0]: return
        if TS: a(f's_memrealtime s[{76+2*k}:{77+2*k}]')
    def lgkm(n): a(f's_waitcnt lgkmcnt({0 if TS else n})')
    def wave_sum(vs):
        for sh in (1, 2, 4, 8):
            for x in vs: a(f'v_add_f32_dpp v{x}, v{x}, v{x} row_shr:{sh} row_mask:0xf bank_mask:0xf bound_ctrl:0')
        for x in vs: a(f'v_add_f32_dpp v{x}, v{x}, v{x} row_bcast:15 row_mask:0xa bank_mask:0xf')
        for x in vs: a(f'v_add_f32_dpp v{x}, v{x}, v{x} row_bcast:31 row_mask:0xc bank_mask:0xf')
    def ror(op, x, shs, dst=None):
        for i, sh in enumerate(shs):
            d = dst if (dst is not None and i == len(shs) - 1) else x
            a(f'{op}_dpp v{d}, v{x}, v{x} row_ror:{sh} row_mask:0xf bank_mask:0xf')
    def scatter4(r):
        a(f'''v_permlane32_swap_b32 v{r}, v{r+2}
        v_permlane32_swap_b32 v{r+1}, v{r+3}
        v_add_f32 v{r}, v{r}, v{r+2}
        v_add_f32 v{r+1}, v{r+1}, v{r+3}
        v_permlane16_swap_b32 v{r}, v{r+1}
        v_add_f32 v{r}, v{r}, v{r+1}''')
    def allrows(op, x, t):
        a(f'''v_mov_b32 v{t}, v{x}
        v_permlane32_swap_b32 v{x}, v{t}
        {op} v{x}, v{x}, v{t}
        v_mov_b32 v{t}, v{x}
        v_permlane16_swap_b32 v{x}, v{t}
        {op} v{x}, v{x}, v{t}''')
    def rnd(dst, src):
        a(f'v_cvt_pk_bf16_f32 v{dst}, v{src}, v{src}')
        a(f'v_and_b32 v{dst}, 0xffff0000, v{dst}')
    def mktag(ve):
        a(f'''v_readfirstlane_b32 s35, v{ve}
        s_add_u32 s35, s35, 0x9E3779B9
        s_or_b32 s35, s35, 1''')
    def pack(d, v0, v1, v2, v3):
        a(f'v_perm_b32 v{d}, v{v0}, v{v3}, s42')
        a(f'v_perm_b32 v{d+1}, v{v1}, v{v3}, s43')
        a(f'v_perm_b32 v{d+2}, v{v2}, v{v3}, s44')
    def unpack3(d):
        a(f'v_perm_b32 v{d+3}, v{d+1}, v{d}, s45')
        a(f'v_perm_b32 v{d+3}, v{d+2}, v{d+3}, s46')
    def poll(name, loads, tagregs, first_wait, pre='', slp=0):
        a(f's_waitcnt vmcnt({first_wait})')
        a(f's_branch L_{name}_chk')
        a(f'L_{name}_retry:')
        if slp: a(f's_sleep {slp}')
        a(f'''s_add_u32 s48, s48, 1
        {pre}
        s_wqm_b64 exec, s[50:51]''')
        for x in loads: a(x)
        a(f'''s_mov_b64 exec, -1
        s_cmp_gt_u32 s48, {MAXPOLL}
        s_cbranch_scc1 L_end
        s_waitcnt vmcnt(0)
        L_{name}_chk:''')
        for i, r in enumerate(tagregs):
            a(f'v_cmp_ne_u32 s[{50+2*i}:{51+2*i}], s35, v{r}')
        if len(tagregs) == 1: a('s_cmp_lg_u64 s[50:51], 0')
        else:
            for i in range(1, len(tagregs)): a(f's_or_b64 s[50:51], s[50:51], s[{50+2*i}:{51+2*i}]')
        a(f's_cbranch_scc1 L_{name}_retry')
    def npoll(name, loads, tagregs, slp, init=True, pre='', reps=1, masktags=()):
        if init: a('s_mov_b64 s[50:51], -1')
        a(f'L_{name}_l:')
        if pre: a(pre)
        a('s_wqm_b64 exec, s[50:51]')
        for x in loads: a(x)
        a(f'''s_mov_b64 exec, -1
        s_add_u32 s48, s48, 1
        s_cmp_gt_u32 s48, {MAXPOLL}
        s_cbranch_scc1 L_end
        s_waitcnt vmcnt(56)''')
        for rp in range(reps):
            if slp: a(f's_sleep {slp}')
            if rp == reps - 1:
                a(f'L_{name}_c:')
                for i, r in enumerate(masktags):
                    a(f'v_cmp_ne_u32 s[{54+2*i}:{55+2*i}], s35, v{r}')
            for i, r in enumerate(tagregs):
                a(f'v_cmp_ne_u32 s[{50+2*i}:{51+2*i}], s35, v{r}')
            for i in range(1, len(tagregs)): a(f's_or_b64 s[50:51], s[50:51], s[{50+2*i}:{51+2*i}]')
            if len(tagregs) == 1: a('s_cmp_lg_u64 s[50:51], 0')
            if rp < reps - 1 or masktags: a(f's_cbranch_scc0 L_{name}_x')
            else: a(f's_cbranch_scc1 L_{name}_l')
        if masktags:
            for i in range(len(masktags)): a(f's_or_b64 s[50:51], s[50:51], s[{54+2*i}:{55+2*i}]')
            a(f's_branch L_{name}_l')
        a(f'L_{name}_x:')
    def unpack_to(t, d):
        a(f'v_perm_b32 v{t}, v{d+1}, v{d}, s45')
        a(f'v_perm_b32 v{t}, v{d+2}, v{t}, s46')
    def sum2(dst, r0, r1, t):
        unpack_to(dst+3, r0); unpack_to(t, r1)
        for k in range(3): a(f'v_add_f32 v{dst+k}, v{r0+k}, v{r1+k}')
        a(f'v_add_f32 v{dst+3}, v{dst+3}, v{t}')
    tail = []
    def store_mode(name, ins):
        a(f's_cbranch_scc1 L_{name}_slow')
        for x in ins: a(x)
        a(f'L_{name}_done:')
        tail.append(f'L_{name}_slow:\n' + '\n'.join(x + ' sc1' for x in ins) + f'\ns_branch L_{name}_done')
    consts = '''s_mov_b32 s40, 0x05040100
        s_mov_b32 s41, 0x07060302
        s_mov_b32 s42, 0x07060501
        s_mov_b32 s43, 0x07060502
        s_mov_b32 s44, 0x07060503
        s_mov_b32 s45, 0x0c04000c
        s_mov_b32 s46, 0x04020100
        s_getreg_b32 s33, hwreg(HW_REG_XCC_ID)
        s_and_b32 s33, s33, 7'''
    spin = [0]
    def spin_guard():
        a(f'''s_add_u32 s48, s48, 1
        s_cmp_gt_u32 s48, {MAXPOLL}
        s_cbranch_scc1 L_end''')

    ts(0)
    if DIAG: a('s_memrealtime s[76:77]')
    a(f'''s_load_dwordx16 s[4:19], s[0:1], 0
    s_load_dwordx8 s[20:27], s[0:1], 64
    s_load_dwordx2 s[28:29], s[0:1], 96
    s_cmp_ge_u32 s2, 256
    s_cbranch_scc1 L_end
    v_lshrrev_b32 v1, 6, v0
    v_and_b32 v0, 63, v0
    s_getpc_b64 s[36:37]
    L_pc:
    v_readfirstlane_b32 s30, v1
    s_and_b32 s31, s2, 7
    s_lshr_b32 s32, s2, 3
    s_mul_i32 s38, s32, 6
    s_add_u32 s38, s38, s30
    s_lshl_b32 s38, s38, 7
    v_mov_b32 v1, s38
    s_cmp_gt_u32 s38, L_end-L_pc
    s_cbranch_scc1 L_nopf
    s_mov_b64 exec, 1
    {'global_load_dword v26, v1, s[36:37]' if PF and not SPF else 's_nop 0'}
    s_mov_b64 exec, -1
    L_nopf:
    s_mul_i32 s34, s31, {GA}
    s_add_u32 s34, s34, {GB0}
    s_mov_b32 s48, 0
    v_mov_b32 v1, 0
    v_lshlrev_b32 v2, 4, v0
    v_and_b32 v5, 15, v0
    v_lshrrev_b32 v6, 4, v0
    s_cmp_eq_u32 s30, 1
    s_cbranch_scc1 L_M
    s_cmp_gt_u32 s30, 1
    s_cbranch_scc1 L_A''')
    qm = {0: 's_mov_b32 s74, s32', 1: 's_and_b32 s74, s32, 7\ns_lshl_b32 s74, s74, 2\ns_lshr_b32 s38, s32, 3\ns_add_u32 s74, s74, s38', 2: 's_and_b32 s38, s32, 12\ns_cmp_eq_u32 s38, 12\ns_cselect_b32 s38, 16, 0\ns_xor_b32 s74, s32, s38'}[2 if BAL else QMAP]
    a(f'''s_setprio 3
    {qm}
    v_and_b32 v4, 1, v0
    v_lshl_add_u32 v3, v6, 1, v4
    v_lshlrev_b32 v3, {7 if QROW else 5}, v3
    s_and_b32 s38, s74, 3
    s_lshl_b32 s39, s38, {5 if QROW else 8}
    v_add_u32 v3, s39, v3
    v_lshrrev_b32 v4, 3, v0
    v_lshlrev_b32 v4, {19 if QROW else 17}, v4
    v_and_b32 v7, 7, v0
    v_lshl_add_u32 v4, v7, 4, v4
    s_lshl_b32 s39, s38, {17 if QROW else 20}
    s_lshl_b32 s38, s31, 10
    s_add_u32 s39, s39, s38
    s_lshr_b32 s38, s74, 2
    s_lshl_b32 s38, s38, 7
    s_add_u32 s39, s39, s38
    v_add_u32 v4, s39, v4
    s_mov_b32 s38, 0x3f803f80
    s_movk_i32 s39, 0x2000''')
    for r in range(8, 16): a(f'v_mov_b32 v{r}, s38')
    a(f'''s_mov_b32 s60, 0x00030003
    s_mov_b32 s61, 0x00030003
    s_waitcnt lgkmcnt(0)''')
    for i in range(16):
        a(f'global_load_dwordx4 v[{20+4*i}:{23+4*i}], v4, s[10:11] nt')
        if i < 15: a('v_add_u32 v4, s39, v4')
        if i == XPOS:
            a('''s_mov_b64 exec, s[60:61]
            global_load_dwordx4 v[8:11], v3, s[4:5]
            global_load_dwordx4 v[12:15], v3, s[4:5] offset:16
            s_mov_b64 exec, -1
            global_load_dwordx4 v[148:151], v2, s[4:5]
            s_mov_b64 exec, 1
            global_load_dword v16, v1, s[28:29] sc1
            s_mov_b64 exec, -1''')
    a('s_barrier')
    a('s_branch L_Q2')
    a(f'''L_M:
    s_mul_i32 s38, s32, {16*3584}
    s_mul_i32 s39, s31, 448
    s_add_u32 s38, s38, s39
    v_lshl_add_u32 v4, v0, 3, s38
    s_movk_i32 s39, 7168
    s_mov_b32 s60, -1
    s_mov_b32 s61, 0x00ffffff
    v_lshlrev_b32 v3, 2, v0
    ds_write_b32 v3, v1 offset:{FQ}
    s_waitcnt lgkmcnt(0)
    {'' if ELATE else 'global_load_dwordx4 v[8:11], v2, s[4:5]'}
    s_mov_b64 exec, 1
    {'' if ELATE else 'global_load_dword v16, v1, s[28:29] sc1'}
    s_barrier
    {'global_load_dword v16, v1, s[28:29] sc1' if ELATE else ''}
    s_mov_b64 exec, -1
    {'global_load_dwordx4 v[8:11], v2, s[4:5]' if ELATE else ''}
    s_branch L_M2''')
    KR = 32; VR = 64; PR = 96; WOR = 104; QF = 120; DS = 136; T0 = 144; KS = 50; PB = 160
    rot = {'s2w': 's_lshl_b32 s3, s47, 1\ns_add_u32 s3, s3, s32', 'g': 's_mov_b32 s3, s31', 'g2w': 's_lshl_b32 s3, s47, 1\ns_add_u32 s3, s3, s31',
           '0': 's_mov_b32 s3, 0', '2w': 's_lshl_b32 s3, s47, 1', 's': 's_mov_b32 s3, s32', 'sh': 's_lshr_b32 s3, s32, 2\ns_add_u32 s3, s3, s31'}[ROT]
    a(f'''L_A:
    s_sub_u32 s47, s30, 2
    s_lshl_b32 s38, s31, 24
    s_lshl_b32 s39, s32, 15
    s_add_u32 s38, s38, s39
    s_lshl_b32 s39, s47, 10
    s_add_u32 s38, s38, s39
    s_add_u32 s38, s38, {0xF00000}
    s_lshl_b32 s39, s47, 13
    s_add_u32 s39, s39, {KL}
    s_mov_b32 m0, s39
    {rot}
    v_xor_b32 v7, v5, v6
    v_lshlrev_b32 v7, 4, v7
    v_lshl_add_u32 v{T0}, v6, 8, v7
    v_add_u32 v{T0}, s38, v{T0}
    v_xor_b32 v{T0+1}, 64, v{T0}
    v_xor_b32 v{T0+2}, 0x80, v{T0}
    v_xor_b32 v{T0+3}, 0xc0, v{T0}
    v_lshl_add_u32 v{T0+4}, v5, 8, v7
    v_add_u32 v{T0+4}, s39, v{T0+4}
    v_add_u32 v4, s3, v6
    v_and_b32 v4, 7, v4
    v_lshlrev_b32 v4, 12, v4
    v_lshl_add_u32 v4, v5, 4, v4
    v_add_u32 v4, s38, v4
    v_xor_b32 v27, 0x4000, v4
    s_waitcnt lgkmcnt(0)
    s_mov_b64 exec, 1
    {'' if ELATE else 'global_load_dword v23, v1, s[28:29] sc1'}
    s_mov_b64 exec, -1''')
    if TOUCH:
        a(f'''s_mov_b64 exec, 1
        s_cmp_eq_u32 s47, 1
        s_cbranch_scc1 L_tch1
        s_cmp_eq_u32 s47, 2
        s_cbranch_scc1 L_tch2
        s_cmp_eq_u32 s47, 3
        s_cbranch_scc1 L_tch3
        s_lshl_b32 s39, s31, 5
        s_add_u32 s39, s39, s32
        s_lshl_b32 s39, s39, 14
        v_mov_b32 v8, s39
        global_load_dword v26, v4, s[8:9] nt
        global_load_dword v26, v8, s[12:13] nt
        global_load_dword v26, v{T0}, s[6:7] nt
        s_branch L_tchd
        L_tch1:
        s_mul_i32 s39, s31, {224*1024}
        v_mov_b32 v8, s39
        global_load_dword v26, v8, s[20:21] nt
        global_load_dword v26, v1, s[18:19]
        global_load_dword v26, v1, s[22:23]
        s_branch L_tchd
        L_tch2:
        v_mov_b32 v8, {H3S_}
        v_mov_b32 v9, s34
        global_load_dword v26, v1, s[24:25]
        global_load_dword v26, v8, s[28:29] offset:-128
        global_load_dword v26, v9, s[28:29] offset:-128
        s_branch L_tchd
        L_tch3:
        s_add_u32 s39, s34, {SIB}
        v_mov_b32 v8, s39
        s_add_u32 s39, s34, {MIB}
        v_mov_b32 v9, s39
        s_add_u32 s39, s34, {OIB}
        v_mov_b32 v10, s39
        global_load_dword v26, v8, s[28:29] offset:-128
        global_load_dword v26, v9, s[28:29] offset:-128
        global_load_dword v26, v10, s[28:29] offset:-128
        L_tchd:
        s_mov_b64 exec, -1''')
    for i in range(8):
        a(f'''s_add_u32 s39, s3, {i}
        s_and_b32 s39, s39, 7
        s_lshl_b32 s39, s39, 12
        s_add_u32 s{KS+2*i}, s6, s39
        s_addc_u32 s{KS+2*i+1}, s7, 0''')
    a('s_barrier')
    if ELATE: a('s_mov_b64 exec, 1\nglobal_load_dword v23, v1, s[28:29] sc1\ns_mov_b64 exec, -1')
    D = []
    for i in range(8):
        pre = 's_add_u32 m0, m0, 1024\ns_nop 0\n' if i > 0 else ''
        D.append(pre + f'global_load_lds_dwordx4 v{T0+(i&3)}, s[{KS+2*i}:{KS+2*i+1}] nt')
    for e in range(8):
        r = VR + 4*e
        D.append(f'global_load_dwordx4 v[{r}:{r+3}], v{4 if e < 4 else 27}, s[8:9] offset:{256*(e&3)} nt')
    for i in range(4):
        D.append(f'global_load_dwordx4 v[{WOR+4*i}:{WOR+4*i+3}], v{9 if i < 2 else 14}, s[12:13] offset:{4096*(i&1)-4096} nt')
    pl = [f'global_load_dwordx4 v[{PR}:{PR+3}], v12, s[28:29] sc1', f'global_load_dwordx4 v[{PR+4}:{PR+7}], v12, s[28:29] offset:256 sc1']
    setup = f'''s_lshl_b32 s39, s47, 11
    s_add_u32 s38, s34, s39
    s_add_u32 s38, s38, {H1F if H1FAST else H1S}
    v_and_b32 v8, 1, v6
    v_lshlrev_b32 v12, 10, v8
    v_lshrrev_b32 v9, 5, v0
    v_lshl_add_u32 v12, v9, 9, v12
    v_lshl_add_u32 v12, v5, 4, v12
    v_add_u32 v12, s38, v12
    s_mul_i32 s38, s47, {QS}
    v_lshlrev_b32 v17, 7, v8
    v_lshl_add_u32 v17, v9, 2, v17
    v_and_b32 v7, 7, v0
    v_lshl_add_u32 v17, v7, 4, v17
    v_bfe_u32 v7, v0, 3, 1
    v_lshl_add_u32 v17, v7, 3, v17
    v_add_u32 v17, s38, v17
    s_mul_i32 s38, s47, {8*IS}
    s_lshl_b32 s39, s32, 6
    s_add_u32 s38, s38, s39
    s_add_u32 s38, s38, s34
    s_add_u32 s39, s38, {SIB}
    v_lshrrev_b32 v7, 2, v5
    v_lshl_add_u32 v11, v7, 1, v8
    v_mul_u32_u24 v11, {IS}, v11
    v_and_b32 v3, 3, v0
    v_lshl_add_u32 v11, v3, 4, v11
    v_add_u32 v11, s39, v11
    s_add_u32 s39, s38, {OIB}
    v_bfe_u32 v10, v0, 2, 3
    v_mul_u32_u24 v10, {IS}, v10
    v_lshl_add_u32 v10, v3, 4, v10
    v_add_u32 v10, s39, v10
    v_mul_u32_u24 v18, {QS}, v7
    v_lshl_add_u32 v18, v6, 4, v18
    s_lshl_b32 s38, s47, 3
    v_lshl_add_u32 v19, v7, 5, s38
    s_mul_i32 s38, s47, {OW}
    s_add_u32 s38, s38, {OL}
    v_add_u32 v21, s38, v2
    s_lshl_b32 s38, s47, 8
    s_add_u32 s38, s38, {OL}
    v_and_b32 v7, 1, v0
    v_mul_u32_u24 v22, {OH}, v7
    v_bfe_u32 v20, v0, 1, 4
    v_lshl_add_u32 v22, v20, 4, v22
    v_add_u32 v22, s38, v22
    s_lshl_b32 s38, s31, 5
    s_add_u32 s38, s38, s32
    s_lshl_b32 s38, s38, 14
    s_lshl_b32 s39, s47, 8
    s_add_u32 s38, s38, s39
    s_add_u32 s38, s38, 4096
    v_lshlrev_b32 v14, 10, v6
    v_lshl_add_u32 v14, v5, 4, v14
    v_add_u32 v9, s38, v14
    v_add_u32 v14, 0x2000, v9
    s_lshl_b32 s39, s47, 9
    s_lshl_b32 s38, s32, 4
    s_add_u32 s39, s39, s38
    s_add_u32 s39, s39, s34
    s_add_u32 s39, s39, {MLB}
    v_mov_b32 v13, s39
    s_lshl_b32 s38, s47, 2
    v_mov_b32 v16, s38
    s_lshl_b32 s38, s47, 5
    v_mov_b32 v24, s38
    v_mov_b32 v25, 1
    {consts}
    v_cmp_eq_u32 vcc, 1, v7
    v_mov_b32 v{DS}, 0x0000ffff
    v_mov_b32 v{DS+1}, 0xffff0000
    v_cndmask_b32 v{DS}, v{DS}, v{DS+1}, vcc
    v_bfe_u32 v{DS+2}, v0, 1, 3'''.split('\n')
    for r in range(4):
        setup += [f'v_cmp_eq_u32 vcc, {r}, v{DS+2}', f'v_cndmask_b32 v{28+r}, 0, v{DS}, vcc']
    for j in range(4):
        setup += [f's_mov_b32 s{66+2*j}, {hex(0x11111111 << j)}', f's_mov_b32 s{67+2*j}, {hex(0x11111111 << j)}']
    setup += [f'v_xor_b32 v{T0+5}, 64, v{T0+4}', f'v_xor_b32 v{T0+6}, 0x80, v{T0+4}', f'v_xor_b32 v{T0+7}, 0xc0, v{T0+4}']
    issued = []
    def issue(tag, ins): a(ins); issued.append(tag)
    def waitfor(tag): a(f's_waitcnt vmcnt({len(issued) - 1 - issued.index(tag)})')
    chunk = (len(setup) + WIN - 1) // WIN if SPREAD else 0
    for n in range(WIN):
        issue(('D', n), D[n])
        if SPREAD: a('\n'.join(setup[n*chunk:(n+1)*chunk]))
    if not SPREAD: a('\n'.join(setup))
    nstop = NST if BURST else 19
    a(f'v_mov_b32 v{PB+3}, 0\nv_mov_b32 v{PB+7}, 0')
    pl = [x.replace(f'v[{PR}:{PR+3}]', f'v[{PB}:{PB+3}]').replace(f'v[{PR+4}:{PR+7}]', f'v[{PB+4}:{PB+7}]') for x in pl]
    for n in range(WIN, len(D) if WOPOS == 0 else 16):
        if n <= nstop:
            waitfor(('D', n - WIN))
            if not STREAM: ts2(n - WIN)
            elif n - WIN >= 7: ts2(n - WIN - 7)
        if n == WIN: mktag(23)
        issue(('D', n), D[n])
        if n - 8 in PPOS and not NOP:
            issue(('P0', n - 8), pl[0]); issue(('P1', n - 8), pl[1])
        if n == 15: a(f'ds_write_b32 v16, v25 offset:{FV}')
        if n == 8 + MTRIG and MTRIG != 7: a(f'ds_write_b32 v16, v25 offset:{FW}')
        if n - WIN == 7:
            for b in range(2):
                for t in range(4):
                    r = KR + 16*b + 4*t
                    a(f'ds_read_b128 v[{r}:{r+3}], v{T0+4+t} offset:{4096*b}')
    if STREAM:
        for n in range(min(nstop, 19) - WIN + 1, 20):
            waitfor(('D', n))
            ts2(n - 7)
        a('s_branch L_fin')
        issued += [('P1', e) for e in PPOS]
    a('s_branch L_A2')

    a('L_Q2:')
    a(consts)
    a(f'''s_lshl_b32 s3, s33, 8
    v_mov_b32 v17, s3
    s_movk_i32 s62, 0x700
    s_lshl_b32 s39, s74, 8
    s_add_u32 s39, s39, s34
    v_add_u32 v18, s39, v2
    v_add_u32 v3, {H1S-H1F}, v18
    v_mov_b32 v19, 0''')
    def qmean():
        ts(1)
        for r in range(148, 152): a(f'v_dot2c_f32_bf16 v19, s38, v{r}')
        mktag(16)
        wave_sum([19])
        a(f'''v_readlane_b32 s63, v19, 63
        v_mov_b32 v19, {hex(f2u(1.0/512))}
        v_mul_f32 v19, s63, v19''')
        rnd(19, 19)
    T = 84; DQ = 116
    def qperm(h, TT):
        for pr in range(4):
            ia = 8*h + 2*pr; ib = ia + 1
            a(f's_waitcnt vmcnt({15 - ib + (4 if ib <= XPOS else 0)})')
            for d in range(4):
                a(f'v_perm_b32 v{TT + 4*(2*d) + pr}, v{20+4*ib+d}, v{20+4*ia+d}, s40')
                a(f'v_perm_b32 v{TT + 4*(2*d+1) + pr}, v{20+4*ib+d}, v{20+4*ia+d}, s41')
    def qmfma(h, TT):
        for j in range(8):
            c = '0' if h == 0 else f'v[{DQ+4*j}:{DQ+4*j+3}]'
            a(f'v_mfma_f32_16x16x32_bf16 v[{DQ+4*j}:{DQ+4*j+3}], v[{8+4*h}:{11+4*h}], v[{TT+4*j}:{TT+4*j+3}], {c}')
    if XPOS == 3:
        a('s_waitcnt vmcnt(12)')
        qmean()
        qperm(0, T); qmfma(0, T); qperm(1, T); ts(2); qmfma(1, T)
    else:
        qperm(0, T); qperm(1, 20); ts(2)
        a('s_waitcnt vmcnt(2)')
        qmfma(0, T); qmfma(1, 20)
        a('s_waitcnt vmcnt(0)')
        qmean()
    a('v_mov_b32 v23, s35\nv_mov_b32 v27, s35')
    for j in range(8):
        d = DQ + 4*j
        a(f'v_add_f32_dpp v{d}, v{d+1}, v{d} row_ror:8 row_mask:0xf bank_mask:0xf')
        a(f'v_add_f32_dpp v{d+2}, v{d+2}, v{d+2} row_ror:8 row_mask:0xf bank_mask:0xf')
        a(f'v_fma_f32 v{d}, -v19, v{d+2}, v{d}')
    for hq in range(2):
        o = 20 + 4*hq
        pack(o, DQ + 16*hq, DQ + 16*hq + 4, DQ + 16*hq + 8, DQ + 16*hq + 12)
        a(f'v_bfi_b32 v{o}, s62, v17, v{o}')
    a('s_mov_b64 exec, 0xff')
    if H1FAST:
        a(f'''global_store_dwordx4 v18, v[20:23], s[28:29]
        global_store_dwordx4 v18, v[24:27], s[28:29] offset:128''')
    a(f'''global_store_dwordx4 v3, v[20:23], s[28:29] sc1
    global_store_dwordx4 v3, v[24:27], s[28:29] offset:128 sc1
    s_mov_b64 exec, -1''')
    ts(3)
    def lds_wait1(name, off):
        a(f'''L_{name}:
        ds_read_b32 v28, v1 offset:{off}''')
        spin_guard()
        a(f'''s_waitcnt lgkmcnt(0)
        v_cmp_eq_u32 vcc, 0, v28
        s_cbranch_vccnz L_{name}''')
    def lds_wait4(name, off):
        a(f'''L_{name}:
        s_sleep 1
        ds_read_b128 v[28:31], v1 offset:{off}''')
        spin_guard()
        a(f'''s_waitcnt lgkmcnt(0)
        v_and_b32 v28, v28, v29
        v_and_b32 v30, v30, v31
        v_and_b32 v28, v28, v30
        v_cmp_eq_u32 vcc, 0, v28
        s_cbranch_vccnz L_{name}''')
    a(f'''s_mul_i32 s38, s32, {IS}
    s_add_u32 s38, s38, s34
    s_add_u32 s39, s38, {OIB}
    v_add_u32 v8, s39, v2
    s_add_u32 s39, s38, {SIB}
    v_add_u32 v9, s39, v2
    s_lshr_b32 s39, s32, 3
    s_lshl_b32 s39, s39, 9
    s_add_u32 s39, s39, s34
    s_add_u32 s39, s39, {MLB}
    v_lshrrev_b32 v10, 2, v0
    v_lshl_add_u32 v10, v10, 4, s39
    s_lshl_b32 s38, s32, 10
    s_lshl_b32 s39, s31, 7
    s_add_u32 s38, s38, s39
    s_add_u32 s38, s38, {H3S_}
    v_and_b32 v11, 3, v0
    v_lshl_add_u32 v11, v6, 2, v11
    v_lshlrev_b32 v14, 2, v11
    v_lshl_add_u32 v11, v11, 3, s38
    v_mov_b32 v13, s35
    v_mov_b32 v15, 1
    v_mov_b32 v35, 0
    v_mov_b32 v39, 0
    v_mov_b32 v43, 0
    v_mov_b32 v47, 0
    v_mov_b32 v51, 0
    v_mov_b32 v55, 0
    s_mov_b32 s60, 0x000f000f
    s_mov_b32 s61, 0x000f000f''')
    if STREAM and not STREAM & 8: a('s_branch L_fin')
    lds_wait4('Q_vi', FV)
    ts(4)
    wp = 'sc1 nt' if WNT else 'sc1'
    LR = 48; HR = 32
    sl = [f'global_load_dwordx4 v[{40+4*i}:{43+4*i}], v9, s[28:29] offset:{1024*i} sc1' for i in range(2)]
    mll = [f'global_load_dwordx4 v[{LR+4*i}:{LR+4*i+3}], v10, s[28:29] offset:{256*i} sc1' for i in range(2)]
    ol = [f'global_load_dwordx4 v[{HR+4*i}:{HR+4*i+3}], v8, s[28:29] offset:{1024*i} sc1' for i in range(2)]
    for x in mll + ol + sl: a(x.replace('sc1', wp))
    if STREAM: a('s_waitcnt vmcnt(0)\ns_branch L_fin')
    if ZW >= 0: lds_wait1('Q_fz', FZ)
    else: lds_wait4('Q_fm', FM)
    npoll('ML', mll + ol, [LR+3, LR+7], 1, reps=QREP, masktags=(HR+3, HR+7))
    ts(7)
    for x in ol: a(x)
    a(f'v_max_f32 v56, v{LR}, v{LR+4}')
    ror('v_max_f32', 56, (8, 4))
    allrows('v_max_f32', 56, 57)
    a(f'''v_sub_f32 v58, v{LR}, v56
    v_sub_f32 v59, v{LR+4}, v56
    v_cmp_ne_u32 s[50:51], s35, v{HR+3}
    v_exp_f32 v58, v58
    v_cmp_ne_u32 s[52:53], s35, v{HR+7}
    v_exp_f32 v59, v59
    s_or_b64 s[50:51], s[50:51], s[52:53]
    s_cbranch_scc0 L_O_ok''')
    npoll('O', ol, [HR+3, HR+7], PSL, init=False)
    a('L_O_ok:')
    ts(8)
    R = 'row_mask:0xf bank_mask:0xf'
    a(f'''v_mul_f32 v56, v58, v{LR+1}
    v_perm_b32 v63, v{HR+1}, v{HR}, s45
    v_fmac_f32 v56, v59, v{LR+5}
    v_perm_b32 v64, v{HR+5}, v{HR+4}, s45
    v_perm_b32 v63, v{HR+2}, v63, s46
    v_add_f32_dpp v56, v56, v56 row_ror:8 {R}
    v_perm_b32 v64, v{HR+6}, v64, s46
    v_mul_f32 v60, v{HR}, v58
    v_add_f32_dpp v56, v56, v56 row_ror:4 {R}
    v_mul_f32 v62, v{HR+2}, v58
    v_mov_b32 v57, v56
    v_mul_f32 v61, v{HR+1}, v58
    v_mul_f32 v63, v63, v58
    v_permlane32_swap_b32 v56, v57
    v_fmac_f32 v60, v{HR+4}, v59
    v_fmac_f32 v62, v{HR+6}, v59
    v_add_f32 v56, v56, v57
    v_fmac_f32 v61, v{HR+5}, v59
    v_fmac_f32 v63, v64, v59
    v_mov_b32 v57, v56
    v_permlane32_swap_b32 v60, v62
    v_permlane32_swap_b32 v61, v63
    v_permlane16_swap_b32 v56, v57
    v_add_f32 v60, v60, v62
    v_add_f32 v61, v61, v63
    v_add_f32 v56, v56, v57
    v_rcp_f32 v56, v56
    v_permlane16_swap_b32 v60, v61
    v_add_f32 v60, v60, v61''')
    ror('v_add_f32', 60, (8, 4))
    a(f'''v_mul_f32 v60, v60, v56
    v_cvt_pk_bf16_f32 v60, v60, v60
    ds_write_b32 v14, v60 offset:{O16}
    ds_write_b32 v1, v15 offset:{FT}''')
    ts(9)
    npoll('S', sl, [43, 47], PSL)
    ts(5)
    sum2(60, 40, 44, 64)
    scatter4(60)
    ror('v_add_f32', 60, (8, 4), dst=12)
    a(f'''s_mov_b64 exec, s[60:61]
    global_store_dwordx2 v11, v[12:13], s[28:29] sc1
    ds_write_b32 v1, v15 offset:{FE}
    s_waitcnt lgkmcnt(0)''')
    ts(6)
    if WB == 3:
        a(f's_waitcnt vmcnt(0)\nds_write_b32 v1, v15 offset:{FM}\ns_waitcnt lgkmcnt(0)')
    if CLEAN:
        a(f'''s_mov_b64 exec, -1
        global_store_dwordx4 v9, v[60:63], s[28:29] sc1
        global_store_dwordx4 v9, v[60:63], s[28:29] offset:1024 sc1
        s_and_b32 s38, s32, 7
        s_cmp_lg_u32 s38, 0
        s_cbranch_scc1 L_fin
        s_mov_b32 s60, 0x11111111
        s_mov_b32 s61, 0x11111111
        s_mov_b64 exec, s[60:61]
        global_store_dwordx4 v10, v[60:63], s[28:29] sc1
        global_store_dwordx4 v10, v[60:63], s[28:29] offset:256 sc1''')
    a('s_branch L_fin')

    a('L_M2:')
    a(consts)
    a(f'''s_mul_i32 s39, s32, {MHS}
    s_add_u32 s39, s39, s34
    s_add_u32 s39, s39, {MHB}
    v_add_u32 v18, s39, v2
    s_lshl_b32 s62, s32, 1
    s_add_u32 s63, s62, 1
    s_lshl_b32 s3, s33, 8
    v_mov_b32 v17, s3
    s_waitcnt vmcnt(0)''')
    ts(1)
    mktag(16)
    def layernorm(first):
        for d in range(4):
            a(f'v_lshlrev_b32 v{60+2*d}, 16, v{8+d}')
            a(f'v_and_b32 v{61+2*d}, 0xffff0000, v{8+d}')
        a('v_readfirstlane_b32 s38, v60')
        for k in range(8): a(f'v_subrev_f32 v{70+k}, s38, v{60+k}')
        a('v_add_f32 v68, v70, v71')
        a('v_mul_f32 v69, v70, v70')
        for k in range(1, 8):
            if k >= 2: a(f'v_add_f32 v68, v68, v{70+k}')
            a(f'v_fmac_f32 v69, v{70+k}, v{70+k}')
        wave_sum([68, 69])
        a(f'''v_readlane_b32 s39, v68, 63
        v_readlane_b32 s64, v69, 63
        v_mov_b32 v70, {hex(f2u(1.0/512))}
        v_mul_f32 v68, s39, v70
        v_mul_f32 v69, s64, v70
        v_fma_f32 v69, -v68, v68, v69
        v_max_f32 v69, 0, v69
        v_add_f32 v68, s38, v68''')
        rnd(68, 68); rnd(69, 69)
        a(f'v_add_f32 v69, {hex(f2u(1e-5))}, v69')
        rnd(69, 69)
        a('v_sqrt_f32 v69, v69')
        rnd(69, 69)
        a('v_rcp_f32 v69, v69')
        if first:
            a(f'v_mul_f32 v70, {hex(f2u(LOG2E / math.sqrt(128.0)))}, v69')
            a(f'v_or_b32 v70, 1, v70')
            a(f'ds_write_b32 v1, v70 offset:{RS}')
        for k in range(8): a(f'v_sub_f32 v{60+k}, v{60+k}, v68')
        for d in range(4): a(f'v_cvt_pk_bf16_f32 v{8+d}, v{60+2*d}, v{61+2*d}')
        for d in range(4):
            a(f'v_lshlrev_b32 v{60+2*d}, 16, v{8+d}')
            a(f'v_and_b32 v{61+2*d}, 0xffff0000, v{8+d}')
        for k in range(8): a(f'v_mul_f32 v{60+k}, v{60+k}, v69')
        for d in range(4): a(f'v_cvt_pk_bf16_f32 v{8+d}, v{60+2*d}, v{61+2*d}')
    layernorm(True)
    layernorm(False)
    for d in range(4):
        a(f'v_readlane_b32 s{66+d}, v{8+d}, s62')
        a(f'v_readlane_b32 s{70+d}, v{8+d}, s63')
    for c in range(4): a(f'v_mov_b32 v{80+c}, 0')
    a('v_mov_b32 v87, s35')
    a(f'''s_movk_i32 s62, 0x700
    s_min_u32 s3, s32, 27
    s_lshl_b32 s39, s3, 5
    s_add_u32 s38, s34, s39
    s_add_u32 s38, s38, {MHB}
    v_and_b32 v7, 1, v0
    v_lshrrev_b32 v13, 1, v0
    v_mul_u32_u24 v13, {MHS}, v13
    v_lshl_add_u32 v13, v7, 4, v13
    v_add_u32 v13, s38, v13
    s_mul_i32 s38, s31, 224
    s_lshl_b32 s39, s3, 3
    s_add_u32 s38, s38, s39
    v_lshl_add_u32 v12, v7, 2, v6
    v_add_lshl_u32 v12, v12, s38, 1
    s_lshl_b32 s38, s38, 10
    s_add_u32 s38, s38, 4096
    v_lshlrev_b32 v14, 10, v6
    v_lshl_add_u32 v14, v5, 4, v14
    v_add_u32 v14, s38, v14
    s_lshr_b32 s38, s32, 1
    s_lshl_b32 s38, s38, 5
    s_and_b32 s39, s32, 1
    s_lshl_b32 s39, s39, 2
    s_add_u32 s38, s38, s39
    v_and_b32 v3, 3, v0
    v_lshl_add_u32 v15, v3, 3, v6
    v_add_lshl_u32 v15, v15, s38, 1''')
    W2 = 88
    a('v_mov_b32 v59, v12')
    a(f'''v_cmp_eq_u32 vcc, 1, v7
    v_mov_b32 v60, 0x0000ffff
    v_mov_b32 v61, 0xffff0000
    v_cndmask_b32 v60, v60, v61, vcc
    s_cmp_lt_u32 s32, 28
    s_cselect_b32 s38, -1, 0
    v_and_b32 v60, s38, v60
    v_bfe_u32 v61, v0, 1, 3''')
    for r in range(8):
        a(f'v_cmp_eq_u32 vcc, {r}, v61')
        a(f'v_cndmask_b32 v{120+r}, 0, v60, vcc')
    a(f'''s_lshl_b32 s39, s32, 6
    s_add_u32 s39, s39, s34
    s_add_u32 s39, s39, {MIB}
    v_lshrrev_b32 v8, 2, v5
    v_lshlrev_b32 v8, 1, v8
    v_and_b32 v9, 1, v6
    v_add_u32 v8, v8, v9
    v_lshrrev_b32 v9, 5, v0
    v_lshl_add_u32 v8, v9, 3, v8
    v_mul_u32_u24 v8, {IS}, v8
    v_lshl_add_u32 v8, v3, 4, v8
    v_add_u32 v8, s39, v8
    v_add_u32 v9, {16*IS}, v8
    s_mul_i32 s38, s32, {IS}
    s_add_u32 s38, s38, s34
    s_add_u32 s38, s38, {MIB}
    v_add_u32 v10, s38, v2
    s_lshl_b32 s38, s32, 10
    s_add_u32 s38, s38, {H3M_}
    s_lshl_b32 s39, s31, 7
    s_add_u32 s39, s39, s38
    v_lshl_add_u32 v11, v6, 2, v3
    v_lshlrev_b32 v11, 3, v11
    v_bfe_u32 v12, v0, 2, 2
    v_lshl_add_u32 v12, v12, 7, v11
    v_add_u32 v12, s38, v12
    v_add_u32 v11, s39, v11
    v_mov_b32 v65, s35
    v_mov_b32 v55, 0
    v_add_u32 v19, {MH2}, v18
    s_movk_i32 s39, 7168
    v_mov_b32 v71, 0
    v_mov_b32 v75, 0''')
    if BAL:
        for r in range(88, 120): a(f'v_mov_b32 v{r}, 0')
    ts(2)
    lds_wait4('M_vi', FW if MTRIG != 7 else FV)
    a('s_mov_b32 s48, 0')
    a('s_setprio 2')
    ml = ['global_load_dwordx4 v[52:55], v13, s[28:29] sc1']
    mil = [f'global_load_dwordx4 v[{68+4*i}:{71+4*i}], v10, s[28:29] offset:{1024*i} sc1' for i in range(2)]
    if HWARM:
        a(f'''s_and_b32 s38, s32, 7
        s_cmp_lg_u32 s38, s31
        s_cbranch_scc1 L_nohw
        s_lshl_b32 s38, s32, 10
        s_add_u32 s38, s38, {H3S_}
        v_add_u32 v128, s38, v2
        v_add_u32 v129, {H3M_-H3S_}, v128
        global_load_dwordx4 v[136:139], v128, s[28:29] sc1
        global_load_dwordx4 v[140:143], v129, s[28:29] sc1
        L_nohw:''')
    a('s_mov_b64 exec, s[60:61]')
    for p in range(8):
        a(f'global_load_dwordx2 v[{20+4*p}:{21+4*p}], v4, s[16:17] nt')
        a(f'global_load_dwordx2 v[{22+4*p}:{23+4*p}], v4, s[16:17] offset:3584 nt')
        if p < 7: a('v_add_u32 v4, s39, v4')
    a('global_load_dwordx4 v[128:131], v18, s[28:29] sc1')
    a('s_mov_b64 exec, -1')
    a(f'''global_load_ushort v56, v59, s[18:19]
    global_load_ushort v57, v15, s[4:5]
    global_load_ushort v58, v15, s[22:23]''')
    def w2loads():
        for cb in range(4):
            for i in range(2):
                r = W2 + 8*cb + 4*i
                a(f'global_load_dwordx4 v[{r}:{r+3}], v14, s[20:21] offset:{256*cb + 4096*i - 4096} nt')
        for x in mil: a(x)
    if BAL:
        a('s_cmp_lt_u32 s32, 28\ns_cselect_b64 exec, -1, 1')
        for cb in range(4):
            for i in range(2):
                r = W2 + 8*cb + 4*i
                a(f'global_load_dwordx4 v[{r}:{r+3}], v14, s[20:21] offset:{256*cb + 4096*i - 4096} nt')
        a('s_mov_b64 exec, -1')
        for x in mil: a(x)
    elif not W2LATE: w2loads()
    for p in range(8):
        a(f's_waitcnt vmcnt({14 - 2*p + 4 + (0 if W2LATE else 10)})')
        ra = 20 + 4*p; rb = ra + 2
        for d in range(2):
            a(f'v_perm_b32 v{60+2*d}, v{rb+d}, v{ra+d}, s40')
            a(f'v_perm_b32 v{61+2*d}, v{rb+d}, v{ra+d}, s41')
        for c in range(4): a(f'v_dot2c_f32_bf16 v{80+c}, s{66+p}, v{60+c}')
    pack(84, 80, 81, 82, 83)
    a(f'''v_bfi_b32 v84, s62, v17, v84
    s_mov_b64 exec, s[60:61]
    global_store_dwordx4 v18, v[84:87], s[28:29]
    global_store_dwordx4 v19, v[84:87], s[28:29] sc1
    s_mov_b64 exec, -1
    s_mov_b32 s60, 0x000f000f
    s_mov_b32 s61, 0x000f000f
    v_mov_b32 v39, s35
    v_mov_b32 v43, s35''')
    ts(3)
    if W2LATE: w2loads()
    if ZW >= 0 and MZ:
        lds_wait1('M_fz', FZ)
        a('s_mov_b32 s48, 0')
    swm = 's_cmp_eq_u32 s48, 64\ns_cbranch_scc1 L_MH_sw'
    tail.append(f'L_MH_sw:\ns_waitcnt vmcnt(0)\nv_add_u32 v13, {MH2}, v13\ns_add_u32 s48, s48, 1\ns_branch L_MH_c')
    npoll('MH', ml, [55], 1, pre=swm, reps=2)
    ts(4)
    a(f'''v_bfe_u32 v60, v52, 8, 3
    v_cmp_ne_u32 s[52:53], s33, v60
    v_mov_b32 v132, v52
    v_mov_b32 v133, v53
    v_mov_b32 v134, v54''')
    unpack_to(135, 52)
    a('v_lshlrev_b32 v56, 16, v56')
    scatter4(132)
    ror('v_add_f32', 132, (8, 4, 2))
    rnd(132, 132)
    a('v_add_f32 v132, v132, v56')
    rnd(132, 132)
    a(f'''s_mov_b32 s38, {hex(f2u(0.044715))}
    s_mov_b32 s39, {hex(f2u(-2.0 * math.sqrt(2.0 / math.pi) * LOG2E))}
    v_mul_f32 v133, v132, v132
    v_fma_f32 v133, v133, s38, 1.0
    v_mul_f32 v133, v133, v132
    v_mul_f32 v133, s39, v133
    v_exp_f32 v133, v133
    v_add_f32 v133, 1.0, v133
    v_rcp_f32 v133, v133
    v_mul_f32 v132, v132, v133
    v_cvt_pk_bf16_f32 v132, v132, v132''')
    for hi in range(2):
        for i in range(2):
            for r in range(4): a(f'v_and_b32_dpp v{20+8*hi+4*i+r}, v132, v{120+4*hi+r} quad_perm:[{i},{i},{i},{i}] row_mask:0xf bank_mask:0xf')
    for hi in range(2):
        for i in range(2):
            for pp in range(2):
                d = 76 + 4*pp; r = W2 + 8*(2*pp+hi) + 4*i; A = 20 + 8*hi + 4*i
                c = '0' if (hi == 0 and i == 0) else f'v[{d}:{d+3}]'
                a(f'v_mfma_f32_16x16x32_bf16 v[{d}:{d+3}], v[{A}:{A+3}], v[{r}:{r+3}], {c}')
    pack(36, 76, 77, 78, 79); pack(40, 80, 81, 82, 83)
    a('s_cmp_lg_u64 s[52:53], 0')
    store_mode('stm', ['global_store_dwordx4 v8, v[36:39], s[28:29]', 'global_store_dwordx4 v9, v[40:43], s[28:29]'])
    ts(5)
    mclean = '''global_store_dwordx4 v10, v[60:63], s[28:29] sc1
    global_store_dwordx4 v10, v[60:63], s[28:29] offset:1024 sc1
    s_mov_b32 exec_hi, 0x00ffffff
    global_store_dwordx4 v18, v[60:63], s[28:29] sc1
    s_mov_b64 exec, -1''' if CLEAN else ''
    npoll('MI', mil, [71, 75], PSL)
    ts(6)
    sum2(60, 68, 72, 66)
    scatter4(60)
    ror('v_add_f32', 60, (8, 4), dst=64)
    a(f'''s_mov_b64 exec, s[60:61]
    global_store_dwordx2 v11, v[64:65], s[28:29] sc1
    s_mov_b64 exec, -1
    {mclean}
    s_and_b32 s38, s32, 7
    s_cmp_lg_u32 s38, s31
    s_cbranch_scc1 {'L_wb' if WB else 'L_fin'}
    v_add_u32 v13, {(H3S_-H3M_) & 0xffffffff}, v12''')
    if WB:
        sel = 's_add_u32 s38, s31, 1\ns_and_b32 s38, s38, 7\ns_cmp_lg_u32 s38, s32\ns_cbranch_scc1 L_fin\n' if WB in (1, 3) else ''
        tail.append(f'''L_wb:
        {sel}
        L_wb2:
        s_sleep 1
        ds_read_b32 v28, v1 offset:{FM if WB == 3 else FE}
        s_add_u32 s48, s48, 1
        s_cmp_gt_u32 s48, {MAXPOLL}
        s_cbranch_scc1 L_end
        s_waitcnt lgkmcnt(0)
        v_cmp_eq_u32 vcc, 0, v28
        s_cbranch_vccnz L_wb2
        {f's_sleep {WBD}' if WBD else ''}
        buffer_wbl2 sc1
        s_waitcnt vmcnt(0)
        s_branch L_fin''')
    hm = [f'global_load_dwordx2 v[{20+2*i}:{21+2*i}], v12, s[28:29] offset:{512*i} sc1' for i in range(2)]
    hs = [f'global_load_dwordx2 v[{24+2*i}:{25+2*i}], v13, s[28:29] offset:{512*i} sc1' for i in range(2)]
    a(f'''v_lshlrev_b32 v57, 16, v57
    v_lshlrev_b32 v58, 16, v58
    v_mov_b32 v21, 0
    v_mov_b32 v23, 0
    v_mov_b32 v25, 0
    v_mov_b32 v27, 0
    s_mov_b32 s39, {hex(f2u(-LOG2E))}''')
    if FEARLY:
        for x in hs: a(x)
    a(f'''L_M_fe:
    s_sleep 1
    ds_read_b32 v28, v1 offset:{FE}''')
    spin_guard()
    a(f'''s_waitcnt lgkmcnt(0)
    v_cmp_eq_u32 vcc, 0, v28
    s_cbranch_vccnz L_M_fe
    s_setprio 3''')
    if FDLY: a(f's_sleep {FDLY}')
    a('s_mov_b64 s[50:51], -1')
    a('L_HM_l:')
    a('s_wqm_b64 exec, s[50:51]')
    for x in hm + hs: a(x)
    a(f'''s_mov_b64 exec, -1
    s_add_u32 s48, s48, 1
    s_cmp_gt_u32 s48, {MAXPOLL}
    s_cbranch_scc1 L_end
    s_sleep 1
    s_waitcnt vmcnt(32)
    v_cmp_ne_u32 s[50:51], s35, v25
    v_cmp_ne_u32 s[52:53], s35, v27
    v_cmp_ne_u32 s[54:55], s35, v21
    v_cmp_ne_u32 s[56:57], s35, v23
    s_or_b64 s[50:51], s[50:51], s[52:53]
    s_or_b64 s[50:51], s[50:51], s[54:55]
    s_or_b64 s[50:51], s[50:51], s[56:57]
    s_or_b64 s[54:55], s[54:55], s[56:57]
    s_cbranch_scc1 L_HM_l''')
    ts(7)
    for x in hs: a(x)
    a('v_add_f32 v30, v20, v22')
    ror('v_add_f32', 30, (8, 4))
    rnd(30, 30)
    a('v_add_f32 v30, v30, v58')
    rnd(30, 30)
    a(f'''v_mul_f32 v31, s39, v30
    v_exp_f32 v31, v31
    v_add_f32 v31, 1.0, v31
    v_rcp_f32 v31, v31
    v_mul_f32 v30, v30, v31''')
    rnd(30, 30)
    a('s_branch L_HS_c')
    npoll('HS', hs, [25, 27], 1, init=False)
    ts(8)
    a('v_add_f32 v32, v24, v26')
    ror('v_add_f32', 32, (8, 4))
    rnd(32, 32)
    a('v_mul_f32 v32, v32, v30')
    rnd(32, 32)
    a(f'''v_add_f32 v32, v32, v57
    v_cvt_pk_bf16_f32 v32, v32, v32
    s_mov_b64 exec, s[60:61]
    global_store_short v15, v32, s[24:25]{' sc1' if OSC else ''}
    s_cmp_lg_u32 s2, 0
    s_cbranch_scc1 L_fin
    s_mov_b64 exec, 1
    v_mov_b32 v4, s35
    global_store_dword v1, v4, s[28:29] sc1
    s_branch L_fin''')

    att[0] = True
    a('L_A2:')
    for i, e in enumerate(PPOS[:-1]):
        waitfor(('P1', e))
        if i == 0: ts(1)
        a(f'''v_cmp_ne_u32 s[50:51], s35, v{PB+3}
        v_cmp_ne_u32 s[52:53], s35, v{PB+7}
        s_or_b64 s[50:51], s[50:51], s[52:53]
        s_cbranch_scc0 L_P_ok''')
    sw = f'''s_cmp_eq_u32 s48, 16
    s_cselect_b32 s38, {H1S-H1F}, 0
    v_add_u32 v12, s38, v12''' if H1FAST else ''
    poll('P', pl, [PB+3, PB+7], len(issued) - 1 - issued.index(('P1', PPOS[-1])), sw)
    a('L_P_ok:')
    ts(2)
    a(f'''v_bfe_u32 v{T0}, v{PB}, 8, 3
    v_bfe_u32 v{T0+1}, v{PB+4}, 8, 3
    v_cmp_ne_u32 s[50:51], s33, v{T0}
    v_cmp_ne_u32 s[52:53], s33, v{T0+1}''')
    sum2(PR, PB, PB+4, PR+4)
    a('s_or_b64 s[50:51], s[50:51], s[52:53]')
    a('s_cselect_b32 s49, 3, 1')
    a(f'''v_mov_b32 v{T0}, s49
    v_permlane32_swap_b32 v{PR}, v{PR+2}
    v_permlane32_swap_b32 v{PR+1}, v{PR+3}
    v_add_f32 v{PR}, v{PR}, v{PR+2}
    v_add_f32 v{PR+1}, v{PR+1}, v{PR+3}
    v_cvt_pk_bf16_f32 v{PR}, v{PR}, v{PR+1}
    ds_write_b32 v17, v{PR}
    ds_write_b32 v16, v{T0} offset:{FQ}
    L_q_spin:
    ds_read_b128 v[{PR}:{PR+3}], v1 offset:{FQ}
    ds_read_b32 v{PR+4}, v1 offset:{RS}''')
    for t in range(4): a(f'ds_read_b128 v[{QF+4*t}:{QF+4*t+3}], v18 offset:{64*t}')
    spin_guard()
    lgkm(4)
    a(f'''v_and_b32 v{T0}, v{PR}, v{PR+1}
    v_and_b32 v{T0+1}, v{PR+2}, v{PR+3}
    v_and_b32 v{T0}, v{T0}, v{PR+4}
    v_and_b32 v{T0}, v{T0}, v{T0+1}
    v_and_b32 v{T0}, 1, v{T0}
    v_cmp_eq_u32 vcc, 0, v{T0}
    s_cbranch_vccnz L_q_spin''')
    for t in range(4):
        lgkm(3 - t)
        for b in range(2):
            c = '0' if t == 0 else f'v[{DS+4*b}:{DS+4*b+3}]'
            k = KR + 16*b + 4*t
            a(f'v_mfma_f32_16x16x32_bf16 v[{DS+4*b}:{DS+4*b+3}], v[{k}:{k+3}], v[{QF+4*t}:{QF+4*t+3}], {c}')
        if t == 0:
            a(f'''v_or3_b32 v{T0+2}, v{PR}, v{PR+1}, v{PR+2}
            v_or_b32 v{T0+2}, v{T0+2}, v{PR+3}''')
        if t == 1:
            a(f'v_readfirstlane_b32 s49, v{T0+2}')
    a('s_and_b32 s49, s49, 2')
    if WOPOS == 1:
        for n in range(16, 20): issue(('D', n), D[n])
    a(f'''v_max3_f32 v{T0}, v{DS}, v{DS+1}, v{DS+2}
    v_max3_f32 v{T0+1}, v{DS+3}, v{DS+4}, v{DS+5}
    v_max3_f32 v{T0}, v{T0}, v{DS+6}, v{DS+7}
    v_max_f32 v{T0}, v{T0}, v{T0+1}''')
    allrows('v_max_f32', T0, T0+1)
    a(f'v_mul_f32 v{T0}, v{T0}, v{PR+4}')
    for k in range(8): a(f'v_fma_f32 v{DS+k}, v{DS+k}, v{PR+4}, -v{T0}')
    for k in range(8): a(f'v_exp_f32 v{DS+k}, v{DS+k}')
    a(f'''v_add_f32 v{T0+1}, v{DS}, v{DS+1}
    v_add_f32 v{T0+2}, v{DS+2}, v{DS+3}
    v_add_f32 v{T0+3}, v{DS+4}, v{DS+5}
    v_add_f32 v{T0+1}, v{T0+1}, v{T0+2}
    v_add_f32 v{T0+2}, v{DS+6}, v{DS+7}
    v_add_f32 v{T0+1}, v{T0+1}, v{T0+3}
    v_add_f32 v{T0+1}, v{T0+1}, v{T0+2}''')
    allrows('v_add_f32', T0+1, T0+2)
    a(f'ds_write_b64 v19, v[{T0}:{T0+1}] offset:{MLX}')
    for k in range(4): a(f'v_cvt_pk_bf16_f32 v{PR+k}, v{DS+2*k}, v{DS+2*k+1}')
    for j in range(4):
        for k in range(4): a(f'v_cndmask_b32 v{QF+4*j+k}, 0, v{PR+k}, s[{66+2*j}:{67+2*j}]')
    ts(3)
    VT = KR
    def vperm(pr):
        ia = 2*pr; ib = ia + 1
        for d in range(4):
            a(f'v_perm_b32 v{VT + 4*(2*d) + pr}, v{VR+4*ib+d}, v{VR+4*ia+d}, s40')
            a(f'v_perm_b32 v{VT + 4*(2*d+1) + pr}, v{VR+4*ib+d}, v{VR+4*ia+d}, s41')
    FR = T0 + 12
    def mlx_read():
        a(f'''ds_read_b128 v[{T0}:{T0+3}], v24 offset:{MLX}
        ds_read_b128 v[{T0+4}:{T0+7}], v24 offset:{MLX+16}''')
    def mlx_check(nyoung):
        a('s_branch L_ml_chk')
        a('L_ml_spin:')
        mlx_read()
        spin_guard()
        a('s_waitcnt lgkmcnt(0)')
        a('L_ml_chk:')
        lgkm(nyoung)
        a(f'''v_min_u32 v{T0+8}, v{T0+1}, v{T0+3}
        v_min3_u32 v{T0+8}, v{T0+8}, v{T0+5}, v{T0+7}
        v_max3_f32 v{PR+4}, v{T0}, v{T0+2}, v{T0+4}
        v_cmp_eq_u32 vcc, 0, v{T0+8}
        v_max_f32 v{PR+4}, v{PR+4}, v{T0+6}
        s_cbranch_vccnz L_ml_spin''')
    def factors():
        for k in range(4): a(f'v_sub_f32 v{FR+k}, v{T0+2*k}, v{PR+4}')
        for k in range(4): a(f'v_exp_f32 v{FR+k}, v{FR+k}')
        a(f'v_mul_f32 v{PR+5}, v{FR}, v{T0+1}')
        for k in range(1, 4): a(f'v_fmac_f32 v{PR+5}, v{FR+k}, v{T0+2*k+1}')
    def mlstore():
        a('s_cmp_lg_u32 s49, 0')
        a('s_mov_b64 exec, 1')
        store_mode('stml', [f'global_store_dwordx4 v13, v[{PR+4}:{PR+7}], s[28:29]'])
        issued.append('MLst')
        a('s_mov_b64 exec, -1')
        if ZW < 0: a(f'ds_write_b32 v16, v25 offset:{FM}')
    a(f'v_mov_b32 v{PR+7}, s35')
    if MLEARLY:
        mlx_read()
        waitfor(('D', 9))
        vperm(0)
        mlx_check(0)
        factors()
        mlstore()
    if WOPOS == 2:
        for n in range(16, 20): issue(('D', n), D[n])
    if WOPOS == 3:
        a('s_bitcmp1_b32 s32, 0\ns_cbranch_scc1 L_wo_skip')
        for n in range(16, 20): issue(('D', n), D[n])
        a('L_wo_back:')
        tail.append('L_wo_skip:\ns_mov_b64 exec, 1\n' + '\n'.join(['global_load_dword v26, v12, s[28:29] sc1'] * 4) + '\ns_mov_b64 exec, -1\ns_branch L_wo_back')
    for pr in range(1, 3):
        waitfor(('D', 8 + 2*pr + 1))
        vperm(pr)
    a(f'v_mov_b32 v{PR+3}, s35')
    waitfor(('D', 15))
    ts(4)
    def p3(j): a(f'v_perm_b32 v{VT + 4*j + 3}, v{VR+28+(j>>1)}, v{VR+24+(j>>1)}, s{40+(j&1)}')
    def pv(j):
        h = j >> 2
        c = '0' if (j & 3) == 0 else f'v[{DS+4*h}:{DS+4*h+3}]'
        a(f'v_mfma_f32_16x16x32_bf16 v[{DS+4*h}:{DS+4*h+3}], v[{QF+4*(j&3)}:{QF+4*(j&3)+3}], v[{VT+4*j}:{VT+4*j+3}], {c}')
    p3(0); p3(1); p3(2); pv(0); p3(3); pv(1); p3(4); pv(2); p3(5); pv(3); p3(6); pv(4); p3(7); pv(5); pv(6); pv(7)
    a(f'''ds_write_b128 v21, v[{DS}:{DS+3}]
    ds_write_b128 v21, v[{DS+4}:{DS+7}] offset:{OH}
    ds_write_b32 v16, v25 offset:{FO}
    L_o_spin:
    ds_read_b128 v[{T0+8}:{T0+11}], v1 offset:{FO}''')
    for wp_ in range(4): a(f'ds_read_b128 v[{VR+4*wp_}:{VR+4*wp_+3}], v22 offset:{OW*wp_}')
    spin_guard()
    lgkm(4)
    a(f'''v_and_b32 v{T0+8}, v{T0+8}, v{T0+9}
    v_and_b32 v{T0+10}, v{T0+10}, v{T0+11}
    v_and_b32 v{T0+8}, v{T0+8}, v{T0+10}
    v_cmp_eq_u32 vcc, 0, v{T0+8}
    s_cbranch_vccnz L_o_spin''')
    lgkm(3)
    for k in range(4): a(f'v_mul_f32 v{VR+k}, v{VR+k}, v{FR}')
    for wp_ in range(1, 4):
        lgkm(3 - wp_)
        for k in range(4): a(f'v_fmac_f32 v{VR+k}, v{VR+4*wp_+k}, v{FR+wp_}')
    a('s_cmp_lg_u32 s49, 0')
    a('s_mov_b32 exec_hi, 0')
    pack(PR, VR, VR+1, VR+2, VR+3)
    store_mode('st2', [f'global_store_dwordx4 v10, v[{PR}:{PR+3}], s[28:29]'])
    a('s_mov_b64 exec, -1')
    ts(5)
    if WOPOS == 3:
        a('s_bitcmp1_b32 s32, 0\ns_cbranch_scc0 L_wo_have')
        for n in range(16, 20): a(D[n])
        a('L_wo_have:')
    ewb = '''s_add_u32 s38, s31, 2
    s_and_b32 s38, s38, 7
    s_lshl_b32 s38, s38, 2
    s_add_u32 s38, s38, 3
    s_lshl_b32 s39, s32, 2
    s_add_u32 s39, s39, s47
    s_cmp_lg_u32 s38, s39
    s_cbranch_scc1 L_newb
    buffer_wbl2 sc1
    L_newb:'''
    if ZW >= 0:
        a(f's_waitcnt vmcnt({(4 if WOPOS == 2 else 5) - ZW})')
        a(f'ds_write_b32 v1, v25 offset:{FZ}')
    a(f'''v_lshlrev_b32 v15, 4, v6
    s_waitcnt vmcnt({ {2: 1, 3: 0}.get(WOPOS, 2)})''')
    if WBE == 1: a(ewb)
    ts(6)
    a(f'''L_t_spin:
    ds_read_b32 v{T0+4}, v1 offset:{FT}
    ds_read_b128 v[{T0}:{T0+3}], v15 offset:{O16}''')
    spin_guard()
    a(f'''s_waitcnt lgkmcnt(0)
    v_cmp_eq_u32 vcc, 0, v{T0+4}''')
    AT = QF; DO = DS
    for r in range(4): a(f'v_and_b32 v{AT+r}, v{T0}, v{28+r}')
    a('s_cbranch_vccnz L_t_spin')
    ts(7)
    for i in range(1, 5):
        if i < 4:
            for r in range(4): a(f'v_and_b32 v{AT+4*i+r}, v{T0+i}, v{28+r}')
        c = '0' if i == 1 else f'v[{DO}:{DO+3}]'
        a(f'v_mfma_f32_16x16x32_bf16 v[{DO}:{DO+3}], v[{AT+4*(i-1)}:{AT+4*(i-1)+3}], v[{WOR+4*(i-1)}:{WOR+4*(i-1)+3}], {c}')
    a('s_cmp_lg_u32 s49, 0')
    a('s_mov_b32 exec_hi, 0')
    pack(PR, DO, DO+1, DO+2, DO+3)
    store_mode('st3', [f'global_store_dwordx4 v11, v[{PR}:{PR+3}], s[28:29]'])
    ts(8)
    if CLEAN:
        a(f'''s_mul_i32 s38, s32, {IS}
        s_add_u32 s38, s38, s34
        s_lshl_b32 s39, s47, 9
        s_add_u32 s38, s38, s39
        s_add_u32 s38, s38, {OIB}
        v_add_u32 v15, s38, v2
        {'s_sleep 6' if CLEAN == 2 else ''}
        global_store_dwordx4 v15, v[{DS}:{DS+3}], s[28:29] sc1''')
    a('L_fin:')
    if DIAG:
        if DIAGG >= 0: a(f's_cmp_lg_u32 s31, {DIAGG}\ns_cbranch_scc1 L_end')
        a(f'''L_dg:
        s_memrealtime s[78:79]
        s_waitcnt lgkmcnt(0)
        s_sub_u32 s78, s78, s76
        s_cmp_lt_u32 s78, {DIAG}
        s_cbranch_scc1 L_dg''')
    if DBG:
        a('''s_memrealtime s[100:101]
        s_mov_b64 exec, 1
        v_mov_b32 v1, 0
        s_waitcnt lgkmcnt(0)
        s_not_b32 s38, s76
        v_mov_b32 v2, s38
        global_atomic_umax v1, v2, s[26:27] offset:60
        v_mov_b32 v2, s76
        global_atomic_umax v1, v2, s[26:27] offset:56
        v_mov_b32 v2, s100
        global_atomic_umax v1, v2, s[26:27] offset:52
        s_cmp_lt_u32 s30, 2
        s_cbranch_scc1 L_dbg0''')
        for k in range(1, 9):
            a(f'v_mov_b32 v2, s{76+2*k}')
            a(f'global_atomic_umax v1, v2, s[26:27] offset:{4*(k-1)}')
        a('s_endpgm')
        a('L_dbg0:')
        a('s_cmp_eq_u32 s30, 1\ns_cbranch_scc1 L_end')
        for i, k in enumerate((1, 2, 3, 5)):
            a(f'v_mov_b32 v2, s{76+2*k}')
            a(f'global_atomic_umax v1, v2, s[26:27] offset:{4*(8+i)}')
    elif TS:
        att[0] = False
        if not TS2: ts(12)
        a(f'''s_mul_i32 s38, s2, 6
        s_add_u32 s38, s38, s30
        s_lshl_b32 s38, s38, 7
        s_add_u32 s38, s38, {TSB}
        s_mov_b64 exec, 1
        v_mov_b32 v1, s38
        s_waitcnt lgkmcnt(0)''')
        for k in range(13):
            a(f'v_mov_b32 v2, s{76+2*k}')
            a(f'global_store_dword v1, v2, s[28:29] offset:{4*k}')
        a('v_mov_b32 v2, s48')
        a(f'global_store_dword v1, v2, s[28:29] offset:64')
    a('s_endpgm')
    for t in tail: a(t)
    a('L_end:')
    a('s_endpgm')
    a.raw(f'''.section .rodata,"a"
.p2align 6
.amdhsa_kernel {KN}_kernel
  .amdhsa_next_free_vgpr 168
  .amdhsa_next_free_sgpr 102
  .amdhsa_accum_offset 168
  .amdhsa_group_segment_fixed_size 0
  .amdhsa_kernarg_size 104
  .amdhsa_user_sgpr_count 2
  .amdhsa_user_sgpr_kernarg_segment_ptr 1
  .amdhsa_system_sgpr_workgroup_id_x 1
.end_amdhsa_kernel''')
    return a.text()

if __name__ == '__main__':
    for spec in sys.argv[1:]:
        name, kw = spec.split('=', 1)
        kw = eval('dict(' + kw + ')')
        open(f'exp/{name}.s', 'w').write(gen(**kw))
```
